```python
import torch

def _softmax(x, axis=-1):
    return torch.softmax(x, dim=axis)
def _gelu(x):
    return torch.nn.functional.gelu(x, approximate="tanh")
def _silu(x):
    return torch.nn.functional.silu(x)
def _sigmoid(x):
    return torch.sigmoid(x)
def _layernorm(x, axis=-1, eps=1e-5):
    m = x.mean(dim=axis, keepdim=True)
    v = x.var(dim=axis, keepdim=True, unbiased=False)
    return (x - m) / torch.sqrt(v + eps)
def _scatter_add(tgt, idx, src, axis=0):
    return tgt.clone().index_add_(axis, idx, src)
def _segment_sum(src, seg, n):
    out = torch.zeros((n,) + src.shape[1:], dtype=src.dtype)
    return out.index_add_(0, seg, src)
def _pad(x, pw):
    flat = tuple(v for pair in reversed(pw) for v in pair)
    return torch.nn.functional.pad(x, flat)

kernel_name = 'interleave_layers__mha_block_cached__glu_gated_swiglu__decode'

def setup_inputs():

    _w = (lambda a: (lambda t: t.to(torch.bfloat16) if t.is_floating_point() else t)(torch.as_tensor(a)))
    def _A_setup():
        B, Sq, D = 1, 1, 640
        H, Sk, Dh = 32, 4096, 128
        return {
            "x": _w((lambda *s: torch.randn(*s, dtype=torch.bfloat16) * 0.05)(B, Sq, D)),
            "k_cache": _w((lambda *s: torch.randn(*s, dtype=torch.bfloat16) * 0.8)(B, H, Sk, Dh)),
            "v_cache": _w((lambda *s: torch.randn(*s, dtype=torch.bfloat16) * 0.8)(B, H, Sk, Dh)),
            "wq": _w((lambda *s: torch.randn(*s, dtype=torch.bfloat16) * 0.8)(D, H * Dh) * (D ** -0.5)),
            "wo": _w((lambda *s: torch.randn(*s, dtype=torch.bfloat16) * 0.8)(H * Dh, D) * ((H * Dh) ** -0.5)),
        }
    _A_in = _A_setup()

    def _B_setup():
        B, S, D, F = 1, 1, 640, 1728
        return {
            "x": _w((lambda *s: torch.randn(*s, dtype=torch.bfloat16) * 0.05)(B, S, D)),
            "w1": _w((lambda *s: torch.randn(*s, dtype=torch.bfloat16) * 0.2)(D, F) * (2.0 / D) ** 0.5),
            "w3": _w((lambda *s: torch.randn(*s, dtype=torch.bfloat16) * 0.2)(D, F) * (2.0 / D) ** 0.5),
            "w2": _w((lambda *s: torch.randn(*s, dtype=torch.bfloat16) * 0.2)(F, D) * (2.0 / F) ** 0.5),
        }
    _B_in = _B_setup()

    return {
        "A_x": _A_in["x"],
        "A_k_cache": _A_in["k_cache"],
        "A_v_cache": _A_in["v_cache"],
        "A_wq": _A_in["wq"],
        "A_wo": _A_in["wo"],
        "B_x": _B_in["x"],
        "B_w1": _B_in["w1"],
        "B_w3": _B_in["w3"],
        "B_w2": _B_in["w2"],
    }

def reference(A_x, A_k_cache, A_v_cache, A_wq, A_wo, B_x, B_w1, B_w3, B_w2):
    def _A_ref(x, k_cache, v_cache, wq, wo):
        B, Sq, D = x.shape
        H, Dh = 32, 128
        q = (lambda x, *d: x.permute(*d))((x @ wq).reshape(B, Sq, H, Dh), 0, 2, 1, 3)
        scores = torch.einsum("bhqd,bhkd->bhqk", q, k_cache) * (Dh ** -0.5)
        p = _softmax(scores, axis=-1)
        o = torch.einsum("bhqk,bhkd->bhqd", p, v_cache)
        return (lambda x, *d: x.permute(*d))(o, 0, 2, 1, 3).reshape(B, Sq, H * Dh) @ wo

    def _B_ref(x, w1, w3, w2):
        gate = torch.einsum("bsd,df->bsf", x, w1)
        up = torch.einsum("bsd,df->bsf", x, w3)
        h = _silu(gate) * up
        out = torch.einsum("bsf,fd->bsd", h, w2)
        return out

    x = A_x
    x = x + _A_ref(_layernorm(x, axis=-1), A_k_cache, A_v_cache, A_wq, A_wo)
    x = x + _B_ref(_layernorm(x, axis=-1), B_w1, B_w3, B_w2)
    x = x + _A_ref(_layernorm(x, axis=-1), A_k_cache, A_v_cache, A_wq, A_wo)
    x = x + _B_ref(_layernorm(x, axis=-1), B_w1, B_w3, B_w2)
    return x
```

```python
import re

REG = re.compile(r'\b([vsa])(\d+)\b|\b([vsa])\[(\d+):(\d+)\]|\b(vcc|exec|m0|vcc_lo|vcc_hi|exec_lo|exec_hi)\b')
TRANS = ('v_exp_', 'v_log_', 'v_rcp_', 'v_rsq_', 'v_sqrt_', 'v_sin_', 'v_cos_')

def regs_of(tok):
    out = set()
    for m in REG.finditer(tok):
        if m.group(1): out.add(m.group(1) + m.group(2))
        elif m.group(3):
            for i in range(int(m.group(4)), int(m.group(5)) + 1): out.add(m.group(3) + str(i))
        else:
            n = m.group(6)
            if n in ('vcc', 'vcc_lo', 'vcc_hi'): out.add('vcc')
            elif n.startswith('exec'): out.add('exec')
            else: out.add(n)
    return out

def split_ops(s):
    ops, depth, cur = [], 0, ''
    for ch in s:
        if ch == '[': depth += 1
        if ch == ']': depth -= 1
        if ch == ',' and depth == 0: ops.append(cur.strip()); cur = ''
        else: cur += ch
    if cur.strip(): ops.append(cur.strip())
    return ops

class Ins:
    def __init__(self, text):
        self.text = text
        t = text.split(';')[0].strip()
        self.label = t[:-1] if t.endswith(':') else None
        self.directive = t.startswith('.') and not self.label
        self.op = '' if (self.label or self.directive or not t) else t.split()[0]
        rest = t[len(self.op):].strip() if self.op else ''
        ops = split_ops(rest)
        op = self.op
        self.ops = ops
        self.mfma = op.startswith('v_mfma') or op.startswith('v_smfmac')
        self.valu = op.startswith('v_') and not self.mfma
        self.dpp = '_dpp' in op
        self.trans = op.startswith(TRANS)
        self.dot = op.startswith('v_dot')
        self.perml = op.startswith('v_permlane')
        self.rdlane = op.startswith('v_readlane') or op.startswith('v_readfirstlane')
        self.vmem = op.startswith(('global_', 'buffer_'))
        self.ds = op.startswith('ds_')
        self.salu = op.startswith('s_')
        self.dma = self.vmem and ('_lds_' in op or ' lds' in t)
        self.branch = op.startswith('s_cbranch') or op == 's_branch'
        self.target = ops[0] if self.branch else None
        self.uncond = op in ('s_branch', 's_endpgm')
        w, r = set(), set()
        allr = [regs_of(o) for o in ops]
        if self.mfma:
            w = allr[0]; self.srcab = allr[1] | allr[2]
            if op.startswith('v_smfmac'): self.srcc = allr[0]; self.srcab |= allr[3]
            else: self.srcc = allr[3]
            r = self.srcab | self.srcc
        elif self.valu:
            w = set(allr[0])
            for x in allr[1:]: r |= x
            if self.perml: w |= allr[1]; r |= allr[0]
            if self.dpp or 'fmac' in op or 'dot2c' in op or op.startswith('v_writelane'): r |= allr[0]
            if '_co_' in op: w |= allr[1]
            if op.startswith('v_cndmask') and len(ops) == 3: r.add('vcc')
        elif self.vmem or self.ds:
            isload = ('load' in op or 'read' in op or 'bpermute' in op or 'swizzle' in op or ('atomic' in op and ' sc0' in t) or '_rtn' in op) and not self.dma
            if isload:
                w = allr[0]
                for x in allr[1:]: r |= x
            else:
                for x in allr: r |= x
            if self.dma: r.add('m0')
        elif self.salu and ops and not self.branch:
            if op.startswith(('s_cmp', 's_waitcnt', 's_nop', 's_sleep', 's_setprio', 's_bitcmp')):
                for x in allr: r |= x
            else:
                w = allr[0]
                for x in allr[1:]: r |= x
        self.w, self.r = w, r
        self.widestore = self.vmem and 'store' in op and ('x4' in op or 'x3' in op)
        self.states = (int(ops[0]) + 1) if op == 's_nop' else (1 if op else 0)

def need(p, c):
    n = 0
    vw = {x for x in p.w if x[0] in 'va' and x != 'vcc'}
    sw = p.w - vw
    if p.valu:
        if vw & c.r:
            if c.dpp or c.perml or c.mfma: n = max(n, 2)
            if c.rdlane: n = max(n, 1)
            if p.trans: n = max(n, 1)
        if p.dot and (vw & (c.r | c.w)):
            if c.op == p.op and not (vw & (regs_of(c.ops[1]) | regs_of(c.ops[2]))): pass
            else: n = max(n, 3)
        if sw & c.r:
            if c.valu or c.mfma: n = max(n, 4 if (c.rdlane or c.op.startswith('v_writelane')) else 2)
            if c.vmem: n = max(n, 5)
            if c.salu: n = max(n, 1)
    if p.mfma:
        assert '16x16x' in p.op
        if c.mfma:
            if vw & c.srcab: n = max(n, 8)
            if vw & c.srcc and not (vw == c.srcc and p.op == c.op): n = max(n, 6)
            if vw & c.w and not (vw == c.srcc and p.op == c.op): n = max(n, 8)
        elif vw & (c.r | c.w): n = max(n, 8)
        if c.valu and (p.srcc & c.w): n = max(n, 3)
    if p.widestore and (regs_of(p.ops[1]) & c.w): n = max(n, 2)
    if p.salu and 'm0' in p.w and c.dma: n = max(n, 1)
    return n

class Asm:
    def __init__(self): self.lines = []
    def __call__(self, s):
        for l in s.split('\n'):
            l = l.strip()
            if l: self.lines.append(l)
    def finish(self):
        ins = [Ins(l) for l in self.lines]
        incoming = {}
        for _pass in range(3):
            out, hist, nops = [], [], 0
            newin = {}
            for i in ins:
                if i.label:
                    hist = hist + incoming.get(i.label, []) + newin.get(i.label, [])
                    out.append(i.text); continue
                if not i.op:
                    out.append(i.text); continue
                k = 0
                for p, age in hist:
                    k = max(k, need(p, i) - age)
                if k > 0:
                    out.append(f's_nop {k-1}'); nops += 1
                    hist = [(p, a + k) for p, a in hist]
                out.append(i.text)
                hist = [(p, a + i.states) for p, a in hist if a + i.states < 10]
                if i.w or i.widestore or i.mfma: hist.append((i, 0))
                if i.branch: newin.setdefault(i.target, []).extend(hist)
                if i.uncond: hist = []
            incoming = newin
        self.nops = nops
        return '\n'.join(('' if (l.endswith(':') or l.startswith('.')) else '    ') + l for l in out)
```

```python
import sys, struct
from asmlib import Asm

NAME = "interleave_layers__mha_block_cached__glu_gated_swiglu__decode_kernel"

def f2u(x): return struct.unpack('<I', struct.pack('<f', x))[0]

PB = 0
OA = 512000
ST = 643072
QE1 = 651264
XB = 659456
HC = 690176
QE0 = 786432
STAMPS = 1 << 20
L_QF, L_G1, L_G2, L_G3, L_G4 = 0, 16, 24, 32, 36
L_FP, L_FW, L_STAT = 64, 128, 192
L_QL, L_PQ, L_PW, L_OP = 512, 768, 1280, 4096
L_WQ, L_W13, L_W2, L_WO = 8192, 28672, 49152, 65536
LDS_BYTES = 98304
sX_, sK, sV, sWQ, sWO, sW1, sW3, sW2, sOUT, sDBG, sWS = 4, 6, 8, 10, 12, 16, 18, 20, 22, 24, 26
sWAVE, sGX, sJ, sW, sL, sBUD, sMODE, sHEAD, sC = 28, 29, 30, 31, 32, 33, 34, 35, 36
sKB, sVB = 38, 40
sPLO, sPHI, sM = 44, 45, 46
sT = 48
sSTAMP = 64
vLANE, vIA, vIP, vRES, vONE = 0, 1, 2, 3, 4
vTR, vXA = 8, 9
vT = 10
vSTV = 31
vAT, vQ, vDA, vDB = 32, 48, 52, 56
vS, vW, vK, vV = 60, 96, 128, 192

def p(r): return f"s[{r}:{r+1}]"
def v(r, n=1): return f"v{r}" if n == 1 else f"v[{r}:{r+n-1}]"

def gen(instr=False, opt=None):
    opt = dict(opt or {})
    a = Asm()
    uid = [0]
    def lab(s):
        uid[0] += 1
        return f"L_{s}_{uid[0]}"
    def stamp(i):
        if instr: a(f"s_memtime s[{sSTAMP+2*i}:{sSTAMP+2*i+1}]")
    def setexec(m):
        if m == -1: a("s_mov_b64 exec, -1"); return
        lo, hi = m & 0xffffffff, m >> 32
        if hi == 0 and lo < 0x80000000: a(f"s_mov_b64 exec, {lo:#x}")
        else: a(f"s_mov_b32 exec_lo, {lo:#x}"); a(f"s_mov_b32 exec_hi, {hi:#x}")
    def budget():
        a(f"s_sub_u32 s{sBUD}, s{sBUD}, 1")
        a("s_cbranch_scc1 L_exit")
    def maxchain(dst, regs, op="max"):
        regs = list(regs)
        if len(regs) == 1: return regs[0]
        if len(regs) == 2:
            a(f"v_{op}_u32 v{dst}, v{regs[0]}, v{regs[1]}"); return dst
        a(f"v_{op}3_u32 v{dst}, v{regs[0]}, v{regs[1]}, v{regs[2]}"); regs = regs[3:]
        while len(regs) >= 2:
            a(f"v_{op}3_u32 v{dst}, v{dst}, v{regs[0]}, v{regs[1]}"); regs = regs[2:]
        if regs: a(f"v_{op}_u32 v{dst}, v{dst}, v{regs[0]}")
        return dst
    def istore(text):
        l1, l2 = lab("slow"), lab("st")
        a(f"s_cmp_lg_u32 s{sMODE}, 1")
        a(f"s_cbranch_scc1 {l1}")
        for t in text: a(t)
        a(f"{l2}:")
        slow.append((l1, l2, text))
    slow = []
    def gate(addr_off, layer=False, sleep=1):
        l = lab("gate")
        if layer: a(f"s_lshl_b32 s{sT}, s{sL}, 2"); a(f"v_mov_b32 v{vT+19}, s{sT}")
        else: a(f"v_mov_b32 v{vT+19}, 0")
        l2 = lab("gated")
        a(f"{l}:")
        a(f"ds_read_b32 v{vT+20}, v{vT+19} offset:{addr_off}")
        budget()
        a("s_waitcnt lgkmcnt(0)")
        a(f"v_cmp_ne_u32 vcc, 0, v{vT+20}")
        a(f"s_cbranch_vccnz {l2}")
        a(f"s_sleep {sleep}")
        a(f"s_branch {l}")
        a(f"{l2}:")
    def setflag(addr_off, layer=False):
        if layer: a(f"s_lshl_b32 s{sT}, s{sL}, 2"); a(f"v_mov_b32 v{vT+19}, s{sT}")
        else: a(f"v_mov_b32 v{vT+19}, 0")
        a(f"ds_write_b32 v{vT+19}, v{vONE} offset:{addr_off}")

    XA, D1 = vS, vS + 12
    def part_pre(ldsbase):
        l = lab("p2")
        a(f"s_lshl_b32 s{sT}, s{sW}, 11")
        a(f"s_add_u32 s{sT}, s{sT}, {ldsbase}")
        a(f"v_add_u32 v{vT}, s{sT}, v{vTR}")
        for st in range(3):
            if st == 2:
                a(f"s_cmp_ge_u32 s{sW}, 2"); a(f"s_cbranch_scc1 {l}")
            for hf in range(2):
                for eh in range(2):
                    r = vW + 8*st + 4*hf + 2*eh
                    a(f"ds_read_b64_tr_b16 {v(r,2)}, v{vT} offset:{st*8192 + hf*1024 + eh*64}")
        a(f"{l}:")
        for r in range(4): a(f"v_mov_b32 v{D1+r}, 0")
        a(f"s_lshr_b32 s{sT}, s{sW}, 1"); a(f"s_lshl_b32 s{sT}, s{sT}, 8")
        a(f"s_and_b32 s{sT+1}, s{sW}, 1"); a(f"s_lshl_b32 s{sT+1}, s{sT+1}, 3")
        a(f"s_add_u32 s{sT}, s{sT}, s{sT+1}")
        a(f"v_lshl_add_u32 v{vT+2}, v{vLANE}, 4, s{sT}")
    def part_ones():
        for r in range(12): a(f"v_mov_b32 v{XA+r}, v{vONE}")
    def part_loads(base, flags):
        l = lab("x2")
        for st in range(3):
            if st == 2:
                a(f"s_cmp_ge_u32 s{sW}, 2"); a(f"s_cbranch_scc1 {l}")
            a(f"global_load_dwordx4 {v(XA+4*st,4)}, v{vT+1}, {p(base)} offset:{st*512} {flags}")
        a(f"{l}:")
    def part_mma():
        l = lab("m2")
        setexec(-1)
        for st in range(3):
            if st == 2:
                a(f"s_cmp_ge_u32 s{sW}, 2"); a(f"s_cbranch_scc1 {l}")
            a(f"v_smfmac_f32_16x16x64_bf16 {v(D1,4)}, {v(XA+4*st,4)}, {v(vW+8*st,8)}, v{vIA}")
        a(f"{l}:")
        setexec(0xffff)
        a(f"v_add_f32 v{D1+4}, v{D1}, v{D1+1}")
        a(f"v_add_f32 v{D1+5}, v{D1+2}, v{D1+3}")
        a(f"ds_write_b64 v{vT+2}, {v(D1+4,2)} offset:{L_PQ}")
        a(f"ds_write_b32 v{vT+3}, v{vONE} offset:{L_FP}")
        setexec(-1)
    def part_poll():
        l = lab("pp")
        setexec(0x0003000300030003)
        a(f"{l}:")
        part_loads(sWS, "sc1")
        budget()
        a("s_waitcnt vmcnt(0) lgkmcnt(0)")
        t = maxchain(vT+4, range(XA, XA+12))
        a(f"v_cmp_eq_u32 vcc, -1, v{t}")
        a(f"s_cbranch_vccnz {l}")

    FX = vS + 20
    def fin_loads(base, areg, flags):
        for t in range(5): a(f"global_load_dword v{FX+t}, v{areg}, {p(base)} offset:{t*256} {flags}")
    def fin_poll(areg):
        l = lab("fp")
        a(f"{l}:")
        fin_loads(sWS, areg, "sc1")
        budget()
        a("s_waitcnt vmcnt(0)")
        t = maxchain(vT+4, range(FX, FX+5))
        a(f"v_cmp_eq_u32 vcc, -1, v{t}")
        a(f"s_cbranch_vccnz {l}")
    def fin_body(freg):
        sq, sm, R = FX+5, FX+6, vS
        a(f"v_dot2_f32_bf16 v{sq}, v{FX}, v{FX}, 0")
        a(f"v_dot2_f32_bf16 v{sm}, v{FX}, v{vONE}, 0")
        for t in range(1, 5):
            a(f"v_dot2_f32_bf16 v{sq}, v{FX+t}, v{FX+t}, v{sq}")
            a(f"v_dot2_f32_bf16 v{sm}, v{FX+t}, v{vONE}, v{sm}")
        a(f"v_and_b32 v{vT+5}, 15, v{vLANE}")
        a(f"v_lshlrev_b32 v{vT+5}, 4, v{vT+5}")
        a(f"v_permlane32_swap_b32 v{sq}, v{sm}")
        a(f"v_add_f32 v{sq}, v{sq}, v{sm}")
        for s in (8, 4, 2, 1):
            a(f"v_add_f32_dpp v{sq}, v{sq}, v{sq} row_ror:{s} row_mask:0xf bank_mask:0xf")
        a(f"v_add_f32_dpp v{sq}, v{sq}, v{sq} row_bcast:15 row_mask:0xa bank_mask:0xf")
        a(f"v_mul_f32 v{sq}, {f2u(1/640):#x}, v{sq}")
        a(f"v_readlane_b32 s{sT+2}, v{sq}, 48")
        a(f"v_readlane_b32 s{sT+3}, v{sq}, 16")
        a(f"v_mov_b32 v{sm}, s{sT+2}")
        a(f"v_fma_f32 v{sm}, -v{sm}, v{sm}, s{sT+3}")
        a(f"v_max_f32 v{sm}, 0, v{sm}")
        a(f"v_add_f32 v{sm}, {f2u(1e-5):#x}, v{sm}")
        a(f"v_rsq_f32 v{sm}, v{sm}")
        l = lab("fs")
        a(f"{l}:")
        a(f"ds_read_b128 {v(R,4)}, v{freg} offset:{L_FP}")
        a(f"ds_read_b128 {v(R+4,4)}, v{vT+5} offset:{L_PQ}")
        a(f"ds_read_b128 {v(R+8,4)}, v{vT+5} offset:{L_PQ+256}")
        budget()
        a("s_waitcnt lgkmcnt(0)")
        t = maxchain(vT+4, range(R, R+4), "min")
        a(f"v_cmp_eq_u32 vcc, 0, v{t}")
        a(f"v_pk_add_f32 {v(R+4,2)}, {v(R+4,2)}, {v(R+6,2)}")
        a(f"v_pk_add_f32 {v(R+8,2)}, {v(R+8,2)}, {v(R+10,2)}")
        a(f"s_cbranch_vccnz {l}")
        a(f"v_pk_add_f32 {v(R+4,2)}, {v(R+4,2)}, {v(R+8,2)}")
        a(f"v_fma_f32 v{vT+6}, -s{sT+2}, v{R+5}, v{R+4}")
        a(f"v_mul_f32 v{vT+6}, v{vT+6}, v{sm}")
    def q_addr(dst, base):
        a(f"s_lshr_b32 s{sT}, s{sC}, 2"); a(f"s_lshl_b32 s{sT}, s{sT}, 7")
        a(f"s_and_b32 s{sT+1}, s{sC}, 1"); a(f"s_lshl_b32 s{sT+1}, s{sT+1}, 6")
        a(f"s_add_u32 s{sT}, s{sT}, s{sT+1}")
        a(f"s_and_b32 s{sT+1}, s{sC}, 2"); a(f"s_lshl_b32 s{sT+1}, s{sT+1}, 4")
        a(f"s_add_u32 s{sT}, s{sT}, s{sT+1}")
        a(f"s_lshl_b32 s{sT+1}, s{sHEAD}, 8")
        a(f"s_add_u32 s{sT}, s{sT}, s{sT+1}")
        a(f"s_add_u32 s{sT}, s{sT}, {base}")
        a(f"v_and_b32 v{dst}, 2, v{vLANE}")
        a(f"v_lshlrev_b32 v{dst}, 3, v{dst}")
        a(f"v_and_b32 v{vT+18}, 12, v{vLANE}")
        a(f"v_add3_u32 v{dst}, v{dst}, v{vT+18}, s{sT}")
    def pack_pairs(r):
        a(f"v_mov_b32_dpp v{vT+17}, v{r} quad_perm:[1,1,3,3] row_mask:0xf bank_mask:0xf")
        a(f"v_cvt_pk_bf16_f32 v{r}, v{r}, v{vT+17}")
        a(f"v_min_u32 v{r}, -2, v{r}")
    CSC = 1.4426950408889634 * (128 ** -0.5)

    def red(kodd):
        R = vS + 24
        a(f"s_lshl_b32 s{sT}, s{sL}, 4"); a(f"s_add_u32 s{sT}, s{sT}, {8*kodd}"); a(f"s_add_u32 s{sT}, s{sT}, s{sGX}")
        a(f"s_mul_i32 s{sT}, s{sT}, 20"); a(f"s_add_u32 s{sT}, s{sT}, s{sJ}"); a(f"s_lshl_b32 s{sT}, s{sT}, 10")
        a(f"v_lshrrev_b32 v{vT+8}, 5, v{vLANE}"); a(f"v_lshlrev_b32 v{vT+8}, 9, v{vT+8}")
        a(f"v_and_b32 v{vT+9}, 31, v{vLANE}")
        a(f"v_lshl_add_u32 v{vT+8}, v{vT+9}, 2, v{vT+8}")
        a(f"v_add_u32 v{vT+8}, s{sT}, v{vT+8}")
        a(f"s_lshl_b32 s{sT}, s{sL}, 1"); a(f"s_add_u32 s{sT}, s{sT}, {kodd}"); a(f"s_lshl_b32 s{sT}, s{sT}, 3"); a(f"s_add_u32 s{sT}, s{sT}, s{sGX}")
        a(f"s_mul_i32 s{sT}, s{sT}, 1280"); a(f"s_add_u32 s{sT}, s{sT}, {XB}")
        a(f"s_lshl_b32 s{sT+1}, s{sJ}, 6")
        a(f"v_lshl_add_u32 v{vT+10}, v{vT+9}, 1, s{sT+1}")
        a(f"v_add_u32 v{vT+9}, s{sT}, v{vT+10}")
        a(f"v_mov_b32 v{vT+11}, 0")
        if kodd: gate(L_G2, layer=True)
        if opt.get("red_delay", 0): a(f"s_sleep {opt['red_delay']}")
        l = lab("rp")
        a(f"{l}:")
        for t in range(4):
            if opt.get("red_atomic", True):
                a(f"global_atomic_add v{R+t}, v{vT+8}, v{vT+11}, {p(sWS)} offset:{t*128} sc0")
            else:
                a(f"global_load_dword v{R+t}, v{vT+8}, {p(sWS)} offset:{t*128} sc1")
        budget()
        a("s_waitcnt vmcnt(0)")
        t = maxchain(vT+4, range(R, R+4))
        a(f"v_cmp_eq_u32 vcc, -1, v{t}")
        a(f"v_pk_add_f32 {v(R,2)}, {v(R,2)}, {v(R+2,2)}")
        a(f"s_cbranch_vccnz {l}")
        a(f"v_add_f32 v{R}, v{R}, v{R+1}")
        a(f"v_mov_b32 v{R+1}, v{R}")
        a(f"v_permlane32_swap_b32 v{R}, v{R+1}")
        a(f"v_add_f32 v{R}, v{R}, v{R+1}")
        a(f"v_add_f32 v{R}, v{R}, v{vRES}")
        a(f"v_cvt_pk_bf16_f32 v{vRES}, v{R}, v{R}")
        pack_pairs(R)
        a(f"v_and_b32 v{vRES}, 0xffff0000, v{vRES}")
        setexec(0x55555555)
        return R

    a(f"s_cmp_ge_u32 s2, 256")
    a("s_cbranch_scc1 L_end")
    if instr:
        a(f"s_memrealtime s[60:61]")
        stamp(0)
    a("s_load_dwordx16 s[4:19], s[0:1], 0")
    a("s_load_dwordx8 s[20:27], s[0:1], 64")
    a(f"v_lshrrev_b32 v{vT}, 6, v0")
    a(f"v_and_b32 v{vLANE}, 63, v0")
    a(f"v_readfirstlane_b32 s{sWAVE}, v{vT}")
    a(f"v_mov_b32 v{vT+2}, 0"); a(f"v_mov_b32 v{vT+3}, 0")
    a(f"v_lshlrev_b32 v{vT+1}, 3, v{vLANE}")
    a(f"ds_write_b64 v{vT+1}, {v(vT+2,2)}")
    a(f"s_and_b32 s{sGX}, s2, 7"); a(f"s_lshr_b32 s{sJ}, s2, 3")
    a(f"s_and_b32 s{sW}, s{sWAVE}, 3")
    a(f"s_mov_b32 s{sL}, 0"); a(f"s_mov_b32 s{sBUD}, 200000"); a(f"s_mov_b32 s{sMODE}, 2")
    a(f"s_lshl_b32 s{sT}, s{sGX}, 5"); a(f"s_add_u32 s{sT}, s{sT}, s{sJ}")
    a(f"s_lshr_b32 s{sHEAD}, s{sT}, 3"); a(f"s_and_b32 s{sC}, s{sJ}, 7")
    a(f"s_lshl_b32 s{sT}, s{sT}, 17"); a(f"s_lshl_b32 s{sT+1}, s{sWAVE}, 14")
    a(f"s_add_u32 s{sT}, s{sT}, s{sT+1}"); a(f"s_add_u32 s{sT}, s{sT}, 4096")
    vG, vN = vT+4, vT+5
    vKA, vKB_, vVA, vVB_ = vT+12, vT+13, vT+14, vT+15
    a(f"v_lshrrev_b32 v{vG}, 4, v{vLANE}"); a(f"v_and_b32 v{vN}, 15, v{vLANE}")
    a(f"v_and_b32 v{vKA}, 7, v{vLANE}"); a(f"v_lshlrev_b32 v{vKA}, 8, v{vKA}")
    a(f"v_and_b32 v{vT}, 8, v{vLANE}"); a(f"v_lshl_add_u32 v{vKA}, v{vT}, 3, v{vKA}")
    a(f"v_lshl_add_u32 v{vKA}, v{vG}, 4, v{vKA}")
    a(f"v_add_u32 v{vKB_}, 8192, v{vKA}")
    a(f"v_lshlrev_b32 v{vVA}, 11, v{vG}"); a(f"v_lshl_add_u32 v{vVA}, v{vN}, 4, v{vVA}")
    a(f"v_add_u32 v{vVB_}, 8192, v{vVA}")
    a(f"v_and_b32 v{vT}, 1, v{vLANE}")
    a(f"v_mul_u32_u24 v{vIA}, 0xaaaa, v{vT}"); a(f"v_add_u32 v{vIA}, 0x4444, v{vIA}")
    a(f"v_mul_u32_u24 v{vIP}, 0x5555, v{vT}"); a(f"v_add_u32 v{vIP}, 0x8888, v{vIP}")
    a(f"v_lshlrev_b32 v{vXA}, 4, v{vT}"); a(f"v_lshl_add_u32 v{vXA}, v{vG}, 5, v{vXA}")
    for r in range(4): a(f"v_mov_b32 v{vONE+r}, 0x3f803f80")
    a(f"v_lshrrev_b32 v{vTR}, 5, v{vLANE}"); a(f"v_lshlrev_b32 v{vTR}, 4, v{vTR}")
    a(f"v_and_b32 v{vT}, 1, v{vG}"); a(f"v_lshl_add_u32 v{vTR}, v{vT}, 2, v{vTR}")
    a(f"v_bfe_u32 v{vT}, v{vLANE}, 2, 1"); a(f"v_add_u32 v{vTR}, v{vTR}, v{vT}")
    a(f"v_and_b32 v{vT}, 8, v{vLANE}"); a(f"v_add_u32 v{vTR}, v{vTR}, v{vT}")
    a(f"v_lshlrev_b32 v{vTR}, 5, v{vTR}")
    a(f"v_and_b32 v{vT}, 3, v{vLANE}"); a(f"v_lshl_add_u32 v{vTR}, v{vT}, 3, v{vTR}")
    a(f"v_mov_b32 v{vRES}, 0")
    if instr: a(f"v_mov_b32 v{vSTV}, 0")
    a(f"s_mov_b32 s{sPLO}, 0x05040100"); a(f"s_mov_b32 s{sPHI}, 0x07060302")
    a("s_waitcnt lgkmcnt(0)")
    a(f"s_add_u32 s{sKB}, s{sK}, s{sT}"); a(f"s_addc_u32 s{sKB+1}, s{sK+1}, 0")
    a(f"s_add_u32 s{sVB}, s{sV}, s{sT}"); a(f"s_addc_u32 s{sVB+1}, s{sV+1}, 0")
    a("s_barrier")
    a("s_setprio 2")
    a(f"s_cmp_lt_u32 s{sWAVE}, 4")
    a("s_cbranch_scc1 L_kv")

    a("s_setprio 3")
    q_addr(vT+7, QE0)
    a(f"s_cmp_lg_u32 s{sWAVE}, 7")
    a("s_cbranch_scc1 L_nomgr0")
    a(f"s_mul_i32 s{sT}, s2, 3072")
    a(f"v_lshl_add_u32 v{vT}, v{vLANE}, 4, s{sT}")
    for r in range(4): a(f"v_mov_b32 v{vDA+r}, -1")
    for t in range(3): a(f"global_store_dwordx4 v{vT}, {v(vDA,4)}, {p(sWS)} offset:{t*1024} sc1")
    setexec(0x5555)
    a(f"global_store_dword v{vT+7}, v{vDA}, {p(sWS)} sc1")
    setexec(-1)
    a(f"v_lshlrev_b32 v{vT}, 2, v{vLANE}")
    fin_loads(sX_, vT, "")
    a(f"s_min_u32 s{sT}, s{sJ}, 19"); a(f"s_lshl_b32 s{sT}, s{sT}, 6")
    a(f"v_and_b32 v{vT}, 31, v{vLANE}"); a(f"v_lshl_add_u32 v{vT}, v{vT}, 1, s{sT}")
    a(f"global_load_short_d16_hi v{vRES}, v{vT}, {p(sX_)}")
    a("L_nomgr0:")
    a(f"s_lshl_b32 s{sT}, s{sGX}, 10"); a(f"s_lshl_b32 s{sT+1}, s{sJ}, 5"); a(f"s_add_u32 s{sT}, s{sT}, s{sT+1}")
    a(f"s_lshl_b32 s{sT+1}, s{sW}, 19"); a(f"s_add_u32 s{sT}, s{sT}, s{sT+1}")
    a(f"v_lshrrev_b32 v{vT}, 1, v{vLANE}"); a(f"v_lshlrev_b32 v{vT}, 13, v{vT}")
    a(f"v_and_b32 v{vT+1}, 1, v{vLANE}"); a(f"v_lshl_add_u32 v{vT}, v{vT+1}, 4, v{vT}")
    a(f"v_add_u32 v{vT}, s{sT}, v{vT}")
    a(f"s_lshl_b32 s{sT}, s{sW}, 11"); a(f"s_add_u32 s{sT}, s{sT}, {L_WQ}")
    for st in range(3):
        if st == 2:
            a(f"s_cmp_ge_u32 s{sW}, 2"); a("s_cbranch_scc1 L_wq2")
        for h in range(2):
            a(f"s_add_u32 m0, s{sT}, {st*8192 + h*1024}")
            a(f"v_add_u32 v{vT+1}, {(st*256 + h*32)*8192}, v{vT}")
            a(f"global_load_lds_dwordx4 v{vT+1}, {p(sWQ)} nt")
    a("L_wq2:")
    part_ones()
    a(f"s_lshl_b32 s{sT}, s{sW}, 7")
    a(f"v_add_u32 v{vT+1}, s{sT}, v{vXA}")
    setexec(0x0003000300030003)
    part_loads(sX_, "")
    setexec(-1)
    a(f"s_lshl_b32 s{sT}, s{sW}, 2"); a(f"v_mov_b32 v{vT+3}, s{sT}")
    a("s_waitcnt vmcnt(0)")
    a(f"s_cmp_lg_u32 s{sWAVE}, 7")
    a("s_cbranch_scc1 L_nomgr1")
    a(f"s_getreg_b32 s{sT+4}, hwreg(HW_REG_XCC_ID, 0, 3)")
    a(f"s_lshl_b32 s{sT+4}, s{sT+4}, 3")
    a(f"s_lshl_b64 s[{sT+6}:{sT+7}], 1, s{sT+4}")
    a(f"v_mov_b32 v{vT+8}, s{sT+6}"); a(f"v_mov_b32 v{vT+9}, s{sT+7}")
    a(f"s_lshl_b32 s{sT}, s{sGX}, 5"); a(f"v_mov_b32 v{vT+10}, s{sT}")
    setexec(1)
    a(f"global_atomic_add_x2 v{vT+10}, {v(vT+8,2)}, {p(sDBG)}")
    setexec(-1)
    a("L_nomgr1:")
    part_pre(L_WQ)
    a("s_waitcnt lgkmcnt(0)")
    part_mma()
    a(f"s_cmp_lg_u32 s{sWAVE}, 7")
    a("s_cbranch_scc1 L_nomgr2")
    a(f"v_mov_b32 v{vT+3}, 0")
    fin_body(vT+3)
    a(f"v_mul_f32 v{vT+6}, {f2u(CSC):#x}, v{vT+6}")
    pack_pairs(vT+6)
    setexec(0x5555)
    a(f"global_store_dword v{vT+7}, v{vT+6}, {p(sWS)} sc1")
    stamp(1)
    setexec(0xff)
    a(f"v_lshlrev_b32 v{vT}, 5, v{vLANE}")
    a("L_bar:")
    a(f"global_load_dwordx2 {v(vT+8,2)}, v{vT}, {p(sDBG)} sc1")
    budget()
    a("s_waitcnt vmcnt(0)")
    a(f"v_sad_u8 v{vT+10}, v{vT+8}, 0, 0")
    a(f"v_sad_u8 v{vT+10}, v{vT+9}, 0, v{vT+10}")
    a(f"v_cmp_ne_u32 vcc, 32, v{vT+10}")
    a("s_cbranch_vccz L_bard")
    a("s_sleep 4")
    a("s_branch L_bar")
    a("L_bard:")
    stamp(2)
    a(f"v_readlane_b32 s{sT}, v{vT+8}, s{sGX}")
    a(f"v_readlane_b32 s{sT+1}, v{vT+9}, s{sGX}")
    a(f"s_lshl_b64 s[{sT+6}:{sT+7}], s[{sT+6}:{sT+7}], 5")
    a(f"s_cmp_eq_u64 s[{sT}:{sT+1}], s[{sT+6}:{sT+7}]")
    a(f"s_cselect_b32 s{sT}, {2 if opt.get('force_slow') else 1}, 2")
    setexec(-1)
    a(f"v_mov_b32 v{vT+9}, s{sT}")
    a(f"s_lshl_b32 s{sT}, s{sHEAD}, 8"); a(f"s_add_u32 s{sT}, s{sT}, {QE0}")
    a(f"v_lshlrev_b32 v{vT+1}, 2, v{vLANE}")
    a(f"v_add_u32 v{vT}, s{sT}, v{vT+1}")
    a("L_q0p:")
    a(f"global_load_dword v{vT+8}, v{vT}, {p(sWS)} sc1")
    budget()
    a("s_waitcnt vmcnt(0)")
    a(f"v_cmp_eq_u32 vcc, -1, v{vT+8}")
    a("s_cbranch_vccnz L_q0p")
    a(f"ds_write_b32 v{vT+1}, v{vT+8} offset:{L_QL}")
    a(f"ds_write_b32 v{vT+3}, v{vT+9} offset:{L_QF}")
    stamp(3)
    a("L_nomgr2:")
    a("s_setprio 1")
    def wo_dma():
        l = lab("nowo")
        a(f"s_cmp_ge_u32 s{sJ}, 20"); a(f"s_cbranch_scc1 {l}")
        a(f"s_lshl_b32 s{sT}, s{sGX}, 2"); a(f"s_add_u32 s{sT}, s{sT}, s{sW}"); a(f"s_mul_i32 s{sT}, s{sT}, {128*1280}")
        a(f"s_lshl_b32 s{sT+1}, s{sJ}, 6"); a(f"s_add_u32 s{sT}, s{sT}, s{sT+1}")
        a(f"v_lshrrev_b32 v{vT}, 2, v{vLANE}"); a(f"v_mul_u32_u24 v{vT}, 1280, v{vT}")
        a(f"v_and_b32 v{vT+1}, 3, v{vLANE}"); a(f"v_lshl_add_u32 v{vT}, v{vT+1}, 4, v{vT}")
        a(f"v_add_u32 v{vT}, s{sT}, v{vT}")
        a(f"s_lshl_b32 s{sT}, s{sW}, 13"); a(f"s_add_u32 s{sT}, s{sT}, {L_WO}")
        for t in range(8):
            a(f"s_add_u32 m0, s{sT}, {t*1024}")
            a(f"v_add_u32 v{vT+1}, {t*16*1280}, v{vT}")
            a(f"global_load_lds_dwordx4 v{vT+1}, {p(sWO)} nt")
        a(f"{l}:")
    wo_dma()

    a("L_kv:")
    for u in range(8):
        for hf in range(2):
            c = u*2048 + hf*128
            a(f"global_load_dwordx4 {v(vK+8*u+4*hf,4)}, v{vKA if c < 8192 else vKB_}, {p(sKB)} offset:{(c & 8191) - 4096} nt")
    for t in list(range(8, 16)) + list(range(8)):
        d = vV + 8*(t-8) if t >= 8 else vW + 4*t
        a(f"global_load_dwordx4 {v(d,4)}, v{vVB_ if t >= 8 else vVA}, {p(sVB)} offset:{(t&7)*256 - 4096} nt")
    stamp(4)
    for r in range(16): a(f"v_mov_b32 v{vAT+r}, 0")

    a("L_layer:")
    for r in range(8): a(f"v_mov_b32 v{vDA+r}, 0")
    for e in range(8): a(f"v_mov_b32 v{vS+4*e}, 0"); a(f"v_mov_b32 v{vS+4*e+1}, 0")
    a(f"v_lshrrev_b32 v{vT}, 4, v{vLANE}"); a(f"v_lshlrev_b32 v{vT}, 6, v{vT}")
    a(f"v_and_b32 v{vT+1}, 3, v{vLANE}"); a(f"v_lshl_add_u32 v{vT}, v{vT+1}, 4, v{vT}")
    a(f"s_lshl_b32 s{sT}, s{sWAVE}, 9"); a(f"v_lshl_add_u32 v{vT+2}, v{vLANE}, 5, s{sT}")
    a(f"s_lshl_b32 s{sT}, s{sWAVE}, 2"); a(f"s_lshl_b32 s{sT+1}, s{sL}, 6"); a(f"s_add_u32 s{sT}, s{sT}, s{sT+1}")
    a(f"s_add_u32 s{sT}, s{sT}, {L_STAT}"); a(f"v_mov_b32 v{vT+3}, s{sT}")
    a(f"s_cmp_lg_u32 s{sL}, 0")
    a("s_cbranch_scc1 L_q1")
    a(f"v_mov_b32 v{vT+1}, 0")
    a("L_q0s:")
    a(f"ds_read_b32 v{vT+4}, v{vT+1} offset:{L_QF}")
    a(f"ds_read_b128 {v(vQ,4)}, v{vT} offset:{L_QL}")
    budget()
    a("s_waitcnt lgkmcnt(0)")
    a(f"v_readfirstlane_b32 s{sMODE}, v{vT+4}")
    a(f"s_cmp_lg_u32 s{sMODE}, 0")
    a("s_cbranch_scc1 L_q0d")
    a("s_sleep 4")
    a("s_branch L_q0s")
    a("L_q0d:")
    a("s_waitcnt vmcnt(16)")
    a("s_branch L_qk")
    a("L_q1:")
    a(f"s_lshl_b32 s{sT}, s{sHEAD}, 8"); a(f"s_add_u32 s{sT}, s{sT}, {QE1}")
    a(f"v_add_u32 v{vT}, s{sT}, v{vT}")
    gate(L_G4)
    a("L_q1p:")
    a(f"global_load_dwordx4 {v(vQ,4)}, v{vT}, {p(sWS)} sc1")
    budget()
    a("s_waitcnt vmcnt(0)")
    t = maxchain(vT+4, range(vQ, vQ+4))
    a(f"v_cmp_eq_u32 vcc, -1, v{t}")
    a("s_cbranch_vccnz L_q1p")
    a("L_qk:")
    stamp(5)
    def mov4(T):
        for m in range(4):
            a(f"v_mov_b32_dpp v{vAT+4*T+m}, v{vQ+m} quad_perm:[0,1,2,3] row_mask:0xf bank_mask:{1<<T:#x}")
    mov4(0)
    for T in range(4):
        if T < 3:
            for m in range(2): a(f"v_mov_b32_dpp v{vAT+4*(T+1)+m}, v{vQ+m} quad_perm:[0,1,2,3] row_mask:0xf bank_mask:{2<<T:#x}")
        a(f"v_smfmac_f32_16x16x64_bf16 {v(vDA,4)}, {v(vAT+4*T,4)}, {v(vK+16*T,8)}, v{vIA}")
        if T < 3:
            for m in range(2, 4): a(f"v_mov_b32_dpp v{vAT+4*(T+1)+m}, v{vQ+m} quad_perm:[0,1,2,3] row_mask:0xf bank_mask:{2<<T:#x}")
        a(f"v_smfmac_f32_16x16x64_bf16 {v(vDB,4)}, {v(vAT+4*T,4)}, {v(vK+16*T+8,8)}, v{vIA}")
    own, oth, mx = vT+4, vT+5, vT+6
    idq = "quad_perm:[0,1,2,3] row_mask:0xf"
    a(f"v_add_f32_dpp v{own}, v{vDA}, v{vDA+1} {idq} bank_mask:0x3")
    a(f"v_add_f32_dpp v{oth}, v{vDA+2}, v{vDA+3} {idq} bank_mask:0xc")
    a(f"v_add_f32_dpp v{oth}, v{vDB}, v{vDB+1} {idq} bank_mask:0x3")
    a(f"v_add_f32_dpp v{own}, v{vDB+2}, v{vDB+3} {idq} bank_mask:0xc")
    a(f"v_add_f32_dpp v{own}, v{oth}, v{own} row_ror:8 row_mask:0xf bank_mask:0xf")
    a(f"v_max_f32_dpp v{mx}, v{own}, v{own} row_ror:8 row_mask:0xf bank_mask:0xf")
    for s in (4, 2, 1): a(f"v_max_f32_dpp v{mx}, v{mx}, v{mx} row_ror:{s} row_mask:0xf bank_mask:0xf")
    a(f"v_max_f32_dpp v{mx}, v{mx}, v{mx} row_bcast:15 row_mask:0xa bank_mask:0xf")
    a(f"v_max_f32_dpp v{mx}, v{mx}, v{mx} row_bcast:31 row_mask:0xc bank_mask:0xf")
    a(f"v_readlane_b32 s{sM}, v{mx}, 63")
    a(f"v_subrev_f32 v{own}, s{sM}, v{own}")
    a(f"v_exp_f32 v{own}, v{own}")
    a(f"v_mov_b32 v{mx}, s{sM}")
    a(f"v_mov_b32_dpp v{oth}, v{own} row_shl:2 row_mask:0xf bank_mask:0xf bound_ctrl:0")
    a(f"v_cvt_pk_bf16_f32 v{vQ}, v{own}, v{oth}")
    for m in range(1, 4):
        a(f"v_mov_b32_dpp v{vQ+m}, v{vQ} row_shl:{4*m} row_mask:0xf bank_mask:0xf bound_ctrl:0")
    a(f"s_cmp_lg_u32 s{sL}, 0")
    a("s_cbranch_scc1 L_pv")
    stamp(6)
    for grp in (1, 0):
        for tp in range(4):
            a(f"s_waitcnt vmcnt({(14 if grp else 6) - 2*tp})")
            for e in range(8):
                if grp: s1, s0 = vV + 8*(2*tp) + (e >> 1), vV + 8*(2*tp+1) + (e >> 1)
                else:   s1, s0 = vW + 4*(2*tp) + (e >> 1), vW + 4*(2*tp+1) + (e >> 1)
                a(f"v_perm_b32 v{vV + 8*e + 4*grp + tp}, v{s0}, v{s1}, s{sPHI if e & 1 else sPLO}")
    a("L_pv:")
    stamp(7)
    a(f"v_mfma_f32_16x16x32_bf16 {v(vS+32,4)}, {v(vQ,4)}, {v(vONE,4)}, 0")
    for e in range(8):
        a(f"v_smfmac_f32_16x16x64_bf16 {v(vS+4*e,4)}, {v(vQ,4)}, {v(vV+8*e,8)}, v{vIP}")
    setexec(0xffff)
    a(f"v_add_f32 v{mx+1}, v{vS+32}, v{vS+33}")
    for e in range(8):
        a(f"v_add_f32 v{vDA+e}, v{vS+4*e}, v{vS+4*e+1}")
        if e == 3: a(f"ds_write_b128 v{vT+2}, {v(vDA,4)} offset:{L_OP}")
    a(f"ds_write_b128 v{vT+2}, {v(vDB,4)} offset:{L_OP+16}")
    a(f"ds_write2_b32 v{vT+3}, v{mx}, v{mx+1} offset1:8")
    setexec(-1)
    stamp(8)
    a(f"s_cmp_lt_u32 s{sWAVE}, 4")
    a("s_cbranch_scc1 L_early")

    COMB = 5
    a(f"s_cmp_lg_u32 s{sWAVE}, {COMB}")
    a("s_cbranch_scc1 L_nocomb")
    R = vS
    a(f"s_lshl_b32 s{sT}, s{sL}, 6"); a(f"s_add_u32 s{sT}, s{sT}, {L_STAT}")
    a(f"v_and_b32 v{vT+1}, 7, v{vLANE}"); a(f"v_lshl_add_u32 v{vT}, v{vT+1}, 2, s{sT}")
    a(f"v_lshlrev_b32 v{vT+2}, 3, v{vLANE}")
    a("L_cs:")
    a(f"ds_read2_b32 {v(R+16,2)}, v{vT} offset1:8")
    for w in range(8): a(f"ds_read_b64 {v(R+2*w,2)}, v{vT+2} offset:{L_OP + 512*w}")
    budget()
    a(f"s_lshl_b32 s{sT}, s{sL}, 16"); a(f"s_lshl_b32 s{sT+1}, s{sHEAD}, 11"); a(f"s_add_u32 s{sT}, s{sT}, s{sT+1}")
    a(f"s_lshr_b32 s{sT+1}, s{sC}, 1"); a(f"s_lshl_b32 s{sT+1}, s{sT+1}, 8"); a(f"s_add_u32 s{sT}, s{sT}, s{sT+1}")
    a(f"s_and_b32 s{sT+1}, s{sC}, 1"); a(f"s_lshl_b32 s{sT+1}, s{sT+1}, 5"); a(f"s_add_u32 s{sT}, s{sT}, s{sT+1}")
    a(f"s_add_u32 s{sT}, s{sT}, {OA}")
    a(f"v_lshl_add_u32 v{vT+3}, v{vT+1}, 2, s{sT}")
    a(f"v_bfe_u32 v{vT+4}, v{vLANE}, 3, 2"); a(f"v_lshl_add_u32 v{vT+3}, v{vT+4}, 6, v{vT+3}")
    a(f"v_lshrrev_b32 v{vT+4}, 5, v{vLANE}"); a(f"v_lshl_add_u32 v{vT+3}, v{vT+4}, 10, v{vT+3}")
    a(f"s_lshl_b32 s{sT}, s{sL}, 12"); a(f"s_lshl_b32 s{sT+1}, s{sHEAD}, 7"); a(f"s_add_u32 s{sT}, s{sT}, s{sT+1}")
    a(f"s_lshl_b32 s{sT+1}, s{sC}, 2"); a(f"s_add_u32 s{sT}, s{sT}, s{sT+1}"); a(f"s_add_u32 s{sT}, s{sT}, {ST}")
    a(f"v_lshl_add_u32 v{vT+5}, v{vT+4}, 5, s{sT}")
    a("s_waitcnt lgkmcnt(0)")
    a(f"v_cmp_eq_u32 vcc, 0, v{R+17}")
    a("s_cbranch_vccnz L_cs")
    def red8(op, dst, src):
        a(f"v_{op}_f32_dpp v{dst}, v{src}, v{src} quad_perm:[1,0,3,2] row_mask:0xf bank_mask:0xf")
        a(f"v_{op}_f32_dpp v{dst}, v{dst}, v{dst} quad_perm:[2,3,0,1] row_mask:0xf bank_mask:0xf")
        a(f"v_{op}_f32_dpp v{dst}, v{dst}, v{dst} row_half_mirror row_mask:0xf bank_mask:0xf")
    red8("max", R+18, R+16)
    a(f"v_sub_f32 v{R+16}, v{R+16}, v{R+18}")
    a(f"v_exp_f32 v{R+16}, v{R+16}")
    a(f"v_mul_f32 v{R+17}, v{R+16}, v{R+17}")
    a(f"v_mul_f32_dpp v{R}, v{R+16}, v{R} row_newbcast:0 row_mask:0xf bank_mask:0xf")
    a(f"v_mul_f32_dpp v{R+1}, v{R+16}, v{R+1} row_newbcast:0 row_mask:0xf bank_mask:0xf")
    a(f"v_mul_f32_dpp v{R+2}, v{R+16}, v{R+2} row_newbcast:1 row_mask:0xf bank_mask:0xf")
    a(f"v_mul_f32_dpp v{R+3}, v{R+16}, v{R+3} row_newbcast:1 row_mask:0xf bank_mask:0xf")
    lsteps = ["quad_perm:[1,0,3,2]", "quad_perm:[2,3,0,1]", "row_half_mirror"]
    for w in range(2, 8):
        o = 2*(w & 1)
        a(f"v_fmac_f32_dpp v{R+o}, v{R+16}, v{R+2*w} row_newbcast:{w} row_mask:0xf bank_mask:0xf")
        a(f"v_fmac_f32_dpp v{R+o+1}, v{R+16}, v{R+2*w+1} row_newbcast:{w} row_mask:0xf bank_mask:0xf")
    a(f"v_pk_add_f32 {v(R,2)}, {v(R,2)}, {v(R+2,2)}")
    a(f"v_add_f32_dpp v{R+17}, v{R+17}, v{R+17} {lsteps[0]} row_mask:0xf bank_mask:0xf")
    a(f"v_cvt_pk_bf16_f32 v{R}, v{R}, v{R+1}")
    a(f"v_min_u32 v{R}, -2, v{R}")
    a(f"v_add_f32_dpp v{R+17}, v{R+17}, v{R+17} {lsteps[1]} row_mask:0xf bank_mask:0xf")
    istore([f"global_store_dword v{vT+3}, v{R}, {p(sWS)}"])
    a(f"v_add_f32_dpp v{R+18}, v{R+17}, v{R+17} {lsteps[2]} row_mask:0xc bank_mask:0xf")
    setexec(0x0000000100000001)
    istore([f"global_store_dword v{vT+5}, v{R+18}, {p(sWS)}"])
    setexec(-1)
    stamp(9)
    a("L_nocomb:")

    a(f"s_cmp_ge_u32 s{sJ}, 20")
    a("s_cbranch_scc1 L_nowo")
    A0, D0, SM = vS, vS + 8, vS + 16
    a(f"v_and_b32 v{vT+1}, 3, v{vLANE}")
    a(f"v_lshlrev_b32 v{vT+2}, 3, v{vT+1}")
    a(f"v_lshlrev_b32 v{vT}, 1, v{vTR}"); a(f"v_sub_u32 v{vT}, v{vT}, v{vT+2}")
    a(f"s_lshl_b32 s{sT}, s{sW}, 13"); a(f"s_add_u32 s{sT}, s{sT}, {L_WO}")
    a(f"v_add_u32 v{vT}, s{sT}, v{vT}")
    for half in range(2):
        for tile in range(2):
            for hf in range(2):
                for eh in range(2):
                    r = vW + 16*half + 8*tile + 4*hf + 2*eh
                    a(f"ds_read_b64_tr_b16 {v(r,2)}, v{vT} offset:{half*4096 + hf*2048 + eh*128 + tile*32}")
    for r in range(8): a(f"v_mov_b32 v{D0+r}, 0")
    a(f"s_lshl_b32 s{sT+2}, s{sGX}, 2"); a(f"s_add_u32 s{sT+2}, s{sT+2}, s{sW}")
    a(f"s_lshl_b32 s{sT}, s{sL}, 16"); a(f"s_lshl_b32 s{sT+1}, s{sT+2}, 11"); a(f"s_add_u32 s{sT}, s{sT}, s{sT+1}"); a(f"s_add_u32 s{sT}, s{sT}, {OA}")
    a(f"v_lshl_add_u32 v{vT+1}, v{vT+1}, 4, s{sT}")
    a(f"v_lshrrev_b32 v{vT+2}, 4, v{vLANE}"); a(f"v_lshl_add_u32 v{vT+1}, v{vT+2}, 6, v{vT+1}")
    a(f"v_bfe_u32 v{vT+3}, v{vLANE}, 2, 2"); a(f"v_lshl_add_u32 v{vT+1}, v{vT+3}, 8, v{vT+1}")
    a(f"s_lshl_b32 s{sT}, s{sL}, 12"); a(f"s_lshl_b32 s{sT+1}, s{sT+2}, 7"); a(f"s_add_u32 s{sT}, s{sT}, s{sT+1}"); a(f"s_add_u32 s{sT}, s{sT}, {ST}")
    a(f"v_lshl_add_u32 v{vT+3}, v{vT+2}, 1, v{vLANE}"); a(f"v_and_b32 v{vT+3}, 7, v{vT+3}")
    a(f"v_lshl_add_u32 v{vT+3}, v{vT+3}, 2, s{sT}")
    a(f"v_and_b32 v{vT+5}, 1, v{vT+2}"); a(f"v_lshlrev_b32 v{vT+5}, 9, v{vT+5}")
    a(f"v_lshrrev_b32 v{vT+6}, 5, v{vLANE}"); a(f"v_lshl_add_u32 v{vT+5}, v{vT+6}, 8, v{vT+5}")
    a(f"v_and_b32 v{vT+7}, 15, v{vLANE}"); a(f"v_lshl_add_u32 v{vT+5}, v{vT+7}, 4, v{vT+5}")
    a(f"s_lshl_b32 s{sT}, s{sW}, 2"); a(f"v_add_u32 v{vT+5}, s{sT}, v{vT+5}")
    a(f"s_lshl_b32 s{sT+1}, s{sL}, 4"); a(f"v_mov_b32 v{vT+8}, s{sT+1}"); a(f"v_add_u32 v{vT+9}, s{sT}, v{vT+8}")
    a(f"v_and_b32 v{vT+7}, 31, v{vLANE}"); a(f"v_lshlrev_b32 v{vT+10}, 4, v{vT+7}")
    a(f"s_lshl_b32 s{sT}, s{sL}, 4"); a(f"s_lshl_b32 s{sT+1}, s{sW}, 1"); a(f"s_add_u32 s{sT}, s{sT}, s{sT+1}")
    a(f"s_mul_i32 s{sT}, s{sT}, 20"); a(f"s_add_u32 s{sT}, s{sT}, s{sJ}"); a(f"s_lshl_b32 s{sT}, s{sT}, 10")
    a(f"s_lshl_b32 s{sT+1}, s{sGX}, 7"); a(f"s_add_u32 s{sT}, s{sT}, s{sT+1}")
    a(f"v_mul_u32_u24 v{vT+6}, 20480, v{vT+6}"); a(f"v_lshl_add_u32 v{vT+6}, v{vT+7}, 2, v{vT+6}"); a(f"v_add_u32 v{vT+6}, s{sT}, v{vT+6}")
    a("L_wop:")
    a(f"global_load_dword v{SM}, v{vT+3}, {p(sWS)} sc1")
    a(f"global_load_dword v{SM+1}, v{vT+3}, {p(sWS)} offset:32 sc1")
    a(f"global_load_dwordx4 {v(A0,4)}, v{vT+1}, {p(sWS)} sc1")
    a(f"global_load_dwordx4 {v(A0+4,4)}, v{vT+1}, {p(sWS)} offset:1024 sc1")
    budget()
    a("s_waitcnt vmcnt(0) lgkmcnt(0)")
    t = maxchain(vT+4, list(range(A0, A0+8)) + [SM, SM+1])
    a(f"v_cmp_eq_u32 vcc, -1, v{t}")
    a("s_cbranch_vccnz L_wop")
    stamp(10)
    mm = [f"v_smfmac_f32_16x16x64_bf16 {v(D0+4*tile,4)}, {v(A0+4*half,4)}, {v(vW+16*half+8*tile,8)}, v{vIA}" for half in range(2) for tile in range(2)]
    a(mm[0])
    a(f"v_max_f32_dpp v{SM+2}, v{SM}, v{SM} quad_perm:[1,0,3,2] row_mask:0xf bank_mask:0xf")
    a(mm[1])
    a(f"v_max_f32_dpp v{SM+2}, v{SM+2}, v{SM+2} quad_perm:[2,3,0,1] row_mask:0xf bank_mask:0xf")
    a(mm[2])
    a(f"v_max_f32_dpp v{SM+2}, v{SM+2}, v{SM+2} row_half_mirror row_mask:0xf bank_mask:0xf")
    a(mm[3])
    a(f"v_sub_f32 v{SM}, v{SM}, v{SM+2}")
    a(f"v_exp_f32 v{SM}, v{SM}")
    a(f"v_mul_f32 v{SM+1}, v{SM}, v{SM+1}")
    red8("add", SM+1, SM+1)
    a(f"v_rcp_f32 v{SM+1}, v{SM+1}")
    a(f"v_add_f32 v{D0}, v{D0}, v{D0+1}"); a(f"v_add_f32 v{D0+2}, v{D0+2}, v{D0+3}")
    a(f"v_add_f32 v{D0+4}, v{D0+4}, v{D0+5}"); a(f"v_add_f32 v{D0+6}, v{D0+6}, v{D0+7}")
    a(f"v_mul_f32_dpp v{D0}, v{SM}, v{D0} row_newbcast:0 row_mask:0xf bank_mask:0xf")
    a(f"v_mul_f32_dpp v{D0+4}, v{SM}, v{D0+4} row_newbcast:0 row_mask:0xf bank_mask:0xf")
    a(f"v_fmac_f32_dpp v{D0}, v{SM}, v{D0+2} row_newbcast:1 row_mask:0xf bank_mask:0xf")
    a(f"v_fmac_f32_dpp v{D0+4}, v{SM}, v{D0+6} row_newbcast:1 row_mask:0xf bank_mask:0xf")
    a(f"v_permlane32_swap_b32 v{D0}, v{D0+4}")
    a(f"v_add_f32 v{D0}, v{D0}, v{D0+4}")
    a(f"v_mul_f32 v{D0}, v{D0}, v{SM+1}")
    a(f"ds_write_b32 v{vT+5}, v{D0} offset:{L_PW}")
    a(f"ds_write_b32 v{vT+9}, v{vONE} offset:{L_FW}")
    R = vS + 20
    a("L_wos:")
    a(f"ds_read_b128 {v(R,4)}, v{vT+8} offset:{L_FW}")
    a(f"ds_read_b128 {v(R+4,4)}, v{vT+10} offset:{L_PW}")
    a(f"ds_read_b128 {v(R+8,4)}, v{vT+10} offset:{L_PW+512}")
    budget()
    a("s_waitcnt lgkmcnt(0)")
    t = maxchain(vT+4, range(R, R+4), "min")
    a(f"v_cmp_eq_u32 vcc, 0, v{t}")
    a(f"v_pk_add_f32 {v(R+4,2)}, {v(R+4,2)}, {v(R+6,2)}")
    a(f"v_pk_add_f32 {v(R+8,2)}, {v(R+8,2)}, {v(R+10,2)}")
    a("s_cbranch_vccnz L_wos")
    a(f"v_pk_add_f32 {v(R+4,2)}, {v(R+4,2)}, {v(R+8,2)}")
    a(f"v_add_f32 v{R+4}, v{R+4}, v{R+5}")
    a(f"global_store_dword v{vT+6}, v{R+4}, {p(sWS)} sc1")
    stamp(11)
    a(f"s_cmp_lg_u32 s{sWAVE}, 7")
    a("s_cbranch_scc1 L_nowo")
    R = red(0)
    istore([f"global_store_dword v{vT+9}, v{R}, {p(sWS)}"])
    setexec(-1)
    setflag(L_G1, layer=True)
    stamp(12)
    a("L_nowo:")
    a(f"s_cmp_lg_u32 s{sWAVE}, 4")
    a("s_cbranch_scc1 L_nofin")
    a(f"s_cmp_lt_u32 s{sJ}, 5")
    a("s_cbranch_scc1 L_nofin")
    a(f"s_lshl_b32 s{sT}, s{sL}, 4"); a(f"s_add_u32 s{sT}, s{sT}, s{sGX}"); a(f"s_mul_i32 s{sT}, s{sT}, 1280"); a(f"s_add_u32 s{sT}, s{sT}, {XB}")
    a(f"v_lshl_add_u32 v{vT}, v{vLANE}, 2, s{sT}")
    a(f"s_lshl_b32 s{sT}, s{sL}, 5"); a(f"s_add_u32 s{sT}, s{sT}, 16"); a(f"v_mov_b32 v{vT+3}, s{sT}")
    a(f"s_lshl_b32 s{sT}, s{sL}, 12"); a(f"s_lshl_b32 s{sT+1}, s{sGX}, 9"); a(f"s_add_u32 s{sT}, s{sT}, s{sT+1}")
    a(f"s_lshl_b32 s{sT+1}, s{sJ}, 4"); a(f"s_add_u32 s{sT}, s{sT}, s{sT+1}"); a(f"s_add_u32 s{sT}, s{sT}, {HC - 80}")
    a(f"v_lshl_add_u32 v{vT+7}, v{vLANE}, 1, s{sT}")
    fin_poll(vT)
    fin_body(vT+3)
    gt = vT+6
    a(f"v_mul_f32 v{vT+8}, {f2u(-1.4426950408889634):#x}, v{gt}")
    a(f"v_exp_f32 v{vT+8}, v{vT+8}")
    a(f"v_mul_f32_dpp v{gt}, v{gt}, v{gt} row_ror:8 row_mask:0xf bank_mask:0xf")
    a(f"v_add_f32 v{vT+8}, 1.0, v{vT+8}")
    a(f"v_rcp_f32 v{vT+8}, v{vT+8}")
    a(f"v_mul_f32 v{gt}, v{gt}, v{vT+8}")
    pack_pairs(gt)
    setexec(0x55)
    istore([f"global_store_dword v{vT+7}, v{gt}, {p(sWS)}"])
    setexec(-1)
    stamp(13)
    a(f"s_cmp_lt_u32 s{sJ}, 20")
    a("s_cbranch_scc1 L_nofin")
    setflag(L_G3)
    a("L_nofin:")
    a(f"s_cmp_lg_u32 s{sL}, 0")
    a("s_cbranch_scc1 L_last")
    part_pre(L_WQ)
    part_ones()
    a(f"s_add_u32 s{sT}, s{sGX}, 8"); a(f"s_mul_i32 s{sT}, s{sT}, 1280"); a(f"s_add_u32 s{sT}, s{sT}, {XB}")
    a(f"s_lshl_b32 s{sT+1}, s{sW}, 7"); a(f"s_add_u32 s{sT}, s{sT}, s{sT+1}")
    a(f"v_add_u32 v{vT+1}, s{sT}, v{vXA}")
    a(f"s_lshl_b32 s{sT}, s{sW}, 2"); a(f"s_add_u32 s{sT}, s{sT}, 32"); a(f"v_mov_b32 v{vT+3}, s{sT}")
    a("s_branch L_red1")
    a("L_last:")
    a(f"s_cmp_lg_u32 s{sGX}, 0")
    a("s_cbranch_scc1 L_exit")
    a("L_red1:")
    a(f"s_cmp_lg_u32 s{sWAVE}, 7")
    a("s_cbranch_scc1 L_nored1")
    a(f"s_cmp_ge_u32 s{sJ}, 20")
    a("s_cbranch_scc1 L_nored1")
    R = red(1)
    a(f"s_cmp_lg_u32 s{sL}, 0")
    a("s_cbranch_scc1 L_final")
    istore([f"global_store_dword v{vT+9}, v{R}, {p(sWS)}"])
    setexec(-1)
    setflag(L_G3)
    stamp(14)
    a("L_nored1:")
    a(f"s_cmp_lg_u32 s{sL}, 0")
    a("s_cbranch_scc1 L_exit")
    gate(L_G3)
    part_poll()
    part_mma()
    a("s_branch L_next")
    a("L_final:")
    a(f"global_store_dword v{vT+10}, v{R}, {p(sOUT)}")
    setexec(-1)
    stamp(14)
    a("s_branch L_exit")

    a("L_early:")
    a(f"s_cmp_lg_u32 s{sL}, 0")
    a("s_cbranch_scc1 L_nodma")
    a("s_setprio 0")
    a(f"s_cmp_lt_u32 s{sJ}, 5")
    a("s_cbranch_scc1 L_now13")
    a(f"s_mul_i32 s{sT}, s{sGX}, 432"); a(f"s_lshl_b32 s{sT+1}, s{sJ}, 4"); a(f"s_add_u32 s{sT}, s{sT}, s{sT+1}"); a(f"s_sub_u32 s{sT}, s{sT}, 80")
    a(f"s_mul_i32 s{sT+1}, s{sW}, {64*3456}"); a(f"s_add_u32 s{sT}, s{sT}, s{sT+1}")
    a(f"v_lshrrev_b32 v{vT}, 1, v{vLANE}"); a(f"v_mul_u32_u24 v{vT}, 3456, v{vT}"); a(f"v_add_u32 v{vT}, s{sT}, v{vT}")
    a(f"v_mov_b32 v{vT+2}, s{sW1}"); a(f"v_mov_b32 v{vT+3}, s{sW1+1}")
    setexec(0xaaaaaaaaaaaaaaaa)
    a(f"v_mov_b32 v{vT+2}, s{sW3}"); a(f"v_mov_b32 v{vT+3}, s{sW3+1}")
    setexec(-1)
    a(f"s_lshl_b32 s{sT}, s{sW}, 11"); a(f"s_add_u32 s{sT}, s{sT}, {L_W13}")
    for st in range(3):
        if st == 2:
            a(f"s_cmp_ge_u32 s{sW}, 2"); a("s_cbranch_scc1 L_now13")
        for h in range(2):
            a(f"s_add_u32 m0, s{sT}, {st*8192 + h*1024}")
            a(f"v_add_u32 v{vT+1}, {(st*256 + h*32)*3456}, v{vT}")
            a(f"v_add_co_u32 v{vT+4}, vcc, v{vT+2}, v{vT+1}")
            a(f"v_addc_co_u32 v{vT+5}, vcc, 0, v{vT+3}, vcc")
            a(f"global_load_lds_dwordx4 {v(vT+4,2)}, off nt")
    a("L_now13:")
    a(f"s_cmp_lt_u32 s{sW}, 2")
    a("s_cbranch_scc1 L_now2")
    a(f"s_cmp_ge_u32 s{sJ}, 20")
    a("s_cbranch_scc1 L_now2")
    a(f"s_mul_i32 s{sT}, s{sGX}, {216*1280}"); a(f"s_lshl_b32 s{sT+1}, s{sJ}, 6"); a(f"s_add_u32 s{sT}, s{sT}, s{sT+1}")
    a(f"s_and_b32 s{sT+2}, s{sW}, 1"); a(f"s_lshl_b32 s{sT+1}, s{sT+2}, 5"); a(f"s_add_u32 s{sT}, s{sT}, s{sT+1}")
    a(f"v_lshrrev_b32 v{vT}, 1, v{vLANE}"); a(f"v_mul_u32_u24 v{vT}, 1280, v{vT}")
    a(f"v_and_b32 v{vT+1}, 1, v{vLANE}"); a(f"v_lshl_add_u32 v{vT}, v{vT+1}, 4, v{vT}"); a(f"v_add_u32 v{vT}, s{sT}, v{vT}")
    a(f"s_lshl_b32 s{sT}, s{sT+2}, 13"); a(f"s_add_u32 s{sT}, s{sT}, {L_W2}")
    for t in range(7):
        a(f"s_add_u32 m0, s{sT}, {t*1024}")
        a(f"v_add_u32 v{vT+1}, {t*32*1280}, v{vT}")
        if t == 6: setexec((1 << 48) - 1)
        a(f"global_load_lds_dwordx4 v{vT+1}, {p(sW2)} nt")
    setexec(-1)
    for r in range(4): a(f"v_mov_b32 v{vDA+r}, 0")
    a(f"v_lshl_add_u32 v{vT}, v{vLANE}, 4, s{sT}")
    a(f"ds_write_b128 v{vT}, {v(vDA,4)} offset:{7*1024}")
    setexec(0xffff)
    a(f"ds_write_b128 v{vT}, {v(vDA,4)} offset:{216*32}")
    setexec(-1)
    a("L_now2:")
    a("s_waitcnt vmcnt(0)")
    a("s_setprio 2")
    stamp(9)
    a("L_nodma:")
    a(f"s_cmp_lt_u32 s{sJ}, 5")
    a("s_cbranch_scc1 L_noffn1")
    part_pre(L_W13)
    part_ones()
    a(f"s_lshl_b32 s{sT}, s{sL}, 4"); a(f"s_add_u32 s{sT}, s{sT}, s{sGX}"); a(f"s_mul_i32 s{sT}, s{sT}, 1280"); a(f"s_add_u32 s{sT}, s{sT}, {XB}")
    a(f"s_lshl_b32 s{sT+1}, s{sW}, 7"); a(f"s_add_u32 s{sT}, s{sT}, s{sT+1}")
    a(f"v_add_u32 v{vT+1}, s{sT}, v{vXA}")
    a(f"s_lshl_b32 s{sT}, s{sW}, 2"); a(f"s_lshl_b32 s{sT+1}, s{sL}, 5"); a(f"s_add_u32 s{sT}, s{sT}, s{sT+1}"); a(f"s_add_u32 s{sT}, s{sT}, 16")
    a(f"v_mov_b32 v{vT+3}, s{sT}")
    a(f"s_cmp_ge_u32 s{sJ}, 20")
    a("s_cbranch_scc1 L_nog1")
    gate(L_G1, layer=True)
    a("L_nog1:")
    part_poll()
    stamp(10)
    part_mma()
    stamp(11)
    a("L_noffn1:")
    a(f"s_cmp_lt_u32 s{sW}, 2")
    a("s_cbranch_scc1 L_noffn2")
    a(f"s_cmp_ge_u32 s{sJ}, 20")
    a("s_cbranch_scc1 L_noffn2")
    H, D2 = vS, vS + 20
    a(f"s_and_b32 s{sT+2}, s{sW}, 1")
    a(f"s_lshl_b32 s{sT}, s{sT+2}, 13"); a(f"s_add_u32 s{sT}, s{sT}, {L_W2}")
    a(f"v_add_u32 v{vT}, s{sT}, v{vTR}")
    for st in range(4):
        for hf in range(2):
            for eh in range(2):
                a(f"ds_read_b64_tr_b16 {v(vW + 8*st + 4*hf + 2*eh,2)}, v{vT} offset:{st*2048 + hf*1024 + eh*64}")
    for r in range(4): a(f"v_mov_b32 v{D2+r}, 0"); a(f"v_mov_b32 v{H+12+r}, 0")
    a(f"s_lshl_b32 s{sT}, s{sL}, 12"); a(f"s_lshl_b32 s{sT+1}, s{sGX}, 9"); a(f"s_add_u32 s{sT}, s{sT}, s{sT+1}"); a(f"s_add_u32 s{sT}, s{sT}, {HC}")
    a(f"v_add_u32 v{vT+1}, s{sT}, v{vXA}")
    a(f"s_lshl_b32 s{sT}, s{sL}, 4"); a(f"s_add_u32 s{sT}, s{sT}, 8"); a(f"s_mul_i32 s{sT}, s{sT}, 20"); a(f"s_add_u32 s{sT}, s{sT}, s{sJ}")
    a(f"s_lshl_b32 s{sT}, s{sT}, 10"); a(f"s_lshl_b32 s{sT+1}, s{sGX}, 7"); a(f"s_add_u32 s{sT}, s{sT}, s{sT+1}")
    a(f"s_lshl_b32 s{sT+1}, s{sT+2}, 6"); a(f"s_add_u32 s{sT}, s{sT}, s{sT+1}")
    a(f"v_lshrrev_b32 v{vT+2}, 4, v{vLANE}"); a(f"v_mul_u32_u24 v{vT+2}, 20480, v{vT+2}")
    a(f"v_and_b32 v{vT+3}, 15, v{vLANE}"); a(f"v_lshl_add_u32 v{vT+2}, v{vT+3}, 2, v{vT+2}"); a(f"v_add_u32 v{vT+2}, s{sT}, v{vT+2}")
    a(f"v_add_u32 v{vT+3}, {4*20480}, v{vT+2}")
    gate(L_G1, layer=True)
    a("L_hp:")
    for st in range(3):
        a(f"global_load_dwordx4 {v(H+4*st,4)}, v{vT+1}, {p(sWS)} offset:{st*128} sc1")
    setexec(0x5555ffff)
    a(f"global_load_dwordx4 {v(H+12,4)}, v{vT+1}, {p(sWS)} offset:384 sc1")
    setexec(-1)
    budget()
    a("s_waitcnt vmcnt(0) lgkmcnt(0)")
    t = maxchain(vT+4, range(H, H+16))
    a(f"v_cmp_eq_u32 vcc, -1, v{t}")
    a("s_cbranch_vccnz L_hp")
    stamp(12)
    for st in range(4):
        a(f"v_smfmac_f32_16x16x64_bf16 {v(D2,4)}, {v(H+4*st,4)}, {v(vW+8*st,8)}, v{vIA}")
    a(f"s_cmp_lg_u32 s{sL}, 0")
    a("s_cbranch_scc1 L_push1")
    a(f"v_add_f32 v{D2}, v{D2}, v{D2+1}")
    a(f"global_store_dword v{vT+2}, v{D2}, {p(sWS)} sc1")
    a(f"global_store_dword v{vT+3}, v{D2}, {p(sWS)} sc1")
    a("s_branch L_pushed")
    a("L_push1:")
    setexec(0xffff)
    a(f"v_add_f32 v{D2}, v{D2}, v{D2+1}")
    a(f"global_store_dword v{vT+2}, v{D2}, {p(sWS)} sc1")
    setexec(-1)
    a("L_pushed:")
    setflag(L_G2, layer=True)
    stamp(13)
    a("L_noffn2:")
    a(f"s_cmp_lg_u32 s{sL}, 0")
    a("s_cbranch_scc1 L_exit")
    a(f"s_cmp_lg_u32 s{sWAVE}, 0")
    a("s_cbranch_scc1 L_next")
    a(f"s_add_u32 s{sT}, s{sGX}, 8"); a(f"s_mul_i32 s{sT}, s{sT}, 1280"); a(f"s_add_u32 s{sT}, s{sT}, {XB}")
    a(f"v_lshl_add_u32 v{vT}, v{vLANE}, 2, s{sT}")
    a(f"v_mov_b32 v{vT+3}, 32")
    q_addr(vT+7, QE1)
    gate(L_G3)
    fin_poll(vT)
    fin_body(vT+3)
    a(f"v_mul_f32 v{vT+6}, {f2u(CSC):#x}, v{vT+6}")
    pack_pairs(vT+6)
    setexec(0x5555)
    istore([f"global_store_dword v{vT+7}, v{vT+6}, {p(sWS)}"])
    setexec(-1)
    setflag(L_G4)
    stamp(14)
    a("L_next:")
    if instr:
        a("s_waitcnt lgkmcnt(0)")
        for i in range(16): a(f"v_writelane_b32 v{vSTV}, s{sSTAMP+2*i}, {i}")
        for i in range(5, 16): a(f"s_mov_b32 s{sSTAMP+2*i}, 0")
    a(f"s_mov_b32 s{sL}, 1")
    a("s_branch L_layer")
    for l1, l2, text in slow:
        a(f"{l1}:")
        for t in text: a(t + " sc1")
        a(f"s_branch {l2}")
    a("L_exit:")
    if instr:
        setexec(-1)
        stamp(15)
        a("s_waitcnt lgkmcnt(0)")
        for i in range(16): a(f"v_writelane_b32 v{vSTV}, s{sSTAMP+2*i}, {16+i}")
        a(f"v_writelane_b32 v{vSTV}, s60, 32")
        a(f"v_writelane_b32 v{vSTV}, s{sBUD}, 33")
        a(f"v_writelane_b32 v{vSTV}, s{sMODE}, 34")
        a(f"s_lshl_b32 s{sT}, s2, 3"); a(f"s_add_u32 s{sT}, s{sT}, s{sWAVE}"); a(f"s_lshl_b32 s{sT}, s{sT}, 8"); a(f"s_add_u32 s{sT}, s{sT}, {STAMPS}")
        a(f"v_lshl_add_u32 v{vT}, v{vLANE}, 2, s{sT}")
        a(f"global_store_dword v{vT}, v{vSTV}, {p(sWS)}")
    a("L_end:")
    a("s_endpgm")
    body = a.finish()
    if instr:
        init = "\n".join(f"    s_mov_b32 s{sSTAMP+2*i}, 0" for i in range(1, 16))
        body = body.replace("    s_load_dwordx16", init + "\n    s_load_dwordx16", 1)
    ref = open("interleave_layers__mha_block_cached__glu_gated_swiglu__decode.s.ref").read().split("\n")
    head = [l for l in ref if l.startswith(";") and "@launch" not in l]
    return "\n".join(head) + f"""
; @launch grid=(256,1,1) block=(512,1,1) lds={LDS_BYTES}
.amdgcn_target "amdgcn-amd-amdhsa--gfx950"
.text
.globl {NAME}
.p2align 8
.type {NAME},@function
{NAME}:
{body}
.section .rodata,"a"
.p2align 6
.amdhsa_kernel {NAME}
  .amdhsa_next_free_vgpr 256
  .amdhsa_next_free_sgpr 102
  .amdhsa_accum_offset 256
  .amdhsa_group_segment_fixed_size 0
  .amdhsa_kernarg_size 96
  .amdhsa_user_sgpr_count 2
  .amdhsa_user_sgpr_kernarg_segment_ptr 1
  .amdhsa_system_sgpr_workgroup_id_x 1
  .amdhsa_float_denorm_mode_32 3
.end_amdhsa_kernel
"""

if __name__ == "__main__":
    out = sys.argv[1]
    instr = "instr" in sys.argv[2:]
    opt = {}
    for x in sys.argv[2:]:
        if "=" in x:
            k, val = x.split("="); opt[k] = int(val)
    open(out, "w").write(gen(instr, opt))
```

```python
import sys, struct
from asmlib import Asm

NAME = "interleave_layers__mha_block_cached__glu_gated_swiglu__decode_kernel"
def f2u(x): return struct.unpack('<I', struct.pack('<f', x))[0]

PB = 0
OA = 512000
ST = OA + 131072
GF = ST + 8192
CF = GF + 16*17920
GQ1 = CF + 8*17920
XR = GQ1 + 8*20480
SX = XR + 24*2560
assert SX + 24*128 <= 256*5120
GQ0 = 256*5120
CQ = GQ0 + 8*20480
KQ = CQ + 8*20480
SX0 = KQ + 8*20480
ARR = SX0 + 4096
EPO = ARR + 8192
STAMPS = 2 << 20
L_MODE, L_FQ, L_STAT = 0, 16, 64
L_XL, L_QL, L_HL, L_PW, L_OP = 256, 512, 768, 2048, 4096
L_WA, L_W2 = 8192, 73728
LDS_BYTES = 106496
sX_, sK, sV, sWQ, sWO, sW1, sW3, sW2, sOUT, sDBG, sWS = 4, 6, 8, 10, 12, 16, 18, 20, 22, 24, 26
sWAVE, sGX, sJ, sJP, sL, sBUD, sMODE, sHEAD, sC, sROLE = 28, 29, 30, 31, 32, 33, 34, 35, 36, 37
sKB, sVB, sEP, sTAG = 38, 40, 42, 43
sPLO, sPHI, sM, sI, sW = 44, 45, 46, 47, 3
sT = 48
sSTAMP = 64
vLANE, vIA, vIP, vCSQ, vONE = 0, 1, 2, 3, 4
vROWL, vXA, vCSF, vL4 = 8, 9, 10, 11
vT = 12
vSTV = 31
vAT, vQ, vDA, vDB = 32, 48, 52, 56
vS, vW, vK, vV = 60, 96, 128, 192
ROLE_W, ROLE_F, ROLE_Q = 0, 1, 2
DPPF = "row_mask:0xf bank_mask:0xf"

def p(r): return f"s[{r}:{r+1}]"
def v(r, n=1): return f"v{r}" if n == 1 else f"v[{r}:{r+n-1}]"

def gen(instr=False, opt=None):
    opt = dict(opt or {})
    NT = "" if opt.get("nont") else " nt"
    a = Asm()
    uid = [0]
    slow = []
    def lab(s):
        uid[0] += 1
        return f"L_{s}_{uid[0]}"
    def stamp(i):
        if instr: a(f"s_memtime s[{sSTAMP+2*i}:{sSTAMP+2*i+1}]")
    def setexec(m):
        if m == -1: a("s_mov_b64 exec, -1"); return
        lo, hi = m & 0xffffffff, m >> 32
        if hi == 0 and lo < 0x80000000: a(f"s_mov_b64 exec, {lo:#x}")
        else: a(f"s_mov_b32 exec_lo, {lo:#x}"); a(f"s_mov_b32 exec_hi, {hi:#x}")
    def budget():
        a(f"s_sub_u32 s{sBUD}, s{sBUD}, 1")
        a("s_cbranch_scc1 L_exit")
    def br(cmp, x, y, target):
        a(f"s_cmp_{cmp}_u32 s{x}, {y}"); a(f"s_cbranch_scc1 {target}")
    def lin(dst, terms, const=0):
        first = True
        for reg, coef in terms:
            t = dst if first else sT + 11
            if coef == 1:
                if first: a(f"s_add_u32 s{dst}, s{reg}, {const}"); const = 0
                else: a(f"s_add_u32 s{dst}, s{dst}, s{reg}")
                first = False; continue
            if coef & (coef - 1) == 0: a(f"s_lshl_b32 s{t}, s{reg}, {coef.bit_length()-1}")
            else: a(f"s_mul_i32 s{t}, s{reg}, {coef}")
            if not first: a(f"s_add_u32 s{dst}, s{dst}, s{t}")
            first = False
        if const: a(f"s_add_u32 s{dst}, s{dst}, {const}")
    def maxchain(dst, regs, op="max"):
        regs = list(regs)
        if len(regs) == 1: return regs[0]
        if len(regs) == 2:
            a(f"v_{op}_u32 v{dst}, v{regs[0]}, v{regs[1]}"); return dst
        a(f"v_{op}3_u32 v{dst}, v{regs[0]}, v{regs[1]}, v{regs[2]}"); regs = regs[3:]
        while len(regs) >= 2:
            a(f"v_{op}3_u32 v{dst}, v{dst}, v{regs[0]}, v{regs[1]}"); regs = regs[2:]
        if regs: a(f"v_{op}_u32 v{dst}, v{dst}, v{regs[0]}")
        return dst
    def istore(text, mode=sMODE):
        l1, l2 = lab("slow"), lab("st")
        br("lg", mode, 1, l1)
        a(text)
        a(f"{l2}:")
        slow.append((l1, l2, text))
    def pack_pairs(r, tmp):
        a(f"v_mov_b32_dpp v{tmp}, v{r} quad_perm:[1,1,3,3] {DPPF}")
        a(f"v_cvt_pk_bf16_f32 v{r}, v{r}, v{tmp}")
    def tr128(base_s, ntile=4):
        a(f"v_lshlrev_b32 v{vT}, 7, v{vROWL}")
        a(f"v_bfe_u32 v{vT+1}, v{vROWL}, 2, 2"); a(f"v_lshl_add_u32 v{vT}, v{vT+1}, 5, v{vT}")
        a(f"v_and_b32 v{vT+1}, 3, v{vLANE}"); a(f"v_lshl_add_u32 v{vT}, v{vT+1}, 3, v{vT}")
        a(f"v_add_u32 v{vT}, s{base_s}, v{vT}")
        for t in range(ntile):
            if t: a(f"v_xor_b32 v{vT+1}, {32*t}, v{vT}")
            for hf in range(2):
                for eh in range(2):
                    a(f"ds_read_b64_tr_b16 {v(vW + 8*t + 4*hf + 2*eh, 2)}, v{vT + (1 if t else 0)} offset:{hf*4096 + eh*256}")
    def trq(unit=sWAVE):
        a(f"v_lshrrev_b32 v{vT+1}, 1, v{vROWL}"); a(f"v_and_b32 v{vT+1}, 6, v{vT+1}")
        a(f"v_and_or_b32 v{vT+1}, v{vROWL}, 1, v{vT+1}"); a(f"v_lshlrev_b32 v{vT+1}, 5, v{vT+1}")
        a(f"s_lshl_b32 s{sT}, s{unit}, 7"); a(f"v_xor_b32 v{vT+1}, s{sT}, v{vT+1}")
        a(f"v_lshl_add_u32 v{vT}, v{vROWL}, 10, v{vT+1}")
        a(f"v_and_b32 v{vT+1}, 3, v{vLANE}"); a(f"v_lshl_add_u32 v{vT}, v{vT+1}, 3, v{vT}")
        for t in range(4):
            if t: a(f"v_xor_b32 v{vT+1}, {32*t}, v{vT}")
            for hf in range(2):
                for eh in range(2):
                    a(f"ds_read_b64_tr_b16 {v(vW + 8*t + 4*hf + 2*eh, 2)}, v{vT + (1 if t else 0)} offset:{L_WA + hf*32768 + eh*2048}")
    D4 = vS + 4
    def zero_d4():
        for t in range(4): a(f"v_mov_b32 v{D4+4*t}, 0"); a(f"v_mov_b32 v{D4+4*t+1}, 0")
    def mma4(areg, fill=()):
        fill = list(fill)
        for t in range(4):
            a(f"v_smfmac_f32_16x16x64_bf16 {v(D4+4*t,4)}, {v(areg,4)}, {v(vW+8*t,8)}, v{vIA}")
            if fill: a(fill.pop(0))
        for f in fill: a(f)
    def gather4(dst):
        a(f"v_add_f32 v{dst}, v{D4}, v{D4+1}")
        for t in range(1, 4):
            a(f"v_add_f32_dpp v{dst}, v{D4+4*t}, v{D4+4*t+1} quad_perm:[0,1,2,3] row_mask:{1<<t:#x} bank_mask:0xf")
    def stats_ops(x, t):
        o = [f"v_mul_f32 v{t+1}, v{x}, v{x}", f"v_mov_b32 v{t}, v{x}",
             f"v_permlane32_swap_b32 v{t}, v{t+1}", f"v_add_f32 v{t}, v{t}, v{t+1}"]
        o += [f"v_add_f32_dpp v{t}, v{t}, v{t} row_ror:{s} {DPPF}" for s in (8, 4, 2, 1)]
        o += [f"v_add_f32_dpp v{t}, v{t}, v{t} row_bcast:15 row_mask:0xa bank_mask:0xf"]
        return o
    STATX = (1 << 16) | (1 << 48)
    def stat_addr(dst, sreg):
        a(f"v_lshrrev_b32 v{dst}, 5, v{vLANE}"); a(f"v_lshl_add_u32 v{dst}, v{dst}, 6, s{sreg}")

    G = vS
    def sum10():
        a(f"v_pk_add_f32 {v(G,2)}, {v(G,2)}, {v(G+2,2)}")
        a(f"v_pk_add_f32 {v(G+4,2)}, {v(G+4,2)}, {v(G+6,2)}")
        a(f"v_pk_add_f32 {v(G,2)}, {v(G,2)}, {v(G+8,2)}")
        a(f"v_pk_add_f32 {v(G,2)}, {v(G,2)}, {v(G+4,2)}")
    def colsum_poll(areg, dst, sleep):
        l, l2 = lab("cp"), lab("cpd")
        a(f"{l}:")
        for t in range(10): a(f"global_load_dword v{G+t}, v{areg}, {p(sWS)} offset:{t*256} sc1")
        budget()
        a("s_waitcnt vmcnt(0)")
        t = maxchain(G+12, range(G, G+10))
        a(f"v_cmp_eq_u32 vcc, -1, v{t}")
        a(f"s_cbranch_vccz {l2}")
        a(f"s_sleep {sleep}")
        a(f"s_branch {l}")
        a(f"{l2}:")
        sum10()
        a(f"v_add_f32 v{dst}, v{G}, v{G+1}")
    def consume(areg, sreg_v, cs, scale=None, st=None, first_cs=None):
        a(f"v_mov_b32 v{G+10}, 0"); a(f"v_mov_b32 v{G+11}, 0")
        def loads():
            for t in range(10): a(f"global_load_dword v{G+t}, v{areg}, {p(sWS)} offset:{t*256} sc1")
            setexec(0x03ff03ff03ff03ff)
            a(f"global_load_dword v{G+10}, v{sreg_v}, {p(sWS)} sc1")
            a(f"global_load_dword v{G+11}, v{sreg_v}, {p(sWS)} offset:64 sc1")
            setexec(-1)
            budget()
            a("s_waitcnt vmcnt(0)")
        l, ld = lab("gp"), lab("gd")
        if first_cs is not None:
            l0, l1 = lab("g0"), lab("g0d")
            br("lg", sL, 0, l)
            a(f"v_mov_b32 v{G+32}, s{sTAG}"); a(f"v_mov_b32 v{G+33}, s{sTAG}")
            a(f"{l0}:")
            for t in range(10): a(f"global_load_dword v{G+12+t}, v{first_cs}, {p(sWS)} offset:{t*256} sc1")
            for t in range(10): a(f"global_load_dword v{G+22+t}, v{first_cs+1}, {p(sWS)} offset:{t*256} sc1")
            setexec(0x03ff03ff03ff03ff)
            a(f"global_load_dword v{G+32}, v{sreg_v}, {p(sWS)} offset:128 sc1")
            a(f"global_load_dword v{G+33}, v{sreg_v}, {p(sWS)} offset:192 sc1")
            setexec(-1)
            loads()
            a(f"v_bitop3_b32 v{G+34}, v{G+10}, v{G+32}, s{sTAG} bitop3:0x96")
            a(f"v_bitop3_b32 v{G+35}, v{G+11}, v{G+33}, s{sTAG} bitop3:0x96")
            a(f"v_or_b32 v{G+34}, v{G+34}, v{G+35}")
            for t in range(10):
                a(f"v_bitop3_b32 v{G+35}, v{G+t}, v{G+12+t}, v{G+22+t} bitop3:0x96")
                a(f"v_xor_b32 v{G+35}, s{sTAG}, v{G+35}")
                a(f"v_or_b32 v{G+34}, v{G+34}, v{G+35}")
            a(f"v_cmp_ne_u32 vcc, 0, v{G+34}")
            a(f"s_cbranch_vccz {l1}")
            a("s_sleep 10")
            a(f"s_branch {l0}")
            a(f"{l1}:")
            a(f"v_add_f32 v{cs}, v{G+12}, v{G+13}")
            for t in range(2, 10): a(f"v_add_f32 v{cs}, v{cs}, v{G+12+t}")
            a(f"s_branch {ld}")
        a(f"{l}:")
        loads()
        t = maxchain(G+12, range(G, G+12))
        a(f"v_cmp_eq_u32 vcc, -1, v{t}")
        a(f"s_cbranch_vccnz {l}")
        a(f"{ld}:")
        if st is not None: stamp(st)
        pk = [f"v_pk_add_f32 {v(G,2)}, {v(G,2)}, {v(G+2,2)}", f"v_pk_add_f32 {v(G+4,2)}, {v(G+4,2)}, {v(G+6,2)}",
              f"v_pk_add_f32 {v(G,2)}, {v(G,2)}, {v(G+8,2)}", f"v_pk_add_f32 {v(G,2)}, {v(G,2)}, {v(G+4,2)}"]
        for s, f in zip((8, 4, 2, 1), pk):
            a(f"v_add_f32_dpp v{G+10}, v{G+10}, v{G+10} row_ror:{s} {DPPF}")
            a(f"v_add_f32_dpp v{G+11}, v{G+11}, v{G+11} row_ror:{s} {DPPF}")
            a(f)
        a(f"v_mul_f32 v{G+10}, {f2u(1/640):#x}, v{G+10}")
        a(f"v_mul_f32 v{G+11}, {f2u(1/640):#x}, v{G+11}")
        a(f"v_fma_f32 v{G+11}, -v{G+10}, v{G+10}, v{G+11}")
        a(f"v_max_f32 v{G+11}, 0, v{G+11}")
        a(f"v_add_f32 v{G+11}, {f2u(1e-5):#x}, v{G+11}")
        a(f"v_rsq_f32 v{G+11}, v{G+11}")
        a(f"v_add_f32 v{G}, v{G}, v{G+1}")
        a(f"v_fma_f32 v{G}, -v{G+10}, v{cs}, v{G}")
        if scale: a(f"v_mul_f32 v{G}, {f2u(scale):#x}, v{G}")
        a(f"v_mul_f32 v{G}, v{G}, v{G+11}")
    CSC = 1.4426950408889634 * (128 ** -0.5)

    R = vS + 24
    def red(kodd, st):
        lin(sT, [(sL, 160), (sGX, 10), (sJP, 1)], 80*kodd)
        a(f"s_lshl_b32 s{sT}, s{sT}, 11")
        a(f"v_add_u32 v{vT+8}, s{sT}, v{vL4}")
        a(f"v_mov_b32 v{vT+11}, 0")
        lres = lab("res")
        if not kodd:
            l0 = lab("r0")
            br("lg", sL, 0, l0)
            a(f"s_lshl_b32 s{sT}, s{sJP}, 7"); a(f"v_lshl_add_u32 v{vT+9}, v{vLANE}, 1, s{sT}")
            a(f"v_mov_b32 v{R+8}, 0")
            a(f"global_load_short_d16_hi v{R+8}, v{vT+9}, {p(sX_)}")
            a(f"s_branch {lres}")
            a(f"{l0}:")
        lin(sT, [(sL, 16*2560), (sGX, 2560), (sJP, 256)], XR + (kodd - 1)*8*2560)
        a(f"v_add_u32 v{vT+9}, s{sT}, v{vL4}")
        l = lab("rr")
        a(f"{l}:")
        a(f"global_load_dword v{R+8}, v{vT+9}, {p(sWS)} sc1")
        budget()
        a("s_waitcnt vmcnt(0)")
        a(f"v_cmp_eq_u32 vcc, -1, v{R+8}")
        a(f"s_cbranch_vccnz {l}")
        a(f"{lres}:")
        l = lab("ro")
        a(f"{l}:")
        a(f"global_load_dword v{R}, v{vT+8}, {p(sWS)} sc1")
        budget()
        a("s_waitcnt vmcnt(0)")
        a(f"v_cmp_eq_u32 vcc, -1, v{R}")
        a(f"s_cbranch_vccnz {l}")
        if opt.get("red_delay", 0): a(f"s_sleep {opt['red_delay']}")
        l, l2 = lab("rp"), lab("rc")
        for t in range(1, 8): a(f"global_load_dword v{R+t}, v{vT+8}, {p(sWS)} offset:{t*256} sc1")
        a(f"v_add_f32 v{R+8}, v{R+8}, v{R}")
        a(f"s_branch {l2}")
        a(f"{l}:")
        for t in range(1, 8):
            if opt.get("red_atomic", 1):
                a(f"global_atomic_add v{R+t}, v{vT+8}, v{vT+11}, {p(sWS)} offset:{t*256} sc0")
            else:
                a(f"global_load_dword v{R+t}, v{vT+8}, {p(sWS)} offset:{t*256} sc1")
        budget()
        a(f"{l2}:")
        a("s_waitcnt vmcnt(0)")
        t = maxchain(R, range(R+1, R+8))
        a(f"v_cmp_eq_u32 vcc, -1, v{t}")
        a(f"v_pk_add_f32 {v(R+2,2)}, {v(R+2,2)}, {v(R+4,2)}")
        a(f"s_cbranch_vccnz {l}")
        stamp(st)
        a(f"v_add_f32 v{R+8}, v{R+8}, v{R+1}")
        a(f"v_pk_add_f32 {v(R+2,2)}, {v(R+2,2)}, {v(R+6,2)}")
        a(f"v_add_f32 v{R+8}, v{R+8}, v{R+2}")
        a(f"v_add_f32 v{R}, v{R+8}, v{R+3}")
        a(f"v_cvt_pk_bf16_f32 v{R+8}, v{R}, v{R}")
        pack_pairs(R, R+1)
    def red_relay():
        setexec(0x5555555555555555)
        a(f"ds_write_b32 v{vT+10}, v{R} offset:{L_XL}")
        setexec(-1)
        a(f"v_and_b32 v{R+8}, 0xffff0000, v{R+8}")
        a("s_waitcnt lgkmcnt(0)")
    def red_addrs(kodd):
        a(f"v_lshlrev_b32 v{vT+10}, 1, v{vLANE}")
        lin(sT, [(sL, 16*2560), (sGX, 2560), (sJP, 256)], XR + kodd*8*2560)
        a(f"v_add_u32 v{vT+12}, s{sT}, v{vL4}")
        lin(sT, [(sL, 16*128), (sGX, 128), (sJP, 4)], SX + kodd*8*128)
        stat_addr(vT+13, sT)
    def red_publish():
        setexec(STATX)
        istore(f"global_store_dword v{vT+13}, v{R+2}, {p(sWS)}")
        setexec(-1)
        istore(f"global_store_dword v{vT+12}, v{R+8}, {p(sWS)}")
    def dma_loop(n, body):
        l = lab("dma")
        a(f"s_mov_b32 s{sI}, s{sWAVE}")
        a(f"{l}:")
        body()
        a(f"s_add_u32 s{sI}, s{sI}, 3")
        br("lt", sI, n, l)
    def rows8_off(dst, stride):
        a(f"v_lshrrev_b32 v{dst}, 3, v{vLANE}"); a(f"v_mul_u32_u24 v{dst}, {stride}, v{dst}")
        a(f"v_and_b32 v{dst+1}, 7, v{vLANE}"); a(f"v_lshlrev_b32 v{dst+1}, 4, v{dst+1}")
        a(f"v_and_b32 v{dst+2}, 32, v{vLANE}"); a(f"v_xor_b32 v{dst+1}, v{dst+1}, v{dst+2}")
        a(f"v_add_u32 v{dst}, v{dst}, v{dst+1}")
    def rows8_body(base, src, stride, lds):
        def body():
            a(f"s_lshl_b32 s{sT+1}, s{sI}, 10"); a(f"s_add_u32 m0, s{sT+1}, {lds}")
            a(f"s_and_b32 s{sT+1}, s{sI}, 1"); a(f"s_lshl_b32 s{sT+1}, s{sT+1}, 6")
            a(f"s_mul_i32 s{sT+2}, s{sI}, {8*stride}"); a(f"s_add_u32 s{sT+2}, s{sT+2}, s{base}")
            a(f"v_xor_b32 v{vT+1}, s{sT+1}, v{vT}")
            a(f"v_add_u32 v{vT+1}, s{sT+2}, v{vT+1}")
            a(f"global_load_lds_dwordx4 v{vT+1}, {p(src)}{NT}")
        return body

    br("ge", 2, 256, "L_end")
    if instr:
        a(f"s_memrealtime s[60:61]")
        stamp(0)
    a("s_load_dwordx16 s[4:19], s[0:1], 0")
    a("s_load_dwordx8 s[20:27], s[0:1], 64")
    if opt.get("cpf", 0):
        a(f"s_getpc_b64 s[{sT+8}:{sT+9}]")
        a("L_pc:")
        a(f"v_lshlrev_b32 v{vT+18}, 6, v0")
        a(f"v_cmp_gt_u32 vcc, L_end-L_pc, v{vT+18}")
        a(f"s_and_saveexec_b64 s[{sT+10}:{sT+11}], vcc")
        a("s_cbranch_execz L_nocpf")
        a(f"global_load_dword v{vT+18}, v{vT+18}, s[{sT+8}:{sT+9}]")
        a("L_nocpf:")
        setexec(-1)
    a(f"v_lshrrev_b32 v{vT}, 6, v0")
    a(f"v_and_b32 v{vLANE}, 63, v0")
    a(f"v_readfirstlane_b32 s{sWAVE}, v{vT}")
    a(f"s_and_b32 s{sGX}, s2, 7"); a(f"s_lshr_b32 s{sJ}, s2, 3")
    a(f"v_lshlrev_b32 v{vL4}, 2, v{vLANE}")
    a(f"v_mov_b32 v{vDA}, -1"); a(f"v_mov_b32 v{vT+1}, 0")
    a(f"ds_write_b32 v{vL4}, v{vDA}")
    a(f"ds_write_b32 v{vL4}, v{vT+1} offset:{L_HL+256}")
    a(f"s_mov_b32 s{sL}, 0"); a(f"s_mov_b32 s{sBUD}, 100000"); a(f"s_mov_b32 s{sMODE}, 2")
    lin(sT, [(sGX, 32), (sJ, 1)])
    a(f"s_lshr_b32 s{sHEAD}, s{sT}, 3"); a(f"s_and_b32 s{sC}, s{sJ}, 7")
    a(f"s_and_b32 s{sW}, s{sWAVE}, 3"); a(f"s_lshr_b32 s{sT+1}, s{sWAVE}, 2")
    lin(sT, [(sT, 131072), (sT+1, 65536), (sW, 2048)])
    a(f"s_mul_i32 s{sROLE}, s{sJ}, 26"); a(f"s_lshr_b32 s{sROLE}, s{sROLE}, 8")
    a(f"s_mul_i32 s{sJP}, s{sROLE}, 10"); a(f"s_sub_u32 s{sJP}, s{sJ}, s{sJP}")
    if opt.get("x_norole"): a(f"s_mov_b32 s{sROLE}, 3")
    vG, vN = vT+4, vT+5
    vKA, vKB_, vVA, vVB_ = vT+14, vT+15, vT+16, vT+17
    a(f"v_lshrrev_b32 v{vG}, 4, v{vLANE}"); a(f"v_and_b32 v{vN}, 15, v{vLANE}")
    a(f"v_and_b32 v{vKA}, 7, v{vLANE}"); a(f"v_lshlrev_b32 v{vKA}, 8, v{vKA}")
    a(f"v_and_b32 v{vT}, 8, v{vLANE}"); a(f"v_lshl_add_u32 v{vKA}, v{vT}, 3, v{vKA}")
    a(f"v_lshl_add_u32 v{vKA}, v{vG}, 4, v{vKA}")
    a(f"v_lshlrev_b32 v{vVA}, 13, v{vG}"); a(f"v_lshl_add_u32 v{vVA}, v{vN}, 4, v{vVA}")
    a(f"v_add_u32 v{vVB_}, 32768, v{vVA}")
    a(f"v_and_b32 v{vT}, 1, v{vLANE}")
    a(f"v_mul_u32_u24 v{vIA}, 0xaaaa, v{vT}"); a(f"v_add_u32 v{vIA}, 0x4444, v{vIA}")
    a(f"v_mul_u32_u24 v{vIP}, 0x5555, v{vT}"); a(f"v_add_u32 v{vIP}, 0x8888, v{vIP}")
    a(f"v_lshlrev_b32 v{vXA}, 4, v{vT}"); a(f"v_lshl_add_u32 v{vXA}, v{vG}, 5, v{vXA}")
    for r in range(4): a(f"v_mov_b32 v{vONE+r}, 0x3f803f80")
    a(f"v_lshrrev_b32 v{vROWL}, 5, v{vLANE}"); a(f"v_lshlrev_b32 v{vROWL}, 4, v{vROWL}")
    a(f"v_and_b32 v{vT}, 1, v{vG}"); a(f"v_lshl_add_u32 v{vROWL}, v{vT}, 2, v{vROWL}")
    a(f"v_bfe_u32 v{vT}, v{vLANE}, 2, 1"); a(f"v_add_u32 v{vROWL}, v{vROWL}, v{vT}")
    a(f"v_and_b32 v{vT}, 8, v{vLANE}"); a(f"v_add_u32 v{vROWL}, v{vROWL}, v{vT}")
    for r in (6, 7, 9, 10): a(f"v_mov_b32 v{vT+r}, 0")
    if instr: a(f"v_mov_b32 v{vSTV}, 0")
    a(f"s_mov_b32 s{sPLO}, 0x05040100"); a(f"s_mov_b32 s{sPHI}, 0x07060302")
    a(f"s_mul_i32 s{sT+1}, s2, 5120"); a(f"s_add_u32 s{sT+1}, s{sT+1}, 1024")
    a(f"v_lshl_add_u32 v{vT}, v{vLANE}, 4, s{sT+1}")
    for r in range(1, 4): a(f"v_mov_b32 v{vDA+r}, -1")
    a(f"s_mov_b32 s{sT+1}, {EPO}")
    a("s_waitcnt lgkmcnt(0)")
    a(f"s_load_dword s{sEP}, {p(sWS)}, s{sT+1}")
    br("lg", sWAVE, 99 if opt.get("x_noclr") else 7, "L_noclr0")
    for t in range(5): a(f"global_store_dwordx4 v{vT}, {v(vDA,4)}, {p(sWS)} offset:{(t-1)*1024} {['sc1', '', 'sc1 nt'][opt.get('x_cfl', 0)]}")
    a("L_noclr0:")
    a(f"s_add_u32 s{sKB}, s{sK}, s{sT}"); a(f"s_addc_u32 s{sKB+1}, s{sK+1}, 0")
    a(f"s_add_u32 s{sVB}, s{sV}, s{sT}"); a(f"s_addc_u32 s{sVB+1}, s{sV+1}, 0")
    a("s_barrier")
    def epoch():
        a("s_waitcnt lgkmcnt(0)")
        a(f"s_getreg_b32 s{sT+1}, hwreg(HW_REG_XCC_ID, 0, 3)")
        a(f"s_and_b32 s{sEP}, s{sEP}, -8"); a(f"s_add_u32 s{sEP}, s{sEP}, 8")
        a(f"s_mul_i32 s{sTAG}, s{sEP}, 0x9e3779b1"); a(f"s_xor_b32 s{sTAG}, s{sTAG}, 0x5bd1e995")
        a(f"s_or_b32 s{sEP}, s{sEP}, s{sT+1}")
    if opt.get("x_stop"): stamp(13)
    br("lt", sWAVE, 4, "L_kv")
    a("s_setprio 3")
    br("lg", sROLE, ROLE_Q, "L_nowq")
    a(f"s_and_b32 s{sT+1}, s{sW}, 1")
    lin(sT, [(sJP, 64*8192), (sGX, 1024), (sW, 8192)])
    a(f"s_lshl_b32 s{sT+1}, s{sT+1}, 5")
    a(f"v_lshlrev_b32 v{vT}, 4, v{vLANE}"); a(f"v_xor_b32 v{vT}, s{sT+1}, v{vT}"); a(f"v_add_u32 v{vT}, s{sT}, v{vT}")
    lin(sT+4, [(sW, 1024)], L_WA)
    for i in range(16):
        a(f"s_add_u32 m0, s{sT+4}, {i*4096}")
        a(f"v_xor_b32 v{vT+2}, {i*32768 + 64*(i & 3)}, v{vT}")
        a(f"global_load_lds_dwordx4 v{vT+2}, {p(sWQ)}{NT}")
    a(f"s_lshl_b32 s{sT}, s{sJP}, 7")
    a(f"v_add_u32 v{vT}, s{sT}, v{vXA}")
    a(f"global_load_dwordx4 {v(vS,4)}, v{vT}, {p(sX_)}")
    a(f"v_lshl_add_u32 v{vT}, v{vLANE}, 1, s{sT}")
    a(f"v_mov_b32 v{R+8}, 0")
    a(f"global_load_short_d16_hi v{R+8}, v{vT}, {p(sX_)}")
    a("L_nowq:")
    epoch()
    br("lg", sWAVE, 7, "L_noarr")
    lin(sT, [(sGX, 512), (sJ, 16)], ARR)
    a(f"v_mov_b32 v{vT}, s{sT}"); a(f"v_mov_b32 v{vT+1}, s{sEP}")
    br("eq", sROLE, ROLE_Q, "L_arrq")
    a("s_waitcnt vmcnt(0)")
    a("L_arrq:")
    a("s_waitcnt vmcnt(18)")
    setexec(1)
    a(f"global_store_dword v{vT}, v{vT+1}, {p(sWS)} sc1")
    setexec(-1)
    br("lg", sROLE, ROLE_Q, "L_hand")
    a("s_waitcnt vmcnt(1)")
    a("s_branch L_wql")
    a("L_noarr:")
    br("lg", sROLE, ROLE_Q, "L_hand")
    a("s_waitcnt vmcnt(0)")
    a("L_wql:")
    stamp(1)
    a(f"s_lshl_b32 s{sT}, s{sW}, 2"); a(f"v_mov_b32 v{vT}, s{sT}"); a(f"v_mov_b32 v{vT+1}, 0")
    a(f"ds_write_b32 v{vT}, v{vT+1} offset:{L_FQ}")
    a("L_wqs:")
    a(f"ds_read_b128 {v(vS+20,4)}, v{vT+1} offset:{L_FQ}")
    budget()
    a("s_waitcnt lgkmcnt(0)")
    t = maxchain(vS+20, range(vS+20, vS+24))
    a(f"v_cmp_ne_u32 vcc, 0, v{t}")
    a("s_cbranch_vccnz L_wqs")
    a(f"s_mov_b32 s{sI}, s{sW}")
    a("L_q0l:")
    trq(sI)
    zero_d4()
    lin(sT, [(sGX, 20480), (sI, 2560), (sJP, 256)], GQ0)
    a(f"v_add_u32 v{vT+2}, s{sT}, v{vL4}")
    a(f"v_add_u32 v{vT+3}, {CQ-GQ0}, v{vT+2}")
    a(f"v_add_u32 v{vT+4}, {KQ-GQ0}, v{vT+2}")
    a("s_waitcnt lgkmcnt(0)")
    mma4(vS)
    gather4(vS+20)
    zero_d4()
    mma4(vONE)
    gather4(vS+21)
    a(f"v_bitop3_b32 v{vS+22}, v{vS+20}, v{vS+21}, s{sTAG} bitop3:0x96")
    for t in range(0 if opt.get("x_noqst") else 3): a(f"global_store_dword v{vT+2+t}, v{vS+20+t}, {p(sWS)} {['sc1', '', 'sc1 nt'][opt.get('x_qfl', 0)]}")
    a(f"s_add_u32 s{sI}, s{sI}, 4")
    br("lt", sI, 8, "L_q0l")
    stamp(14)
    br("lg", sWAVE, 6, "L_hand")
    for o in stats_ops(R+8, R+2): a(o)
    lin(sT, [(sGX, 256), (sJP, 4)], SX0)
    stat_addr(vT+1, sT)
    a(f"v_xor_b32 v{R+3}, s{sTAG}, v{R+2}")
    setexec(STATX)
    a(f"global_store_dword v{vT+1}, v{R+2}, {p(sWS)} sc1")
    a(f"global_store_dword v{vT+1}, v{R+3}, {p(sWS)} offset:128 sc1")
    setexec(-1)
    a("L_hand:")
    a("s_setprio 0")
    a("s_barrier")

    a("L_kv:")
    def stream(win):
        def gap(i, op=None):
            if op: a(op)
            if win and win - 1 <= i < 31 - opt.get("tail", 0): a(f"s_waitcnt vmcnt({win-1})")
            elif not op and i < 31: a("s_nop 0")
        for i in range(16):
            u, hf = i >> 1, i & 1
            a(f"global_load_dwordx4 {v(vK+8*u+4*hf,4)}, v{vKA}, {p(sKB)} offset:{hf*128}{NT}")
            gap(i, f"v_add_u32 v{vKA}, 8192, v{vKA}" if hf else None)
        for i, t in enumerate(list(range(8, 16)) + list(range(8))):
            d = vV + 8*(t-8) if t >= 8 else vW + 4*t
            a(f"global_load_dwordx4 {v(d,4)}, v{vVB_ if t >= 8 else vVA}, {p(sVB)} offset:{(t&7)*256}{NT}")
            gap(16 + i)
    wins = [opt.get("ww", 6), opt.get("wf", 5), opt.get("wq", 0)]
    if wins[0] != wins[1]: br("eq", sROLE, ROLE_W, "L_kvw")
    if wins[2] != wins[1]: br("eq", sROLE, ROLE_Q, "L_kvw" if wins[2] == wins[0] else "L_kvq")
    stream(wins[1])
    if wins[0] != wins[1]:
        a("s_branch L_kvd"); a("L_kvw:"); stream(wins[0])
    if wins[2] != wins[1] and wins[2] != wins[0]:
        a("s_branch L_kvd"); a("L_kvq:"); stream(wins[2])
    a("L_kvd:")
    br("ge", sWAVE, 4, "L_nohand")
    if opt.get("hand", 0): a(f"s_waitcnt vmcnt({opt['hand']})")
    a("s_barrier")
    a("s_setprio 2")
    epoch()
    a("L_nohand:")
    stamp(4)
    for r in range(16): a(f"v_mov_b32 v{vAT+r}, 0")
    def vperm():
        for grp in (1, 0):
            for tp in range(4):
                a(f"s_waitcnt vmcnt({(14 if grp else 6) - 2*tp})")
                for e in range(8):
                    if grp: s1, s0 = vV + 8*(2*tp) + (e >> 1), vV + 8*(2*tp+1) + (e >> 1)
                    else:   s1, s0 = vW + 4*(2*tp) + (e >> 1), vW + 4*(2*tp+1) + (e >> 1)
                    a(f"v_perm_b32 v{vV + 8*e + 4*grp + tp}, v{s0}, v{s1}, s{sPHI if e & 1 else sPLO}")
    br("ge", sWAVE, 4, "L_att")
    br("lt", sWAVE, 0 if opt.get("x_nogather") else 2, "L_qcons")
    br("lg", sWAVE, 99 if opt.get("x_noarr") else 2, "L_perm")
    a(f"s_lshl_b32 s{sT}, s{sGX}, 9")
    a(f"v_lshl_add_u32 v{vT}, v{vLANE}, 4, s{sT}")
    for t in range(4):
        a(f"v_add_u32 v{vT+4+t}, {1024*t}, v{vT}"); a(f"v_and_b32 v{vT+4+t}, 4095, v{vT+4+t}"); a(f"v_add_u32 v{vT+4+t}, {ARR}, v{vT+4+t}")
    a("L_bar:")
    for t in range(4): a(f"global_load_dword v{vT+8+t}, v{vT+4+t}, {p(sWS)} sc1")
    budget()
    a("s_waitcnt vmcnt(0)")
    for t in range(4): a(f"v_xor_b32 v{vT+8+t}, s{sEP}, v{vT+8+t}")
    t = maxchain(vT+12, range(vT+8, vT+12))
    a(f"v_cmp_lt_u32 vcc, 7, v{t}")
    a("s_cbranch_vccz L_bard")
    a(f"s_sleep {opt.get('bar1', 10)}")
    a("s_branch L_bar")
    a("L_bard:")
    stamp(3)
    a(f"v_cmp_ne_u32 vcc, 0, v{vT+8}")
    a(f"s_cmp_eq_u32 vcc_lo, 0")
    a(f"s_cselect_b32 s{sT}, {2 if opt.get('force_slow') else 1}, 2")
    a(f"v_mov_b32 v{vT+9}, s{sT}"); a(f"v_mov_b32 v{vT+3}, 0")
    a(f"ds_write_b32 v{vT+3}, v{vT+9} offset:{L_MODE}")
    a("L_perm:")
    vperm()
    br("ge", sWAVE, 4, "L_pv")

    a("L_att:")
    for r in range(8): a(f"v_mov_b32 v{vDA+r}, 0")
    a(f"v_lshrrev_b32 v{vT}, 4, v{vLANE}"); a(f"v_lshlrev_b32 v{vT}, 6, v{vT}")
    a(f"v_and_b32 v{vT+1}, 3, v{vLANE}"); a(f"v_lshl_add_u32 v{vT}, v{vT+1}, 4, v{vT}")
    a(f"s_lshl_b32 s{sT}, s{sWAVE}, 9"); a(f"v_lshl_add_u32 v{vT+2}, v{vLANE}, 5, s{sT}")
    lin(sT, [(sWAVE, 4), (sL, 64)], L_STAT); a(f"v_mov_b32 v{vT+3}, s{sT}")
    a(f"v_mov_b32 v{vT+1}, 0")
    COMB = 3
    lin(sT, [(sL, 64)], L_STAT)
    a(f"v_and_b32 v{vT+9}, 28, v{vL4}"); a(f"v_add_u32 v{vT+8}, s{sT}, v{vT+9}")
    a(f"s_lshr_b32 s{sT+1}, s{sC}, 1"); a(f"s_and_b32 s{sT+2}, s{sC}, 1")
    lin(sT, [(sL, 65536), (sHEAD, 2048), (sT+1, 256), (sT+2, 32)], OA)
    a(f"v_add_u32 v{vT+9}, s{sT}, v{vT+9}")
    a(f"v_bfe_u32 v{vT+10}, v{vLANE}, 3, 2"); a(f"v_lshl_add_u32 v{vT+9}, v{vT+10}, 6, v{vT+9}")
    a(f"v_lshrrev_b32 v{vT+10}, 5, v{vLANE}"); a(f"v_lshl_add_u32 v{vT+9}, v{vT+10}, 10, v{vT+9}")
    lin(sT, [(sL, 4096), (sHEAD, 128), (sC, 4)], ST)
    a(f"v_lshl_add_u32 v{vT+10}, v{vT+10}, 5, s{sT}")
    a(f"v_lshlrev_b32 v{vT+11}, 3, v{vLANE}")
    br("eq", sL, 0, "L_attb")
    br("ge", sWAVE, 2, "L_attb")
    a("L_qcons:")
    stamp(2)
    q0 = vT + 4
    a(f"s_lshr_b32 s{sT+1}, s{sJ}, 3"); a(f"s_and_b32 s{sT+2}, s{sWAVE}, 1")
    a(f"s_cmp_eq_u32 s{sL}, 0")
    a(f"s_mov_b32 s{sT+3}, {GQ1}"); a(f"s_mov_b32 s{sT+4}, {SX + 8*128}")
    a(f"s_cselect_b32 s{sT+3}, {GQ0}, s{sT+3}"); a(f"s_cselect_b32 s{sT+4}, {SX0}, s{sT+4}")
    a(f"s_cselect_b32 s{sT+5}, 8, 7"); a(f"s_lshl_b32 s{sT+5}, s{sGX}, s{sT+5}")
    lin(sT, [(sGX, 20480), (sT+1, 5120), (sT+2, 2560), (sT+3, 1)])
    a(f"v_add_u32 v{q0}, s{sT}, v{vL4}")
    lin(sT, [(sT+5, 1), (sT+4, 1)])
    a(f"v_and_b32 v{q0+1}, 60, v{vL4}"); a(f"v_add_u32 v{q0+1}, s{sT}, v{q0+1}")
    a(f"v_bfe_u32 v{q0+2}, v{vLANE}, 4, 1"); a(f"v_lshlrev_b32 v{q0+2}, 6, v{q0+2}")
    a(f"v_and_b32 v{q0+3}, 44, v{vLANE}"); a(f"v_add_u32 v{q0+2}, v{q0+2}, v{q0+3}")
    a(f"v_and_b32 v{q0+3}, 2, v{vLANE}"); a(f"v_lshl_add_u32 v{q0+2}, v{q0+3}, 3, v{q0+2}")
    a(f"s_lshl_b32 s{sT}, s{sT+2}, 7"); a(f"v_add_u32 v{q0+2}, s{sT}, v{q0+2}")
    a(f"v_add_u32 v{q0+3}, {CQ-GQ0}, v{q0}"); a(f"v_add_u32 v{q0+4}, {KQ-GQ0}, v{q0}")
    consume(q0, q0+1, vCSQ, CSC, st=3, first_cs=q0+3)
    pack_pairs(G, G+1)
    setexec(0x5555555555555555)
    a(f"ds_write_b32 v{q0+2}, v{G} offset:{L_QL}")
    setexec(-1)
    br("eq", sL, 0, "L_perm")
    a("L_attb:")
    a("s_waitcnt vmcnt(16) lgkmcnt(0)")
    a("s_barrier")
    a(f"ds_read_b128 {v(vQ,4)}, v{vT} offset:{L_QL}")
    a(f"ds_read_b32 v{vT+4}, v{vT+1} offset:{L_MODE}")
    a("s_waitcnt lgkmcnt(0)")
    stamp(5)
    for m in range(4):
        a(f"v_mov_b32_dpp v{vAT+m}, v{vQ+m} quad_perm:[0,1,2,3] row_mask:0xf bank_mask:0x1")
    for T in range(4):
        if T < 3:
            for m in range(2): a(f"v_mov_b32_dpp v{vAT+4*(T+1)+m}, v{vQ+m} quad_perm:[0,1,2,3] row_mask:0xf bank_mask:{2<<T:#x}")
        a(f"v_smfmac_f32_16x16x64_bf16 {v(vDA,4)}, {v(vAT+4*T,4)}, {v(vK+16*T,8)}, v{vIA}")
        if T < 3:
            for m in range(2, 4): a(f"v_mov_b32_dpp v{vAT+4*(T+1)+m}, v{vQ+m} quad_perm:[0,1,2,3] row_mask:0xf bank_mask:{2<<T:#x}")
        a(f"v_smfmac_f32_16x16x64_bf16 {v(vDB,4)}, {v(vAT+4*T,4)}, {v(vK+16*T+8,8)}, v{vIA}")
    a(f"v_readfirstlane_b32 s{sMODE}, v{vT+4}")
    own, oth, mx = vT+4, vT+5, vT+6
    idq = "quad_perm:[0,1,2,3] row_mask:0xf"
    zs = [f"v_mov_b32 v{vS+4*e+r}, 0" for e in range(8) for r in range(2)]
    def z(n):
        for _ in range(n):
            if zs: a(zs.pop(0))
    z(6)
    a(f"v_add_f32 v{oth}, v{vDA+2}, v{vDA+3}")
    a(f"v_add_f32 v{own}, v{vDA}, v{vDA+1}")
    z(1)
    a(f"v_add_f32_dpp v{oth}, v{vDB}, v{vDB+1} {idq} bank_mask:0x3")
    a(f"v_add_f32_dpp v{own}, v{vDB+2}, v{vDB+3} {idq} bank_mask:0xc")
    z(2)
    a(f"v_add_f32_dpp v{own}, v{oth}, v{own} row_ror:8 {DPPF}")
    z(2)
    a(f"v_max_f32_dpp v{mx}, v{own}, v{own} row_ror:8 {DPPF}")
    for s in (4, 2, 1):
        z(2)
        a(f"v_max_f32_dpp v{mx}, v{mx}, v{mx} row_ror:{s} {DPPF}")
    assert not zs
    a(f"v_max_f32_dpp v{mx}, v{mx}, v{mx} row_bcast:15 row_mask:0xa bank_mask:0xf")
    a(f"v_max_f32_dpp v{mx}, v{mx}, v{mx} row_bcast:31 row_mask:0xc bank_mask:0xf")
    a(f"v_readlane_b32 s{sM}, v{mx}, 63")
    a(f"v_subrev_f32 v{own}, s{sM}, v{own}")
    a(f"v_exp_f32 v{own}, v{own}")
    a(f"v_mov_b32 v{mx}, s{sM}")
    a(f"ds_write_b32 v{vT+3}, v{mx}")
    a(f"v_mov_b32_dpp v{oth}, v{own} row_shl:2 {DPPF} bound_ctrl:0")
    a(f"v_cvt_pk_bf16_f32 v{vQ}, v{own}, v{oth}")
    a(f"s_lshl_b32 s{sT}, s{sL}, 3"); a(f"s_sub_i32 s{sT}, s{sWAVE}, s{sT}")
    for m in range(1, 4):
        a(f"v_mov_b32_dpp v{vQ+m}, v{vQ} row_shl:{4*m} {DPPF} bound_ctrl:0")
    a(f"s_cmp_ge_i32 s{sT}, 4")
    stamp(6)
    a("s_cbranch_scc1 L_perm")
    a("L_pv:")
    stamp(7)
    a(f"v_mfma_f32_16x16x32_bf16 {v(vS+32,4)}, {v(vQ,4)}, {v(vONE,4)}, 0")
    for e in range(8):
        a(f"v_smfmac_f32_16x16x64_bf16 {v(vS+4*e,4)}, {v(vQ,4)}, {v(vV+8*e,8)}, v{vIP}")
    setexec(0xffff)
    a(f"v_add_f32 v{mx+1}, v{vS+32}, v{vS+33}")
    for e in range(8):
        a(f"v_add_f32 v{vDA+e}, v{vS+4*e}, v{vS+4*e+1}")
        if e == 3: a(f"ds_write_b128 v{vT+2}, {v(vDA,4)} offset:{L_OP}")
    a(f"ds_write_b128 v{vT+2}, {v(vDB,4)} offset:{L_OP+16}")
    a(f"ds_write_b32 v{vT+3}, v{mx+1} offset:32")
    setexec(-1)
    stamp(8)
    if opt.get("x_stop"): a("s_branch L_exit")
    br("lg", sWAVE, COMB, "L_nocomb")
    C = vS
    a("L_cm:")
    a(f"ds_read_b32 v{C+16}, v{vT+8}")
    budget()
    a("s_waitcnt lgkmcnt(0)")
    a(f"v_cmp_eq_u32 vcc, -1, v{C+16}")
    a("s_cbranch_vccnz L_cm")
    def red8(op, dst, src):
        a(f"v_{op}_f32_dpp v{dst}, v{src}, v{src} quad_perm:[1,0,3,2] {DPPF}")
        a(f"v_{op}_f32_dpp v{dst}, v{dst}, v{dst} quad_perm:[2,3,0,1] {DPPF}")
        a(f"v_{op}_f32_dpp v{dst}, v{dst}, v{dst} row_half_mirror {DPPF}")
    red8("max", C+18, C+16)
    a(f"v_sub_f32 v{C+16}, v{C+16}, v{C+18}")
    a(f"v_exp_f32 v{C+16}, v{C+16}")
    a("L_cs:")
    a(f"ds_read_b32 v{C+17}, v{vT+8} offset:32")
    for w in range(8): a(f"ds_read_b64 {v(C+2*w,2)}, v{vT+11} offset:{L_OP + 512*w}")
    budget()
    a("s_waitcnt lgkmcnt(0)")
    a(f"v_cmp_eq_u32 vcc, -1, v{C+17}")
    a("s_cbranch_vccnz L_cs")
    a(f"v_mul_f32 v{C+17}, v{C+16}, v{C+17}")
    for r in range(4): a(f"v_mul_f32_dpp v{C+r}, v{C+16}, v{C+r} row_newbcast:{r>>1} {DPPF}")
    lsteps = ["quad_perm:[1,0,3,2]", "quad_perm:[2,3,0,1]", "row_half_mirror"]
    for w in range(2, 8):
        o = 2*(w & 1)
        a(f"v_fmac_f32_dpp v{C+o}, v{C+16}, v{C+2*w} row_newbcast:{w} {DPPF}")
        a(f"v_fmac_f32_dpp v{C+o+1}, v{C+16}, v{C+2*w+1} row_newbcast:{w} {DPPF}")
    a(f"v_pk_add_f32 {v(C,2)}, {v(C,2)}, {v(C+2,2)}")
    a(f"v_add_f32_dpp v{C+17}, v{C+17}, v{C+17} {lsteps[0]} {DPPF}")
    a(f"v_cvt_pk_bf16_f32 v{C}, v{C}, v{C+1}")
    a(f"v_min_u32 v{C}, -2, v{C}")
    a(f"v_add_f32_dpp v{C+17}, v{C+17}, v{C+17} {lsteps[1]} {DPPF}")
    istore(f"global_store_dword v{vT+9}, v{C}, {p(sWS)}")
    a(f"v_add_f32_dpp v{C+18}, v{C+17}, v{C+17} {lsteps[2]} row_mask:0xc bank_mask:0xf")
    setexec(0x0000000100000001)
    istore(f"global_store_dword v{vT+10}, v{C+18}, {p(sWS)}")
    setexec(-1)
    stamp(9)
    a("L_nocomb:")
    br("eq", sROLE, ROLE_F, "L_roleF")
    br("eq", sROLE, ROLE_Q, "L_roleQ")
    br("lg", sROLE, ROLE_W, "L_next")

    br("lg", sL, 0, "L_w1")
    br("ge", sWAVE, 3, "L_w0b")
    rows8_off(vT, 1280)
    lin(sT, [(sGX, 512*1280), (sJP, 128)])
    dma_loop(64, rows8_body(sT, sWO, 1280, L_WA))
    a("s_waitcnt vmcnt(0)")
    a("L_w0b:")
    a("s_barrier")
    lin(sT, [(sWAVE, 8192)], L_WA)
    tr128(sT)
    a("L_w1:")
    SM = vS + 20
    for t in range(4):
        for r in range(4): a(f"v_mov_b32 v{D4+4*t+r}, 0")
    a(f"s_lshr_b32 s{sT+1}, s{sWAVE}, 1")
    lin(sT, [(sL, 65536), (sGX, 8192), (sWAVE, 1024)], OA)
    a(f"v_and_b32 v{vT+1}, 3, v{vLANE}"); a(f"v_lshl_add_u32 v{vT+1}, v{vT+1}, 4, s{sT}")
    a(f"v_lshrrev_b32 v{vT+2}, 4, v{vLANE}"); a(f"v_lshl_add_u32 v{vT+1}, v{vT+2}, 6, v{vT+1}")
    a(f"v_bfe_u32 v{vT+3}, v{vLANE}, 2, 2"); a(f"v_lshl_add_u32 v{vT+1}, v{vT+3}, 8, v{vT+1}")
    lin(sT, [(sL, 4096), (sGX, 512), (sT+1, 128)], ST)
    a(f"v_lshl_add_u32 v{vT+3}, v{vT+2}, 1, v{vLANE}"); a(f"v_and_b32 v{vT+3}, 7, v{vT+3}")
    a(f"v_lshl_add_u32 v{vT+3}, v{vT+3}, 2, s{sT}")
    a(f"v_lshlrev_b32 v{vT+6}, 4, v{vLANE}")
    a(f"s_lshr_b32 s{sT+1}, s{sWAVE}, 2"); a(f"s_and_b32 s{sT+2}, s{sWAVE}, 3")
    lin(sT, [(sT+1, 1024), (sT+2, 4)])
    a(f"v_add_u32 v{vT+5}, s{sT}, v{vT+6}")
    a(f"s_sub_u32 s{sT+1}, s{sGX}, s{sWAVE}"); a(f"s_and_b32 s{sT+1}, s{sT+1}, 7")
    lin(sT, [(sL, 160*2048), (sWAVE, 10*2048), (sJP, 2048), (sT+1, 256)])
    a(f"v_add_u32 v{vT+7}, s{sT}, v{vL4}")
    a(f"s_cmp_eq_u32 s{sT+1}, 0"); a(f"s_cselect_b32 s{sT+8}, s{sMODE}, 2")
    a("L_wop:")
    a(f"global_load_dword v{SM}, v{vT+3}, {p(sWS)} sc1")
    a(f"global_load_dword v{SM+1}, v{vT+3}, {p(sWS)} offset:32 sc1")
    a(f"global_load_dwordx4 {v(vS,4)}, v{vT+1}, {p(sWS)} sc1")
    budget()
    a("s_waitcnt vmcnt(0) lgkmcnt(0)")
    t = maxchain(vT+4, list(range(vS, vS+4)) + [SM, SM+1])
    a(f"v_cmp_eq_u32 vcc, -1, v{t}")
    a("s_cbranch_vccnz L_wop")
    stamp(10)
    mma4(vS, [f"v_max_f32_dpp v{SM+2}, v{SM}, v{SM} quad_perm:[1,0,3,2] {DPPF}",
              f"v_max_f32_dpp v{SM+2}, v{SM+2}, v{SM+2} quad_perm:[2,3,0,1] {DPPF}",
              f"v_max_f32_dpp v{SM+2}, v{SM+2}, v{SM+2} row_half_mirror {DPPF}"])
    a(f"v_sub_f32 v{SM}, v{SM}, v{SM+2}")
    a(f"v_exp_f32 v{SM}, v{SM}")
    a(f"v_mul_f32 v{SM+1}, v{SM}, v{SM+1}")
    a(f"v_mov_b32_dpp v{SM+2}, v{SM} row_newbcast:0 {DPPF}")
    a(f"v_mov_b32_dpp v{SM+3}, v{SM} row_newbcast:1 {DPPF}")
    a(f"v_add_f32_dpp v{SM+1}, v{SM+1}, v{SM+1} {lsteps[0]} {DPPF}")
    for t in range(4):
        a(f"v_pk_mul_f32 {v(D4+4*t,2)}, {v(D4+4*t,2)}, {v(SM+2,2)} op_sel_hi:[1,0]")
        if t == 1: a(f"v_add_f32_dpp v{SM+1}, v{SM+1}, v{SM+1} {lsteps[1]} {DPPF}")
    a(f"v_add_f32_dpp v{SM+1}, v{SM+1}, v{SM+1} {lsteps[2]} {DPPF}")
    for t in range(4):
        a(f"v_pk_fma_f32 {v(D4+4*t,2)}, {v(D4+4*t+2,2)}, {v(SM+2,2)}, {v(D4+4*t,2)} op_sel:[0,1,0]")
    a(f"v_rcp_f32 v{SM+1}, v{SM+1}")
    for t in range(4): a(f"v_add_f32 v{D4+4*t}, v{D4+4*t}, v{D4+4*t+1}")
    a(f"v_permlane32_swap_b32 v{D4}, v{D4+8}")
    a(f"v_permlane32_swap_b32 v{D4+4}, v{D4+12}")
    a(f"v_add_f32 v{D4}, v{D4}, v{D4+8}")
    a(f"v_add_f32 v{D4+4}, v{D4+4}, v{D4+12}")
    a(f"v_permlane16_swap_b32 v{D4}, v{D4+4}")
    a(f"v_add_f32 v{D4}, v{D4}, v{D4+4}")
    a(f"v_mul_f32 v{D4}, v{D4}, v{SM+1}")
    a(f"ds_write_b32 v{vT+5}, v{D4} offset:{L_PW}")
    a("s_waitcnt lgkmcnt(0)")
    a("s_barrier")
    a(f"ds_read_b128 {v(R,4)}, v{vT+6} offset:{L_PW}")
    a(f"ds_read_b128 {v(R+4,4)}, v{vT+6} offset:{L_PW+1024}")
    a("s_waitcnt lgkmcnt(0)")
    a(f"v_pk_add_f32 {v(R,2)}, {v(R,2)}, {v(R+2,2)}")
    a(f"v_pk_add_f32 {v(R+4,2)}, {v(R+4,2)}, {v(R+6,2)}")
    a(f"v_pk_add_f32 {v(R,2)}, {v(R,2)}, {v(R+4,2)}")
    a(f"v_add_f32 v{R}, v{R}, v{R+1}")
    br("eq", sT+8, 1, "L_wown")
    a(f"global_store_dword v{vT+7}, v{R}, {p(sWS)} sc1")
    stamp(11)
    a("s_branch L_next")
    a("L_wown:")
    a(f"global_store_dword v{vT+7}, v{R}, {p(sWS)}")
    stamp(11)
    a("s_branch L_next")

    a("L_roleF:")
    lin(sT+4, [(sGX, 17920), (sWAVE, 2560), (sJP, 256)])
    br("lg", sL, 0, "L_f1")
    br("ge", sWAVE, 3, "L_f0b")
    a(f"v_cmp_lt_u32 vcc, 26, v{vLANE}")
    a(f"v_mov_b32 v{vT+1}, {3456 - 432}")
    a(f"v_cndmask_b32 v{vT}, 0, v{vT+1}, vcc")
    a(f"v_lshl_add_u32 v{vT}, v{vLANE}, 4, v{vT}")
    lin(sT, [(sJP, 64*3456), (sGX, 432)])
    a(f"v_add_u32 v{vT}, s{sT}, v{vT}")
    setexec((1 << 54) - 1)
    def fbody():
        a(f"s_mul_i32 s{sT+1}, s{sI}, 864"); a(f"s_add_u32 m0, s{sT+1}, {L_WA}")
        a(f"s_and_b32 s{sT+1}, s{sI}, 31"); a(f"s_mul_i32 s{sT+1}, s{sT+1}, {2*3456}")
        a(f"s_cmp_lt_u32 s{sI}, 32")
        a(f"s_cselect_b64 s[{sT+2}:{sT+3}], {p(sW1)}, {p(sW3)}")
        a(f"v_add_u32 v{vT+1}, s{sT+1}, v{vT}")
        a(f"global_load_lds_dwordx4 v{vT+1}, s[{sT+2}:{sT+3}]{NT}")
    dma_loop(64, fbody)
    setexec(-1)
    a("s_waitcnt vmcnt(0)")
    a("L_f0b:")
    a("s_barrier")
    stamp(10)
    br("eq", sWAVE, 7, "L_f1")
    a(f"v_mul_u32_u24 v{vT}, 432, v{vROWL}")
    a(f"v_and_b32 v{vT+1}, 3, v{vLANE}"); a(f"v_lshl_add_u32 v{vT}, v{vT+1}, 3, v{vT}")
    lin(sT, [(sWAVE, 64)], L_WA)
    a(f"v_add_u32 v{vT}, s{sT}, v{vT}")
    for t in range(4):
        for hf in range(2):
            for eh in range(2):
                a(f"ds_read_b64_tr_b16 {v(vW + 8*t + 4*hf + 2*eh, 2)}, v{vT} offset:{(t>>1)*27648 + (t&1)*32 + (32*hf + 2*eh)*432}")
    zero_d4()
    a(f"s_add_u32 s{sT}, s{sT+4}, {CF}"); a(f"v_add_u32 v{vT+2}, s{sT}, v{vL4}")
    a("s_waitcnt lgkmcnt(0)")
    mma4(vONE)
    gather4(vS+20)
    a(f"v_min_u32 v{vS+20}, -2, v{vS+20}")
    istore(f"global_store_dword v{vT+2}, v{vS+20}, {p(sWS)}")
    a("L_f1:")
    br("eq", sWAVE, 7, "L_fred")
    zero_d4()
    lin(sT, [(sL, 8*17920), (sT+4, 1)], GF)
    a(f"v_add_u32 v{vT+2}, s{sT}, v{vL4}")
    a("s_barrier")
    a(f"ds_read_b128 {v(vS,4)}, v{vXA} offset:{L_XL}")
    a("s_waitcnt lgkmcnt(0)")
    mma4(vS)
    gather4(vS+20)
    a(f"v_min_u32 v{vS+20}, -2, v{vS+20}")
    istore(f"global_store_dword v{vT+2}, v{vS+20}, {p(sWS)}")
    stamp(12)
    a("s_branch L_next")
    a("L_fred:")
    red_addrs(0)
    red(0, 11)
    red_relay()
    a("s_barrier")
    for o in stats_ops(R+8, R+2): a(o)
    red_publish()
    stamp(12)
    a("s_branch L_next")

    a("L_roleQ:")
    lin(sT+4, [(sGX, 17920), (sWAVE, 2560)])
    br("lg", sL, 0, "L_rq1")
    br("ge", sWAVE, 3, "L_q0z")
    rows8_off(vT, 1280)
    lin(sT, [(sGX, 216*1280), (sJP, 128)])
    dma_loop(27, rows8_body(sT, sW2, 1280, L_W2))
    a("s_waitcnt vmcnt(0)")
    a("s_branch L_q0b")
    a("L_q0z:")
    for r in range(4): a(f"v_mov_b32 v{vS+24+r}, 0")
    lin(sT, [(sWAVE, 1024)], L_W2 + 24*1024)
    a(f"v_lshl_add_u32 v{vT}, v{vLANE}, 4, s{sT}")
    a(f"ds_write_b128 v{vT}, {v(vS+24,4)}")
    a("s_waitcnt lgkmcnt(0)")
    a("L_q0b:")
    a("s_barrier")
    br("eq", sWAVE, 7, "L_rq1")
    a(f"s_add_u32 s{sT}, s{sT+4}, {CF}"); a(f"v_add_u32 v{vT}, s{sT}, v{vL4}")
    colsum_poll(vT, vCSF, 4)
    a("L_rq1:")
    H, D2 = vS + 16, vS + 32
    br("lt", sWAVE, 4, "L_now2")
    a(f"s_and_b32 s{sT+1}, s{sWAVE}, 3")
    a(f"v_lshlrev_b32 v{vT}, 7, v{vROWL}")
    a(f"v_bfe_u32 v{vT+1}, v{vROWL}, 2, 2"); a(f"v_xor_b32 v{vT+1}, s{sT+1}, v{vT+1}"); a(f"v_lshl_add_u32 v{vT}, v{vT+1}, 5, v{vT}")
    a(f"v_and_b32 v{vT+1}, 3, v{vLANE}"); a(f"v_lshl_add_u32 v{vT}, v{vT+1}, 3, v{vT}")
    a(f"v_add_u32 v{vT}, {L_W2}, v{vT}")
    for st in range(4):
        for hf in range(2):
            for eh in range(2):
                a(f"ds_read_b64_tr_b16 {v(vW + 8*st + 4*hf + 2*eh,2)}, v{vT} offset:{st*8192 + hf*4096 + eh*256}")
    a(f"v_mov_b32 v{D2}, 0"); a(f"v_mov_b32 v{D2+1}, 0")
    lin(sT, [(sL, 160*2048), (sJP, 2048), (sT+1, 64)], 80*2048)
    a(f"v_and_b32 v{vT+5}, 60, v{vL4}"); a(f"v_add_u32 v{vT+5}, s{sT}, v{vT+5}")
    a(f"v_lshrrev_b32 v{vT+4}, 4, v{vLANE}")
    for i, top in enumerate((7, 3)):
        a(f"v_sub_u32 v{vT+8}, {top}, v{vT+4}")
        a(f"v_sub_u32 v{vT+9}, s{sGX}, v{vT+8}"); a(f"v_and_b32 v{vT+9}, 7, v{vT+9}")
        a(f"v_mul_u32_u24 v{vT+9}, 20480, v{vT+9}"); a(f"v_lshl_add_u32 v{vT+9}, v{vT+8}, 8, v{vT+9}")
        a(f"v_add_u32 v{vT+6+i}, v{vT+5}, v{vT+9}")
    a(f"s_lshl_b32 s{sT}, s{sGX}, 8"); a(f"v_add_u32 v{vT+5}, s{sT}, v{vT+5}")
    a(f"s_cmp_eq_u32 s{sGX}, 0"); a(f"s_cselect_b32 s{sT+8}, s{sMODE}, 2")
    br("eq", sWAVE, 7, "L_hb")
    a("L_now2:")
    lin(sT, [(sL, 8*17920), (sT+4, 1)], GF)
    a(f"v_add_u32 v{vT}, s{sT}, v{vL4}")
    lin(sT, [(sL, 16*128), (sGX, 128)], SX)
    a(f"v_and_b32 v{vT+1}, 60, v{vL4}"); a(f"v_add_u32 v{vT+1}, s{sT}, v{vT+1}")
    a(f"s_lshl_b32 s{sT}, s{sWAVE}, 6"); a(f"v_lshl_add_u32 v{vT+2}, v{vLANE}, 1, s{sT}")
    a(f"s_cmp_eq_u32 s{sWAVE}, 6"); a(f"s_mov_b32 s{sT+9}, 0x55555555"); a(f"s_cselect_b32 s{sT+9}, 0x555555, s{sT+9}")
    consume(vT, vT+1, vCSF, None, st=10)
    a(f"v_mov_b32 v{G+1}, v{G}")
    a(f"v_mul_f32 v{G+2}, {f2u(-1.4426950408889634):#x}, v{G}")
    a(f"v_exp_f32 v{G+2}, v{G+2}")
    a(f"v_permlane32_swap_b32 v{G}, v{G+1}")
    a(f"v_add_f32 v{G+2}, 1.0, v{G+2}")
    a(f"v_rcp_f32 v{G+2}, v{G+2}")
    a(f"v_mul_f32 v{G}, v{G}, v{G+1}")
    a(f"v_mul_f32 v{G}, v{G}, v{G+2}")
    pack_pairs(G, G+1)
    a(f"s_mov_b32 exec_lo, s{sT+9}"); a("s_mov_b32 exec_hi, 0")
    a(f"ds_write_b32 v{vT+2}, v{G} offset:{L_HL}")
    setexec(-1)
    a("L_hb:")
    a("s_waitcnt lgkmcnt(0)")
    a("s_barrier")
    br("lt", sWAVE, 4, "L_nopush")
    for st in range(4): a(f"ds_read_b128 {v(H+4*st,4)}, v{vXA} offset:{L_HL + 128*st}")
    for st in range(4):
        a(f"s_waitcnt lgkmcnt({0 if instr else 3-st})")
        a(f"v_smfmac_f32_16x16x64_bf16 {v(D2,4)}, {v(H+4*st,4)}, {v(vW+8*st,8)}, v{vIA}")
    br("lg", sL, 0, "L_push1")
    a(f"v_add_f32 v{D2}, v{D2}, v{D2+1}")
    a(f"global_store_dword v{vT+6}, v{D2}, {p(sWS)} sc1")
    a("s_mov_b32 exec_hi, 0xffff")
    a(f"global_store_dword v{vT+7}, v{D2}, {p(sWS)} sc1")
    setexec(0xffff << 48)
    istore(f"global_store_dword v{vT+7}, v{D2}, {p(sWS)}")
    setexec(-1)
    stamp(11)
    a("s_branch L_nopush")
    a("L_push1:")
    setexec(0xffff)
    a(f"v_add_f32 v{D2}, v{D2}, v{D2+1}")
    istore(f"global_store_dword v{vT+5}, v{D2}, {p(sWS)}", mode=sT+8)
    setexec(-1)
    stamp(11)
    a("s_branch L_exit")
    a("L_nopush:")
    REDW = 3
    br("lg", sL, 0, "L_last")
    trq()
    zero_d4()
    lin(sT, [(sGX, 20480), (sWAVE, 2560), (sJP, 256)], GQ1)
    a(f"v_add_u32 v{vT+2}, s{sT}, v{vL4}")
    br("eq", sWAVE, REDW, "L_qred")
    a("s_barrier")
    a(f"ds_read_b128 {v(vS,4)}, v{vXA} offset:{L_XL}")
    a("s_waitcnt lgkmcnt(0)")
    mma4(vS)
    gather4(vS+20)
    istore(f"global_store_dword v{vT+2}, v{vS+20}, {p(sWS)}")
    stamp(13)
    a("s_branch L_next")
    a("L_last:")
    br("lg", sGX, 0, "L_exit")
    br("lg", sWAVE, REDW, "L_exit")
    a("L_qred:")
    red_addrs(1)
    red(1, 12)
    br("lg", sL, 0, "L_final")
    red_relay()
    a("s_barrier")
    a(f"ds_read_b128 {v(vS,4)}, v{vXA} offset:{L_XL}")
    so = stats_ops(R+8, R+2)
    for o in so[:5]: a(o)
    a("s_waitcnt lgkmcnt(0)")
    mma4(vS, so[5:])
    gather4(vS+20)
    istore(f"global_store_dword v{vT+2}, v{vS+20}, {p(sWS)}")
    red_publish()
    stamp(13)
    a("s_branch L_next")
    a("L_final:")
    a(f"s_lshl_b32 s{sT}, s{sJP}, 7"); a(f"v_add_u32 v{vT+10}, s{sT}, v{vT+10}")
    setexec(0x5555555555555555)
    a(f"global_store_dword v{vT+10}, v{R}, {p(sOUT)}")
    setexec(-1)
    br("lg", sJP, 0, "L_noep")
    a(f"v_mov_b32 v{vT}, {EPO}"); a(f"v_mov_b32 v{vT+1}, s{sEP}")
    setexec(1)
    a(f"global_store_dword v{vT}, v{vT+1}, {p(sWS)}")
    setexec(-1)
    a("L_noep:")
    stamp(13)
    a("s_branch L_exit")

    a("L_next:")
    br("lg", sL, 0, "L_exit")
    if instr:
        a("s_waitcnt lgkmcnt(0)")
        for i in range(16): a(f"v_writelane_b32 v{vSTV}, s{sSTAMP+2*i}, {i}")
        for i in range(1, 16): a(f"s_mov_b32 s{sSTAMP+2*i}, 0")
    a(f"s_mov_b32 s{sL}, 1")
    a("s_branch L_att")
    for l1, l2, text in slow:
        a(f"{l1}:")
        a(text + " sc1")
        a(f"s_branch {l2}")
    a("L_exit:")
    if instr:
        setexec(-1)
        stamp(15)
        a("s_memrealtime s[62:63]")
        a("s_waitcnt lgkmcnt(0)")
        a(f"v_writelane_b32 v{vSTV}, s62, 35")
        for i in range(16): a(f"v_writelane_b32 v{vSTV}, s{sSTAMP+2*i}, {16+i}")
        a(f"v_writelane_b32 v{vSTV}, s60, 32")
        a(f"v_writelane_b32 v{vSTV}, s{sBUD}, 33")
        a(f"v_writelane_b32 v{vSTV}, s{sMODE}, 34")
        lin(sT, [(2, 2048), (sWAVE, 256)], STAMPS)
        a(f"v_add_u32 v{vT}, s{sT}, v{vL4}")
        a(f"global_store_dword v{vT}, v{vSTV}, {p(sWS)}")
    a("L_end:")
    a("s_endpgm")
    body = a.finish()
    if instr:
        init = "\n".join(f"    s_mov_b32 s{sSTAMP+2*i}, 0" for i in range(1, 16))
        body = body.replace("    s_load_dwordx16", init + "\n    s_load_dwordx16", 1)
    ref = open("interleave_layers__mha_block_cached__glu_gated_swiglu__decode.s.ref").read().split("\n")
    head = [l for l in ref if l.startswith(";") and "@launch" not in l]
    return "\n".join(head) + f"""
; @launch grid=(256,1,1) block=(512,1,1) lds={LDS_BYTES}
.amdgcn_target "amdgcn-amd-amdhsa--gfx950"
.text
.globl {NAME}
.p2align 8
.type {NAME},@function
{NAME}:
{body}
.section .rodata,"a"
.p2align 6
.amdhsa_kernel {NAME}
  .amdhsa_next_free_vgpr 256
  .amdhsa_next_free_sgpr 102
  .amdhsa_accum_offset 256
  .amdhsa_group_segment_fixed_size 0
  .amdhsa_kernarg_size 96
  .amdhsa_user_sgpr_count 2
  .amdhsa_user_sgpr_kernarg_segment_ptr 1
  .amdhsa_system_sgpr_workgroup_id_x 1
  .amdhsa_float_denorm_mode_32 3
.end_amdhsa_kernel
"""

if __name__ == "__main__":
    out = sys.argv[1]
    instr = "instr" in sys.argv[2:]
    opt = {}
    for x in sys.argv[2:]:
        if "=" in x:
            k, val = x.split("="); opt[k] = int(val)
    open(out, "w").write(gen(instr, opt))
```

```python
import sys, struct
from asmlib import Asm

NAME = "interleave_layers__mha_block_cached__glu_gated_swiglu__decode_kernel"
def f2u(x): return struct.unpack('<I', struct.pack('<f', x))[0]

PB = 0
OA = 512000
ST = OA + 131072
GF = ST + 8192
CF = GF + 16*17920
GQ1 = CF + 8*17920
XR = GQ1 + 8*20480
SX = XR + 24*2560
assert SX + 24*128 <= 256*5120
GQ0 = 256*5120
CQ = GQ0 + 8*20480
KQ = CQ + 8*20480
SX0 = KQ + 8*20480
ARR = SX0 + 4096
EPO = ARR + 8192
STAMPS = 2 << 20
L_MODE, L_FQ, L_STAT = 0, 16, 64
L_XL, L_QL, L_HL, L_PW, L_OP = 256, 512, 768, 2048, 4096
L_WA, L_W2 = 8192, 73728
LDS_BYTES = 106496
sX_, sK, sV, sWQ, sWO, sW1, sW3, sW2, sOUT, sDBG, sWS = 4, 6, 8, 10, 12, 16, 18, 20, 22, 24, 26
sWAVE, sGX, sJ, sJP, sL, sBUD, sMODE, sHEAD, sC, sROLE = 28, 29, 30, 31, 32, 33, 34, 35, 36, 37
sKB, sVB, sEP, sTAG = 38, 40, 42, 43
sPLO, sPHI, sM, sI, sW = 44, 45, 46, 47, 3
sT = 48
sSTAMP = 64
vLANE, vIA, vIP, vCSQ, vONE = 0, 1, 2, 3, 4
vROWL, vXA, vCSF, vL4 = 8, 9, 10, 11
vT = 12
vSTV = 31
vAT, vQ, vDA, vDB = 32, 48, 52, 56
vS, vW, vK, vV = 60, 96, 128, 192
ROLE_W, ROLE_F, ROLE_Q = 0, 1, 2
DPPF = "row_mask:0xf bank_mask:0xf"

def p(r): return f"s[{r}:{r+1}]"
def v(r, n=1): return f"v{r}" if n == 1 else f"v[{r}:{r+n-1}]"

def gen(instr=False, opt=None):
    opt = dict(opt or {})
    NT = "" if opt.get("nont") else " nt"
    a = Asm()
    uid = [0]
    slow = []
    def lab(s):
        uid[0] += 1
        return f"L_{s}_{uid[0]}"
    def stamp(i):
        if opt.get("x_pad") and opt.get("x_at", -1) % 100 == i:
            l = lab("xat")
            a(f"s_cselect_b32 s97, 1, 0")
            br("lg", sL, opt["x_at"] // 100, l)
            a("s_memrealtime s[62:63]")
            a(f"{l}:")
            a("s_cmp_lg_u32 s97, 0")
        if instr: a(f"s_memtime s[{sSTAMP+2*i}:{sSTAMP+2*i+1}]")
    def setexec(m):
        if m == -1: a("s_mov_b64 exec, -1"); return
        lo, hi = m & 0xffffffff, m >> 32
        if hi == 0 and lo < 0x80000000: a(f"s_mov_b64 exec, {lo:#x}")
        else: a(f"s_mov_b32 exec_lo, {lo:#x}"); a(f"s_mov_b32 exec_hi, {hi:#x}")
    def budget():
        a(f"s_sub_u32 s{sBUD}, s{sBUD}, 1")
        a("s_cbranch_scc1 L_exit")
    def br(cmp, x, y, target):
        a(f"s_cmp_{cmp}_u32 s{x}, {y}"); a(f"s_cbranch_scc1 {target}")
    def lin(dst, terms, const=0):
        first = True
        for reg, coef in terms:
            t = dst if first else sT + 11
            if coef == 1:
                if first: a(f"s_add_u32 s{dst}, s{reg}, {const}"); const = 0
                else: a(f"s_add_u32 s{dst}, s{dst}, s{reg}")
                first = False; continue
            if coef & (coef - 1) == 0: a(f"s_lshl_b32 s{t}, s{reg}, {coef.bit_length()-1}")
            else: a(f"s_mul_i32 s{t}, s{reg}, {coef}")
            if not first: a(f"s_add_u32 s{dst}, s{dst}, s{t}")
            first = False
        if const: a(f"s_add_u32 s{dst}, s{dst}, {const}")
    def maxchain(dst, regs, op="max"):
        regs = list(regs)
        if len(regs) == 1: return regs[0]
        if len(regs) == 2:
            a(f"v_{op}_u32 v{dst}, v{regs[0]}, v{regs[1]}"); return dst
        a(f"v_{op}3_u32 v{dst}, v{regs[0]}, v{regs[1]}, v{regs[2]}"); regs = regs[3:]
        while len(regs) >= 2:
            a(f"v_{op}3_u32 v{dst}, v{dst}, v{regs[0]}, v{regs[1]}"); regs = regs[2:]
        if regs: a(f"v_{op}_u32 v{dst}, v{dst}, v{regs[0]}")
        return dst
    def istore(text, mode=sMODE):
        l1, l2 = lab("slow"), lab("st")
        br("lg", mode, 1, l1)
        a(text)
        a(f"{l2}:")
        slow.append((l1, l2, text))
    def pack_pairs(r, tmp):
        a(f"v_mov_b32_dpp v{tmp}, v{r} quad_perm:[1,1,3,3] {DPPF}")
        a(f"v_cvt_pk_bf16_f32 v{r}, v{r}, v{tmp}")
    def tr128(base_s, ntile=4):
        a(f"v_lshlrev_b32 v{vT}, 7, v{vROWL}")
        a(f"v_bfe_u32 v{vT+1}, v{vROWL}, 2, 2"); a(f"v_lshl_add_u32 v{vT}, v{vT+1}, 5, v{vT}")
        a(f"v_and_b32 v{vT+1}, 3, v{vLANE}"); a(f"v_lshl_add_u32 v{vT}, v{vT+1}, 3, v{vT}")
        a(f"v_add_u32 v{vT}, s{base_s}, v{vT}")
        for t in range(ntile):
            if t: a(f"v_xor_b32 v{vT+1}, {32*t}, v{vT}")
            for hf in range(2):
                for eh in range(2):
                    a(f"ds_read_b64_tr_b16 {v(vW + 8*t + 4*hf + 2*eh, 2)}, v{vT + (1 if t else 0)} offset:{hf*4096 + eh*256}")
    def trq(unit=sWAVE):
        a(f"v_lshrrev_b32 v{vT+1}, 1, v{vROWL}"); a(f"v_and_b32 v{vT+1}, 6, v{vT+1}")
        a(f"v_and_or_b32 v{vT+1}, v{vROWL}, 1, v{vT+1}"); a(f"v_lshlrev_b32 v{vT+1}, 5, v{vT+1}")
        a(f"s_lshl_b32 s{sT}, s{unit}, 7"); a(f"v_xor_b32 v{vT+1}, s{sT}, v{vT+1}")
        a(f"v_lshl_add_u32 v{vT}, v{vROWL}, 10, v{vT+1}")
        a(f"v_and_b32 v{vT+1}, 3, v{vLANE}"); a(f"v_lshl_add_u32 v{vT}, v{vT+1}, 3, v{vT}")
        for t in range(4):
            if t: a(f"v_xor_b32 v{vT+1}, {32*t}, v{vT}")
            for hf in range(2):
                for eh in range(2):
                    a(f"ds_read_b64_tr_b16 {v(vW + 8*t + 4*hf + 2*eh, 2)}, v{vT + (1 if t else 0)} offset:{L_WA + hf*32768 + eh*2048}")
    D4 = vS + 4
    def zero_d4():
        for t in range(4): a(f"v_mov_b32 v{D4+4*t}, 0"); a(f"v_mov_b32 v{D4+4*t+1}, 0")
    def mma4(areg, fill=()):
        fill = list(fill)
        for t in range(4):
            a(f"v_smfmac_f32_16x16x64_bf16 {v(D4+4*t,4)}, {v(areg,4)}, {v(vW+8*t,8)}, v{vIA}")
            if fill: a(fill.pop(0))
        for f in fill: a(f)
    def gather4(dst):
        a(f"v_add_f32 v{dst}, v{D4}, v{D4+1}")
        for t in range(1, 4):
            a(f"v_add_f32_dpp v{dst}, v{D4+4*t}, v{D4+4*t+1} quad_perm:[0,1,2,3] row_mask:{1<<t:#x} bank_mask:0xf")
    def stats_ops(x, t):
        o = [f"v_mul_f32 v{t+1}, v{x}, v{x}", f"v_mov_b32 v{t}, v{x}",
             f"v_permlane32_swap_b32 v{t}, v{t+1}", f"v_add_f32 v{t}, v{t}, v{t+1}"]
        o += [f"v_add_f32_dpp v{t}, v{t}, v{t} row_ror:{s} {DPPF}" for s in (8, 4, 2, 1)]
        o += [f"v_add_f32_dpp v{t}, v{t}, v{t} row_bcast:15 row_mask:0xa bank_mask:0xf"]
        return o
    STATX = (1 << 16) | (1 << 48)
    def stat_addr(dst, sreg):
        a(f"v_lshrrev_b32 v{dst}, 5, v{vLANE}"); a(f"v_lshl_add_u32 v{dst}, v{dst}, 6, s{sreg}")

    G = vS
    def sum10():
        a(f"v_pk_add_f32 {v(G,2)}, {v(G,2)}, {v(G+2,2)}")
        a(f"v_pk_add_f32 {v(G+4,2)}, {v(G+4,2)}, {v(G+6,2)}")
        a(f"v_pk_add_f32 {v(G,2)}, {v(G,2)}, {v(G+8,2)}")
        a(f"v_pk_add_f32 {v(G,2)}, {v(G,2)}, {v(G+4,2)}")
    def colsum_poll(areg, dst, sleep):
        l, l2 = lab("cp"), lab("cpd")
        a(f"{l}:")
        for t in range(10): a(f"global_load_dword v{G+t}, v{areg}, {p(sWS)} offset:{t*256} sc1")
        budget()
        a("s_waitcnt vmcnt(0)")
        t = maxchain(G+12, range(G, G+10))
        a(f"v_cmp_eq_u32 vcc, -1, v{t}")
        a(f"s_cbranch_vccz {l2}")
        a(f"s_sleep {sleep}")
        a(f"s_branch {l}")
        a(f"{l2}:")
        sum10()
        a(f"v_add_f32 v{dst}, v{G}, v{G+1}")
    def consume(areg, sreg_v, cs, scale=None, st=None, first_cs=None):
        a(f"v_mov_b32 v{G+10}, 0"); a(f"v_mov_b32 v{G+11}, 0")
        def loads():
            for t in range(10): a(f"global_load_dword v{G+t}, v{areg}, {p(sWS)} offset:{t*256} sc1")
            setexec(0x03ff03ff03ff03ff)
            a(f"global_load_dword v{G+10}, v{sreg_v}, {p(sWS)} sc1")
            a(f"global_load_dword v{G+11}, v{sreg_v}, {p(sWS)} offset:64 sc1")
            setexec(-1)
            budget()
            a("s_waitcnt vmcnt(0)")
        l, ld = lab("gp"), lab("gd")
        if first_cs is not None:
            l0, l1 = lab("g0"), lab("g0d")
            br("lg", sL, 0, l)
            a(f"v_mov_b32 v{G+32}, s{sTAG}"); a(f"v_mov_b32 v{G+33}, s{sTAG}")
            a(f"{l0}:")
            for t in range(10): a(f"global_load_dword v{G+12+t}, v{first_cs}, {p(sWS)} offset:{t*256} sc1")
            for t in range(10): a(f"global_load_dword v{G+22+t}, v{first_cs+1}, {p(sWS)} offset:{t*256} sc1")
            setexec(0x03ff03ff03ff03ff)
            a(f"global_load_dword v{G+32}, v{sreg_v}, {p(sWS)} offset:128 sc1")
            a(f"global_load_dword v{G+33}, v{sreg_v}, {p(sWS)} offset:192 sc1")
            setexec(-1)
            loads()
            a(f"v_bitop3_b32 v{G+34}, v{G+10}, v{G+32}, s{sTAG} bitop3:0x96")
            a(f"v_bitop3_b32 v{G+35}, v{G+11}, v{G+33}, s{sTAG} bitop3:0x96")
            a(f"v_or_b32 v{G+34}, v{G+34}, v{G+35}")
            for t in range(10):
                a(f"v_bitop3_b32 v{G+35}, v{G+t}, v{G+12+t}, v{G+22+t} bitop3:0x96")
                a(f"v_xor_b32 v{G+35}, s{sTAG}, v{G+35}")
                a(f"v_or_b32 v{G+34}, v{G+34}, v{G+35}")
            a(f"v_cmp_ne_u32 vcc, 0, v{G+34}")
            a(f"s_cbranch_vccz {l1}")
            a("s_sleep 10")
            a(f"s_branch {l0}")
            a(f"{l1}:")
            a(f"v_add_f32 v{cs}, v{G+12}, v{G+13}")
            for t in range(2, 10): a(f"v_add_f32 v{cs}, v{cs}, v{G+12+t}")
            a(f"s_branch {ld}")
        a(f"{l}:")
        loads()
        t = maxchain(G+12, range(G, G+12))
        a(f"v_cmp_eq_u32 vcc, -1, v{t}")
        a(f"s_cbranch_vccnz {l}")
        a(f"{ld}:")
        if st is not None: stamp(st)
        pk = [f"v_pk_add_f32 {v(G,2)}, {v(G,2)}, {v(G+2,2)}", f"v_pk_add_f32 {v(G+4,2)}, {v(G+4,2)}, {v(G+6,2)}",
              f"v_pk_add_f32 {v(G,2)}, {v(G,2)}, {v(G+8,2)}", f"v_pk_add_f32 {v(G,2)}, {v(G,2)}, {v(G+4,2)}"]
        for s, f in zip((8, 4, 2, 1), pk):
            a(f"v_add_f32_dpp v{G+10}, v{G+10}, v{G+10} row_ror:{s} {DPPF}")
            a(f"v_add_f32_dpp v{G+11}, v{G+11}, v{G+11} row_ror:{s} {DPPF}")
            a(f)
        a(f"v_mul_f32 v{G+10}, {f2u(1/640):#x}, v{G+10}")
        a(f"v_mul_f32 v{G+11}, {f2u(1/640):#x}, v{G+11}")
        a(f"v_fma_f32 v{G+11}, -v{G+10}, v{G+10}, v{G+11}")
        a(f"v_max_f32 v{G+11}, 0, v{G+11}")
        a(f"v_add_f32 v{G+11}, {f2u(1e-5):#x}, v{G+11}")
        a(f"v_rsq_f32 v{G+11}, v{G+11}")
        a(f"v_add_f32 v{G}, v{G}, v{G+1}")
        a(f"v_fma_f32 v{G}, -v{G+10}, v{cs}, v{G}")
        if scale: a(f"v_mul_f32 v{G}, {f2u(scale):#x}, v{G}")
        a(f"v_mul_f32 v{G}, v{G}, v{G+11}")
    CSC = 1.4426950408889634 * (128 ** -0.5)

    R = vS + 24
    def red(kodd, st):
        lin(sT, [(sL, 160), (sGX, 10), (sJP, 1)], 80*kodd)
        a(f"s_lshl_b32 s{sT}, s{sT}, 11")
        a(f"v_add_u32 v{vT+8}, s{sT}, v{vL4}")
        a(f"v_mov_b32 v{vT+11}, 0")
        lres = lab("res")
        if not kodd:
            l0 = lab("r0")
            br("lg", sL, 0, l0)
            a(f"s_lshl_b32 s{sT}, s{sJP}, 7"); a(f"v_lshl_add_u32 v{vT+9}, v{vLANE}, 1, s{sT}")
            a(f"v_mov_b32 v{R+8}, 0")
            a(f"global_load_short_d16_hi v{R+8}, v{vT+9}, {p(sX_)}")
            a(f"s_branch {lres}")
            a(f"{l0}:")
        lin(sT, [(sL, 16*2560), (sGX, 2560), (sJP, 256)], XR + (kodd - 1)*8*2560)
        a(f"v_add_u32 v{vT+9}, s{sT}, v{vL4}")
        l = lab("rr")
        a(f"{l}:")
        a(f"global_load_dword v{R+8}, v{vT+9}, {p(sWS)} sc1")
        budget()
        a("s_waitcnt vmcnt(0)")
        a(f"v_cmp_eq_u32 vcc, -1, v{R+8}")
        a(f"s_cbranch_vccnz {l}")
        a(f"{lres}:")
        l = lab("ro")
        a(f"{l}:")
        a(f"global_load_dword v{R}, v{vT+8}, {p(sWS)} sc1")
        budget()
        a("s_waitcnt vmcnt(0)")
        a(f"v_cmp_eq_u32 vcc, -1, v{R}")
        a(f"s_cbranch_vccnz {l}")
        if opt.get("red_delay", 0): a(f"s_sleep {opt['red_delay']}")
        l, l2 = lab("rp"), lab("rc")
        for t in range(1, 8): a(f"global_load_dword v{R+t}, v{vT+8}, {p(sWS)} offset:{t*256} sc1")
        a(f"v_add_f32 v{R+8}, v{R+8}, v{R}")
        a(f"s_branch {l2}")
        a(f"{l}:")
        for t in range(1, 8):
            if opt.get("red_atomic", 1):
                a(f"global_atomic_add v{R+t}, v{vT+8}, v{vT+11}, {p(sWS)} offset:{t*256} sc0")
            else:
                a(f"global_load_dword v{R+t}, v{vT+8}, {p(sWS)} offset:{t*256} sc1")
        budget()
        a(f"{l2}:")
        a("s_waitcnt vmcnt(0)")
        t = maxchain(R, range(R+1, R+8))
        a(f"v_cmp_eq_u32 vcc, -1, v{t}")
        a(f"v_pk_add_f32 {v(R+2,2)}, {v(R+2,2)}, {v(R+4,2)}")
        a(f"s_cbranch_vccnz {l}")
        stamp(st)
        a(f"v_add_f32 v{R+8}, v{R+8}, v{R+1}")
        a(f"v_pk_add_f32 {v(R+2,2)}, {v(R+2,2)}, {v(R+6,2)}")
        a(f"v_add_f32 v{R+8}, v{R+8}, v{R+2}")
        a(f"v_add_f32 v{R}, v{R+8}, v{R+3}")
        a(f"v_cvt_pk_bf16_f32 v{R+8}, v{R}, v{R}")
        pack_pairs(R, R+1)
    def red_relay():
        setexec(0x5555555555555555)
        a(f"ds_write_b32 v{vT+10}, v{R} offset:{L_XL}")
        setexec(-1)
        a(f"v_and_b32 v{R+8}, 0xffff0000, v{R+8}")
        a("s_waitcnt lgkmcnt(0)")
    def red_addrs(kodd):
        a(f"v_lshlrev_b32 v{vT+10}, 1, v{vLANE}")
        lin(sT, [(sL, 16*2560), (sGX, 2560), (sJP, 256)], XR + kodd*8*2560)
        a(f"v_add_u32 v{vT+12}, s{sT}, v{vL4}")
        lin(sT, [(sL, 16*128), (sGX, 128), (sJP, 4)], SX + kodd*8*128)
        stat_addr(vT+13, sT)
    def red_publish():
        setexec(STATX)
        istore(f"global_store_dword v{vT+13}, v{R+2}, {p(sWS)}")
        setexec(-1)
        istore(f"global_store_dword v{vT+12}, v{R+8}, {p(sWS)}")
    def dma_loop(n, body):
        l = lab("dma")
        a(f"s_mov_b32 s{sI}, s{sWAVE}")
        a(f"{l}:")
        body()
        a(f"s_add_u32 s{sI}, s{sI}, 3")
        br("lt", sI, n, l)
    def rows8_off(dst, stride):
        a(f"v_lshrrev_b32 v{dst}, 3, v{vLANE}"); a(f"v_mul_u32_u24 v{dst}, {stride}, v{dst}")
        a(f"v_and_b32 v{dst+1}, 7, v{vLANE}"); a(f"v_lshlrev_b32 v{dst+1}, 4, v{dst+1}")
        a(f"v_and_b32 v{dst+2}, 32, v{vLANE}"); a(f"v_xor_b32 v{dst+1}, v{dst+1}, v{dst+2}")
        a(f"v_add_u32 v{dst}, v{dst}, v{dst+1}")
    def rows8_body(base, src, stride, lds):
        def body():
            a(f"s_lshl_b32 s{sT+1}, s{sI}, 10"); a(f"s_add_u32 m0, s{sT+1}, {lds}")
            a(f"s_and_b32 s{sT+1}, s{sI}, 1"); a(f"s_lshl_b32 s{sT+1}, s{sT+1}, 6")
            a(f"s_mul_i32 s{sT+2}, s{sI}, {8*stride}"); a(f"s_add_u32 s{sT+2}, s{sT+2}, s{base}")
            a(f"v_xor_b32 v{vT+1}, s{sT+1}, v{vT}")
            a(f"v_add_u32 v{vT+1}, s{sT+2}, v{vT+1}")
            a(f"global_load_lds_dwordx4 v{vT+1}, {p(src)}{NT}")
        return body

    br("ge", 2, 256, "L_end")
    if instr:
        a(f"s_memrealtime s[60:61]")
        stamp(0)
    if opt.get("x_pad"):
        a("s_memrealtime s[60:61]"); a("s_memrealtime s[62:63]")
    a("s_load_dwordx16 s[4:19], s[0:1], 0")
    a("s_load_dwordx8 s[20:27], s[0:1], 64")
    if opt.get("cpf", 0):
        a(f"s_getpc_b64 s[{sT+8}:{sT+9}]")
        a("L_pc:")
        a(f"v_lshlrev_b32 v{vT+18}, 6, v0")
        a(f"v_cmp_gt_u32 vcc, L_end-L_pc, v{vT+18}")
        a(f"s_and_saveexec_b64 s[{sT+10}:{sT+11}], vcc")
        a("s_cbranch_execz L_nocpf")
        a(f"global_load_dword v{vT+18}, v{vT+18}, s[{sT+8}:{sT+9}]")
        a("L_nocpf:")
        setexec(-1)
    a(f"v_lshrrev_b32 v{vT}, 6, v0")
    a(f"v_and_b32 v{vLANE}, 63, v0")
    a(f"v_readfirstlane_b32 s{sWAVE}, v{vT}")
    a(f"s_and_b32 s{sGX}, s2, 7"); a(f"s_lshr_b32 s{sJ}, s2, 3")
    a(f"v_lshlrev_b32 v{vL4}, 2, v{vLANE}")
    a(f"v_mov_b32 v{vDA}, -1"); a(f"v_mov_b32 v{vT+1}, 0")
    a(f"ds_write_b32 v{vL4}, v{vDA}")
    a(f"ds_write_b32 v{vL4}, v{vT+1} offset:{L_HL+256}")
    a(f"s_mov_b32 s{sL}, 0"); a(f"s_mov_b32 s{sBUD}, 100000"); a(f"s_mov_b32 s{sMODE}, 2")
    lin(sT, [(sGX, 32), (sJ, 1)])
    a(f"s_lshr_b32 s{sHEAD}, s{sT}, 3"); a(f"s_and_b32 s{sC}, s{sJ}, 7")
    a(f"s_and_b32 s{sW}, s{sWAVE}, 3"); a(f"s_lshr_b32 s{sT+1}, s{sWAVE}, 2")
    lin(sT, [(sT, 131072), (sT+1, 65536), (sW, 2048)])
    a(f"s_mul_i32 s{sROLE}, s{sJ}, 26"); a(f"s_lshr_b32 s{sROLE}, s{sROLE}, 8")
    a(f"s_mul_i32 s{sJP}, s{sROLE}, 10"); a(f"s_sub_u32 s{sJP}, s{sJ}, s{sJP}")
    if opt.get("x_norole"): a(f"s_mov_b32 s{sROLE}, 3")
    vG, vN = vT+4, vT+5
    vKA, vKB_, vVA, vVB_ = vT+14, vT+15, vT+16, vT+17
    a(f"v_lshrrev_b32 v{vG}, 4, v{vLANE}"); a(f"v_and_b32 v{vN}, 15, v{vLANE}")
    a(f"v_and_b32 v{vKA}, 7, v{vLANE}"); a(f"v_lshlrev_b32 v{vKA}, 8, v{vKA}")
    a(f"v_and_b32 v{vT}, 8, v{vLANE}"); a(f"v_lshl_add_u32 v{vKA}, v{vT}, 3, v{vKA}")
    a(f"v_lshl_add_u32 v{vKA}, v{vG}, 4, v{vKA}")
    a(f"v_lshlrev_b32 v{vVA}, 13, v{vG}"); a(f"v_lshl_add_u32 v{vVA}, v{vN}, 4, v{vVA}")
    a(f"v_add_u32 v{vVB_}, 32768, v{vVA}")
    a(f"v_and_b32 v{vT}, 1, v{vLANE}")
    a(f"v_mul_u32_u24 v{vIA}, 0xaaaa, v{vT}"); a(f"v_add_u32 v{vIA}, 0x4444, v{vIA}")
    a(f"v_mul_u32_u24 v{vIP}, 0x5555, v{vT}"); a(f"v_add_u32 v{vIP}, 0x8888, v{vIP}")
    a(f"v_lshlrev_b32 v{vXA}, 4, v{vT}"); a(f"v_lshl_add_u32 v{vXA}, v{vG}, 5, v{vXA}")
    for r in range(4): a(f"v_mov_b32 v{vONE+r}, 0x3f803f80")
    a(f"v_lshrrev_b32 v{vROWL}, 5, v{vLANE}"); a(f"v_lshlrev_b32 v{vROWL}, 4, v{vROWL}")
    a(f"v_and_b32 v{vT}, 1, v{vG}"); a(f"v_lshl_add_u32 v{vROWL}, v{vT}, 2, v{vROWL}")
    a(f"v_bfe_u32 v{vT}, v{vLANE}, 2, 1"); a(f"v_add_u32 v{vROWL}, v{vROWL}, v{vT}")
    a(f"v_and_b32 v{vT}, 8, v{vLANE}"); a(f"v_add_u32 v{vROWL}, v{vROWL}, v{vT}")
    for r in (6, 7, 9, 10): a(f"v_mov_b32 v{vT+r}, 0")
    if instr: a(f"v_mov_b32 v{vSTV}, 0")
    a(f"s_mov_b32 s{sPLO}, 0x05040100"); a(f"s_mov_b32 s{sPHI}, 0x07060302")
    a(f"s_mul_i32 s{sT+1}, s2, 5120"); a(f"s_add_u32 s{sT+1}, s{sT+1}, 1024")
    a(f"v_lshl_add_u32 v{vT}, v{vLANE}, 4, s{sT+1}")
    for r in range(1, 4): a(f"v_mov_b32 v{vDA+r}, -1")
    a(f"s_mov_b32 s{sT+1}, {EPO}")
    a("s_waitcnt lgkmcnt(0)")
    a(f"s_load_dword s{sEP}, {p(sWS)}, s{sT+1}")
    br("lg", sWAVE, 99 if opt.get("x_noclr") else 7, "L_noclr0")
    for t in range(5): a(f"global_store_dwordx4 v{vT}, {v(vDA,4)}, {p(sWS)} offset:{(t-1)*1024} {['sc1', '', 'sc1 nt'][opt.get('x_cfl', 0)]}")
    a("L_noclr0:")
    a(f"s_add_u32 s{sKB}, s{sK}, s{sT}"); a(f"s_addc_u32 s{sKB+1}, s{sK+1}, 0")
    a(f"s_add_u32 s{sVB}, s{sV}, s{sT}"); a(f"s_addc_u32 s{sVB+1}, s{sV+1}, 0")
    a("s_barrier")
    def epoch():
        a("s_waitcnt lgkmcnt(0)")
        a(f"s_getreg_b32 s{sT+1}, hwreg(HW_REG_XCC_ID, 0, 3)")
        a(f"s_and_b32 s{sEP}, s{sEP}, -8"); a(f"s_add_u32 s{sEP}, s{sEP}, 8")
        a(f"s_mul_i32 s{sTAG}, s{sEP}, 0x9e3779b1"); a(f"s_xor_b32 s{sTAG}, s{sTAG}, 0x5bd1e995")
        a(f"s_or_b32 s{sEP}, s{sEP}, s{sT+1}")
    if opt.get("x_stop"): stamp(13)
    br("lt", sWAVE, 4, "L_kv")
    a("s_setprio 3")
    br("lg", sROLE, ROLE_Q, "L_nowq")
    a(f"s_and_b32 s{sT+1}, s{sW}, 1")
    lin(sT, [(sJP, 64*8192), (sGX, 1024), (sW, 8192)])
    a(f"s_lshl_b32 s{sT+1}, s{sT+1}, 5")
    a(f"v_lshlrev_b32 v{vT}, 4, v{vLANE}"); a(f"v_xor_b32 v{vT}, s{sT+1}, v{vT}"); a(f"v_add_u32 v{vT}, s{sT}, v{vT}")
    lin(sT+4, [(sW, 1024)], L_WA)
    for i in range(16):
        a(f"s_add_u32 m0, s{sT+4}, {i*4096}")
        a(f"v_xor_b32 v{vT+2}, {i*32768 + 64*(i & 3)}, v{vT}")
        a(f"global_load_lds_dwordx4 v{vT+2}, {p(sWQ)}{NT}")
    a(f"s_lshl_b32 s{sT}, s{sJP}, 7")
    a(f"v_add_u32 v{vT}, s{sT}, v{vXA}")
    a(f"global_load_dwordx4 {v(vS,4)}, v{vT}, {p(sX_)}")
    a(f"v_lshl_add_u32 v{vT}, v{vLANE}, 1, s{sT}")
    a(f"v_mov_b32 v{R+8}, 0")
    a(f"global_load_short_d16_hi v{R+8}, v{vT}, {p(sX_)}")
    a("L_nowq:")
    epoch()
    br("lg", sWAVE, 7, "L_noarr")
    lin(sT, [(sGX, 512), (sJ, 16)], ARR)
    a(f"v_mov_b32 v{vT}, s{sT}"); a(f"v_mov_b32 v{vT+1}, s{sEP}")
    br("eq", sROLE, ROLE_Q, "L_arrq")
    a("s_waitcnt vmcnt(0)")
    a("L_arrq:")
    a("s_waitcnt vmcnt(18)")
    setexec(1)
    a(f"global_store_dword v{vT}, v{vT+1}, {p(sWS)} sc1")
    setexec(-1)
    br("lg", sROLE, ROLE_Q, "L_hand")
    a("s_waitcnt vmcnt(1)")
    a("s_branch L_wql")
    a("L_noarr:")
    br("lg", sROLE, ROLE_Q, "L_hand")
    a("s_waitcnt vmcnt(0)")
    a("L_wql:")
    stamp(1)
    a(f"s_lshl_b32 s{sT}, s{sW}, 2"); a(f"v_mov_b32 v{vT}, s{sT}"); a(f"v_mov_b32 v{vT+1}, 0")
    a(f"ds_write_b32 v{vT}, v{vT+1} offset:{L_FQ}")
    a("L_wqs:")
    a(f"ds_read_b128 {v(vS+20,4)}, v{vT+1} offset:{L_FQ}")
    budget()
    a("s_waitcnt lgkmcnt(0)")
    t = maxchain(vS+20, range(vS+20, vS+24))
    a(f"v_cmp_ne_u32 vcc, 0, v{t}")
    a("s_cbranch_vccnz L_wqs")
    a(f"s_mov_b32 s{sI}, s{sW}")
    a("L_q0l:")
    trq(sI)
    zero_d4()
    lin(sT, [(sGX, 20480), (sI, 2560), (sJP, 256)], GQ0)
    a(f"v_add_u32 v{vT+2}, s{sT}, v{vL4}")
    a(f"v_add_u32 v{vT+3}, {CQ-GQ0}, v{vT+2}")
    a(f"v_add_u32 v{vT+4}, {KQ-GQ0}, v{vT+2}")
    a("s_waitcnt lgkmcnt(0)")
    mma4(vS)
    gather4(vS+20)
    zero_d4()
    mma4(vONE)
    gather4(vS+21)
    a(f"v_bitop3_b32 v{vS+22}, v{vS+20}, v{vS+21}, s{sTAG} bitop3:0x96")
    for t in range(0 if opt.get("x_noqst") else 3): a(f"global_store_dword v{vT+2+t}, v{vS+20+t}, {p(sWS)} {['sc1', '', 'sc1 nt'][opt.get('x_qfl', 0)]}")
    a(f"s_add_u32 s{sI}, s{sI}, 4")
    br("lt", sI, 8, "L_q0l")
    stamp(14)
    br("lg", sWAVE, 6, "L_hand")
    for o in stats_ops(R+8, R+2): a(o)
    lin(sT, [(sGX, 256), (sJP, 4)], SX0)
    stat_addr(vT+1, sT)
    a(f"v_xor_b32 v{R+3}, s{sTAG}, v{R+2}")
    setexec(STATX)
    a(f"global_store_dword v{vT+1}, v{R+2}, {p(sWS)} sc1")
    a(f"global_store_dword v{vT+1}, v{R+3}, {p(sWS)} offset:128 sc1")
    setexec(-1)
    a("L_hand:")
    a("s_setprio 0")
    a("s_barrier")

    a("L_kv:")
    def stream(win):
        def gap(i, op=None):
            if op: a(op)
            if win and win - 1 <= i < 31 - opt.get("tail", 0): a(f"s_waitcnt vmcnt({win-1})")
            elif not op and i < 31: a("s_nop 0")
        for i in range(16):
            u, hf = i >> 1, i & 1
            a(f"global_load_dwordx4 {v(vK+8*u+4*hf,4)}, v{vKA}, {p(sKB)} offset:{hf*128}{NT}")
            gap(i, f"v_add_u32 v{vKA}, 8192, v{vKA}" if hf else None)
        for i, t in enumerate(list(range(8, 16)) + list(range(8))):
            d = vV + 8*(t-8) if t >= 8 else vW + 4*t
            a(f"global_load_dwordx4 {v(d,4)}, v{vVB_ if t >= 8 else vVA}, {p(sVB)} offset:{(t&7)*256}{NT}")
            gap(16 + i)
    wins = [opt.get("ww", 6), opt.get("wf", 5), opt.get("wq", 0)]
    if wins[0] != wins[1]: br("eq", sROLE, ROLE_W, "L_kvw")
    if wins[2] != wins[1]: br("eq", sROLE, ROLE_Q, "L_kvw" if wins[2] == wins[0] else "L_kvq")
    stream(wins[1])
    if wins[0] != wins[1]:
        a("s_branch L_kvd"); a("L_kvw:"); stream(wins[0])
    if wins[2] != wins[1] and wins[2] != wins[0]:
        a("s_branch L_kvd"); a("L_kvq:"); stream(wins[2])
    a("L_kvd:")
    br("ge", sWAVE, 4, "L_nohand")
    if opt.get("hand", 0): a(f"s_waitcnt vmcnt({opt['hand']})")
    a("s_barrier")
    a("s_setprio 2")
    epoch()
    a("L_nohand:")
    stamp(4)
    for r in range(16): a(f"v_mov_b32 v{vAT+r}, 0")
    def vperm():
        for grp in (1, 0):
            for tp in range(4):
                a(f"s_waitcnt vmcnt({(14 if grp else 6) - 2*tp})")
                for e in range(8):
                    if grp: s1, s0 = vV + 8*(2*tp) + (e >> 1), vV + 8*(2*tp+1) + (e >> 1)
                    else:   s1, s0 = vW + 4*(2*tp) + (e >> 1), vW + 4*(2*tp+1) + (e >> 1)
                    a(f"v_perm_b32 v{vV + 8*e + 4*grp + tp}, v{s0}, v{s1}, s{sPHI if e & 1 else sPLO}")
    br("ge", sWAVE, 4, "L_att")
    br("lt", sWAVE, 0 if opt.get("x_nogather") else 2, "L_qcons")
    br("lg", sWAVE, 99 if opt.get("x_noarr") else 2, "L_perm")
    a(f"s_lshl_b32 s{sT}, s{sGX}, 9")
    a(f"v_lshl_add_u32 v{vT}, v{vLANE}, 4, s{sT}")
    for t in range(4):
        a(f"v_add_u32 v{vT+4+t}, {1024*t}, v{vT}"); a(f"v_and_b32 v{vT+4+t}, 4095, v{vT+4+t}"); a(f"v_add_u32 v{vT+4+t}, {ARR}, v{vT+4+t}")
    a("L_bar:")
    for t in range(4): a(f"global_load_dword v{vT+8+t}, v{vT+4+t}, {p(sWS)} sc1")
    budget()
    a("s_waitcnt vmcnt(0)")
    for t in range(4): a(f"v_xor_b32 v{vT+8+t}, s{sEP}, v{vT+8+t}")
    t = maxchain(vT+12, range(vT+8, vT+12))
    a(f"v_cmp_lt_u32 vcc, 7, v{t}")
    a("s_cbranch_vccz L_bard")
    a(f"s_sleep {opt.get('bar1', 10)}")
    a("s_branch L_bar")
    a("L_bard:")
    stamp(3)
    a(f"v_cmp_ne_u32 vcc, 0, v{vT+8}")
    a(f"s_cmp_eq_u32 vcc_lo, 0")
    a(f"s_cselect_b32 s{sT}, {2 if opt.get('force_slow') else 1}, 2")
    a(f"v_mov_b32 v{vT+9}, s{sT}"); a(f"v_mov_b32 v{vT+3}, 0")
    a(f"ds_write_b32 v{vT+3}, v{vT+9} offset:{L_MODE}")
    a("L_perm:")
    vperm()
    br("ge", sWAVE, 4, "L_pv")

    a("L_att:")
    for r in range(8): a(f"v_mov_b32 v{vDA+r}, 0")
    a(f"v_lshrrev_b32 v{vT}, 4, v{vLANE}"); a(f"v_lshlrev_b32 v{vT}, 6, v{vT}")
    a(f"v_and_b32 v{vT+1}, 3, v{vLANE}"); a(f"v_lshl_add_u32 v{vT}, v{vT+1}, 4, v{vT}")
    a(f"s_lshl_b32 s{sT}, s{sWAVE}, 9"); a(f"v_lshl_add_u32 v{vT+2}, v{vLANE}, 5, s{sT}")
    lin(sT, [(sWAVE, 4), (sL, 64)], L_STAT); a(f"v_mov_b32 v{vT+3}, s{sT}")
    a(f"v_mov_b32 v{vT+1}, 0")
    COMB = 3
    lin(sT, [(sL, 64)], L_STAT)
    a(f"v_and_b32 v{vT+9}, 28, v{vL4}"); a(f"v_add_u32 v{vT+8}, s{sT}, v{vT+9}")
    a(f"s_lshr_b32 s{sT+1}, s{sC}, 1"); a(f"s_and_b32 s{sT+2}, s{sC}, 1")
    lin(sT, [(sL, 65536), (sHEAD, 2048), (sT+1, 256), (sT+2, 32)], OA)
    a(f"v_add_u32 v{vT+9}, s{sT}, v{vT+9}")
    a(f"v_bfe_u32 v{vT+10}, v{vLANE}, 3, 2"); a(f"v_lshl_add_u32 v{vT+9}, v{vT+10}, 6, v{vT+9}")
    a(f"v_lshrrev_b32 v{vT+10}, 5, v{vLANE}"); a(f"v_lshl_add_u32 v{vT+9}, v{vT+10}, 10, v{vT+9}")
    lin(sT, [(sL, 4096), (sHEAD, 128), (sC, 4)], ST)
    a(f"v_lshl_add_u32 v{vT+10}, v{vT+10}, 5, s{sT}")
    a(f"v_lshlrev_b32 v{vT+11}, 3, v{vLANE}")
    br("eq", sL, 0, "L_attb")
    br("ge", sWAVE, 2, "L_attb")
    a("L_qcons:")
    stamp(2)
    q0 = vT + 4
    a(f"s_lshr_b32 s{sT+1}, s{sJ}, 3"); a(f"s_and_b32 s{sT+2}, s{sWAVE}, 1")
    a(f"s_cmp_eq_u32 s{sL}, 0")
    a(f"s_mov_b32 s{sT+3}, {GQ1}"); a(f"s_mov_b32 s{sT+4}, {SX + 8*128}")
    a(f"s_cselect_b32 s{sT+3}, {GQ0}, s{sT+3}"); a(f"s_cselect_b32 s{sT+4}, {SX0}, s{sT+4}")
    a(f"s_cselect_b32 s{sT+5}, 8, 7"); a(f"s_lshl_b32 s{sT+5}, s{sGX}, s{sT+5}")
    lin(sT, [(sGX, 20480), (sT+1, 5120), (sT+2, 2560), (sT+3, 1)])
    a(f"v_add_u32 v{q0}, s{sT}, v{vL4}")
    lin(sT, [(sT+5, 1), (sT+4, 1)])
    a(f"v_and_b32 v{q0+1}, 60, v{vL4}"); a(f"v_add_u32 v{q0+1}, s{sT}, v{q0+1}")
    a(f"v_bfe_u32 v{q0+2}, v{vLANE}, 4, 1"); a(f"v_lshlrev_b32 v{q0+2}, 6, v{q0+2}")
    a(f"v_and_b32 v{q0+3}, 44, v{vLANE}"); a(f"v_add_u32 v{q0+2}, v{q0+2}, v{q0+3}")
    a(f"v_and_b32 v{q0+3}, 2, v{vLANE}"); a(f"v_lshl_add_u32 v{q0+2}, v{q0+3}, 3, v{q0+2}")
    a(f"s_lshl_b32 s{sT}, s{sT+2}, 7"); a(f"v_add_u32 v{q0+2}, s{sT}, v{q0+2}")
    a(f"v_add_u32 v{q0+3}, {CQ-GQ0}, v{q0}"); a(f"v_add_u32 v{q0+4}, {KQ-GQ0}, v{q0}")
    consume(q0, q0+1, vCSQ, CSC, st=3, first_cs=q0+3)
    pack_pairs(G, G+1)
    setexec(0x5555555555555555)
    a(f"ds_write_b32 v{q0+2}, v{G} offset:{L_QL}")
    setexec(-1)
    br("eq", sL, 0, "L_perm")
    a("L_attb:")
    a("s_waitcnt vmcnt(16) lgkmcnt(0)")
    a("s_barrier")
    a(f"ds_read_b128 {v(vQ,4)}, v{vT} offset:{L_QL}")
    a(f"ds_read_b32 v{vT+4}, v{vT+1} offset:{L_MODE}")
    a("s_waitcnt lgkmcnt(0)")
    stamp(5)
    for m in range(4):
        a(f"v_mov_b32_dpp v{vAT+m}, v{vQ+m} quad_perm:[0,1,2,3] row_mask:0xf bank_mask:0x1")
    for T in range(4):
        if T < 3:
            for m in range(2): a(f"v_mov_b32_dpp v{vAT+4*(T+1)+m}, v{vQ+m} quad_perm:[0,1,2,3] row_mask:0xf bank_mask:{2<<T:#x}")
        a(f"v_smfmac_f32_16x16x64_bf16 {v(vDA,4)}, {v(vAT+4*T,4)}, {v(vK+16*T,8)}, v{vIA}")
        if T < 3:
            for m in range(2, 4): a(f"v_mov_b32_dpp v{vAT+4*(T+1)+m}, v{vQ+m} quad_perm:[0,1,2,3] row_mask:0xf bank_mask:{2<<T:#x}")
        a(f"v_smfmac_f32_16x16x64_bf16 {v(vDB,4)}, {v(vAT+4*T,4)}, {v(vK+16*T+8,8)}, v{vIA}")
    a(f"v_readfirstlane_b32 s{sMODE}, v{vT+4}")
    own, oth, mx = vT+4, vT+5, vT+6
    idq = "quad_perm:[0,1,2,3] row_mask:0xf"
    zs = [f"v_mov_b32 v{vS+4*e+r}, 0" for e in range(8) for r in range(2)]
    def z(n):
        for _ in range(n):
            if zs: a(zs.pop(0))
    z(6)
    a(f"v_add_f32 v{oth}, v{vDA+2}, v{vDA+3}")
    a(f"v_add_f32 v{own}, v{vDA}, v{vDA+1}")
    z(1)
    a(f"v_add_f32_dpp v{oth}, v{vDB}, v{vDB+1} {idq} bank_mask:0x3")
    a(f"v_add_f32_dpp v{own}, v{vDB+2}, v{vDB+3} {idq} bank_mask:0xc")
    z(2)
    a(f"v_add_f32_dpp v{own}, v{oth}, v{own} row_ror:8 {DPPF}")
    z(2)
    a(f"v_max_f32_dpp v{mx}, v{own}, v{own} row_ror:8 {DPPF}")
    for s in (4, 2, 1):
        z(2)
        a(f"v_max_f32_dpp v{mx}, v{mx}, v{mx} row_ror:{s} {DPPF}")
    assert not zs
    a(f"v_max_f32_dpp v{mx}, v{mx}, v{mx} row_bcast:15 row_mask:0xa bank_mask:0xf")
    a(f"v_max_f32_dpp v{mx}, v{mx}, v{mx} row_bcast:31 row_mask:0xc bank_mask:0xf")
    a(f"v_readlane_b32 s{sM}, v{mx}, 63")
    a(f"v_subrev_f32 v{own}, s{sM}, v{own}")
    a(f"v_exp_f32 v{own}, v{own}")
    a(f"v_mov_b32 v{mx}, s{sM}")
    a(f"ds_write_b32 v{vT+3}, v{mx}")
    a(f"v_mov_b32_dpp v{oth}, v{own} row_shl:2 {DPPF} bound_ctrl:0")
    a(f"v_cvt_pk_bf16_f32 v{vQ}, v{own}, v{oth}")
    a(f"s_lshl_b32 s{sT}, s{sL}, 3"); a(f"s_sub_i32 s{sT}, s{sWAVE}, s{sT}")
    for m in range(1, 4):
        a(f"v_mov_b32_dpp v{vQ+m}, v{vQ} row_shl:{4*m} {DPPF} bound_ctrl:0")
    a(f"s_cmp_ge_i32 s{sT}, 4")
    stamp(6)
    a("s_cbranch_scc1 L_perm")
    a("L_pv:")
    stamp(7)
    a(f"v_mfma_f32_16x16x32_bf16 {v(vS+32,4)}, {v(vQ,4)}, {v(vONE,4)}, 0")
    for e in range(8):
        a(f"v_smfmac_f32_16x16x64_bf16 {v(vS+4*e,4)}, {v(vQ,4)}, {v(vV+8*e,8)}, v{vIP}")
    setexec(0xffff)
    a(f"v_add_f32 v{mx+1}, v{vS+32}, v{vS+33}")
    for e in range(8):
        a(f"v_add_f32 v{vDA+e}, v{vS+4*e}, v{vS+4*e+1}")
        if e == 3: a(f"ds_write_b128 v{vT+2}, {v(vDA,4)} offset:{L_OP}")
    a(f"ds_write_b128 v{vT+2}, {v(vDB,4)} offset:{L_OP+16}")
    a(f"ds_write_b32 v{vT+3}, v{mx+1} offset:32")
    setexec(-1)
    stamp(8)
    if opt.get("x_stop"): a("s_branch L_exit")
    br("lg", sWAVE, COMB, "L_nocomb")
    C = vS
    a("L_cm:")
    a(f"ds_read_b32 v{C+16}, v{vT+8}")
    budget()
    a("s_waitcnt lgkmcnt(0)")
    a(f"v_cmp_eq_u32 vcc, -1, v{C+16}")
    a("s_cbranch_vccnz L_cm")
    def red8(op, dst, src):
        a(f"v_{op}_f32_dpp v{dst}, v{src}, v{src} quad_perm:[1,0,3,2] {DPPF}")
        a(f"v_{op}_f32_dpp v{dst}, v{dst}, v{dst} quad_perm:[2,3,0,1] {DPPF}")
        a(f"v_{op}_f32_dpp v{dst}, v{dst}, v{dst} row_half_mirror {DPPF}")
    red8("max", C+18, C+16)
    a(f"v_sub_f32 v{C+16}, v{C+16}, v{C+18}")
    a(f"v_exp_f32 v{C+16}, v{C+16}")
    a("L_cs:")
    a(f"ds_read_b32 v{C+17}, v{vT+8} offset:32")
    for w in range(8): a(f"ds_read_b64 {v(C+2*w,2)}, v{vT+11} offset:{L_OP + 512*w}")
    budget()
    a("s_waitcnt lgkmcnt(0)")
    a(f"v_cmp_eq_u32 vcc, -1, v{C+17}")
    a("s_cbranch_vccnz L_cs")
    a(f"v_mul_f32 v{C+17}, v{C+16}, v{C+17}")
    for r in range(4): a(f"v_mul_f32_dpp v{C+r}, v{C+16}, v{C+r} row_newbcast:{r>>1} {DPPF}")
    lsteps = ["quad_perm:[1,0,3,2]", "quad_perm:[2,3,0,1]", "row_half_mirror"]
    for w in range(2, 8):
        o = 2*(w & 1)
        a(f"v_fmac_f32_dpp v{C+o}, v{C+16}, v{C+2*w} row_newbcast:{w} {DPPF}")
        a(f"v_fmac_f32_dpp v{C+o+1}, v{C+16}, v{C+2*w+1} row_newbcast:{w} {DPPF}")
    a(f"v_pk_add_f32 {v(C,2)}, {v(C,2)}, {v(C+2,2)}")
    a(f"v_add_f32_dpp v{C+17}, v{C+17}, v{C+17} {lsteps[0]} {DPPF}")
    a(f"v_cvt_pk_bf16_f32 v{C}, v{C}, v{C+1}")
    a(f"v_min_u32 v{C}, -2, v{C}")
    a(f"v_add_f32_dpp v{C+17}, v{C+17}, v{C+17} {lsteps[1]} {DPPF}")
    istore(f"global_store_dword v{vT+9}, v{C}, {p(sWS)}")
    a(f"v_add_f32_dpp v{C+18}, v{C+17}, v{C+17} {lsteps[2]} row_mask:0xc bank_mask:0xf")
    setexec(0x0000000100000001)
    istore(f"global_store_dword v{vT+10}, v{C+18}, {p(sWS)}")
    setexec(-1)
    stamp(9)
    a("L_nocomb:")
    br("eq", sROLE, ROLE_F, "L_roleF")
    br("eq", sROLE, ROLE_Q, "L_roleQ")
    br("lg", sROLE, ROLE_W, "L_next")

    br("lg", sL, 0, "L_w1")
    br("ge", sWAVE, 3, "L_w0b")
    rows8_off(vT, 1280)
    lin(sT, [(sGX, 512*1280), (sJP, 128)])
    dma_loop(64, rows8_body(sT, sWO, 1280, L_WA))
    a("s_waitcnt vmcnt(0)")
    a("L_w0b:")
    a("s_barrier")
    lin(sT, [(sWAVE, 8192)], L_WA)
    tr128(sT)
    a("L_w1:")
    SM = vS + 20
    for t in range(4):
        for r in range(4): a(f"v_mov_b32 v{D4+4*t+r}, 0")
    a(f"s_lshr_b32 s{sT+1}, s{sWAVE}, 1")
    lin(sT, [(sL, 65536), (sGX, 8192), (sWAVE, 1024)], OA)
    a(f"v_and_b32 v{vT+1}, 3, v{vLANE}"); a(f"v_lshl_add_u32 v{vT+1}, v{vT+1}, 4, s{sT}")
    a(f"v_lshrrev_b32 v{vT+2}, 4, v{vLANE}"); a(f"v_lshl_add_u32 v{vT+1}, v{vT+2}, 6, v{vT+1}")
    a(f"v_bfe_u32 v{vT+3}, v{vLANE}, 2, 2"); a(f"v_lshl_add_u32 v{vT+1}, v{vT+3}, 8, v{vT+1}")
    lin(sT, [(sL, 4096), (sGX, 512), (sT+1, 128)], ST)
    a(f"v_lshl_add_u32 v{vT+3}, v{vT+2}, 1, v{vLANE}"); a(f"v_and_b32 v{vT+3}, 7, v{vT+3}")
    a(f"v_lshl_add_u32 v{vT+3}, v{vT+3}, 2, s{sT}")
    a(f"v_lshlrev_b32 v{vT+6}, 4, v{vLANE}")
    a(f"s_lshr_b32 s{sT+1}, s{sWAVE}, 2"); a(f"s_and_b32 s{sT+2}, s{sWAVE}, 3")
    lin(sT, [(sT+1, 1024), (sT+2, 4)])
    a(f"v_add_u32 v{vT+5}, s{sT}, v{vT+6}")
    a(f"s_sub_u32 s{sT+1}, s{sGX}, s{sWAVE}"); a(f"s_and_b32 s{sT+1}, s{sT+1}, 7")
    lin(sT, [(sL, 160*2048), (sWAVE, 10*2048), (sJP, 2048), (sT+1, 256)])
    a(f"v_add_u32 v{vT+7}, s{sT}, v{vL4}")
    a(f"s_cmp_eq_u32 s{sT+1}, 0"); a(f"s_cselect_b32 s{sT+8}, s{sMODE}, 2")
    a("L_wop:")
    a(f"global_load_dword v{SM}, v{vT+3}, {p(sWS)} sc1")
    a(f"global_load_dword v{SM+1}, v{vT+3}, {p(sWS)} offset:32 sc1")
    a(f"global_load_dwordx4 {v(vS,4)}, v{vT+1}, {p(sWS)} sc1")
    budget()
    a("s_waitcnt vmcnt(0) lgkmcnt(0)")
    t = maxchain(vT+4, list(range(vS, vS+4)) + [SM, SM+1])
    a(f"v_cmp_eq_u32 vcc, -1, v{t}")
    a("s_cbranch_vccnz L_wop")
    stamp(10)
    mma4(vS, [f"v_max_f32_dpp v{SM+2}, v{SM}, v{SM} quad_perm:[1,0,3,2] {DPPF}",
              f"v_max_f32_dpp v{SM+2}, v{SM+2}, v{SM+2} quad_perm:[2,3,0,1] {DPPF}",
              f"v_max_f32_dpp v{SM+2}, v{SM+2}, v{SM+2} row_half_mirror {DPPF}"])
    a(f"v_sub_f32 v{SM}, v{SM}, v{SM+2}")
    a(f"v_exp_f32 v{SM}, v{SM}")
    a(f"v_mul_f32 v{SM+1}, v{SM}, v{SM+1}")
    a(f"v_mov_b32_dpp v{SM+2}, v{SM} row_newbcast:0 {DPPF}")
    a(f"v_mov_b32_dpp v{SM+3}, v{SM} row_newbcast:1 {DPPF}")
    a(f"v_add_f32_dpp v{SM+1}, v{SM+1}, v{SM+1} {lsteps[0]} {DPPF}")
    for t in range(4):
        a(f"v_pk_mul_f32 {v(D4+4*t,2)}, {v(D4+4*t,2)}, {v(SM+2,2)} op_sel_hi:[1,0]")
        if t == 1: a(f"v_add_f32_dpp v{SM+1}, v{SM+1}, v{SM+1} {lsteps[1]} {DPPF}")
    a(f"v_add_f32_dpp v{SM+1}, v{SM+1}, v{SM+1} {lsteps[2]} {DPPF}")
    for t in range(4):
        a(f"v_pk_fma_f32 {v(D4+4*t,2)}, {v(D4+4*t+2,2)}, {v(SM+2,2)}, {v(D4+4*t,2)} op_sel:[0,1,0]")
    a(f"v_rcp_f32 v{SM+1}, v{SM+1}")
    for t in range(4): a(f"v_add_f32 v{D4+4*t}, v{D4+4*t}, v{D4+4*t+1}")
    a(f"v_permlane32_swap_b32 v{D4}, v{D4+8}")
    a(f"v_permlane32_swap_b32 v{D4+4}, v{D4+12}")
    a(f"v_add_f32 v{D4}, v{D4}, v{D4+8}")
    a(f"v_add_f32 v{D4+4}, v{D4+4}, v{D4+12}")
    a(f"v_permlane16_swap_b32 v{D4}, v{D4+4}")
    a(f"v_add_f32 v{D4}, v{D4}, v{D4+4}")
    a(f"v_mul_f32 v{D4}, v{D4}, v{SM+1}")
    a(f"ds_write_b32 v{vT+5}, v{D4} offset:{L_PW}")
    a("s_waitcnt lgkmcnt(0)")
    a("s_barrier")
    a(f"ds_read_b128 {v(R,4)}, v{vT+6} offset:{L_PW}")
    a(f"ds_read_b128 {v(R+4,4)}, v{vT+6} offset:{L_PW+1024}")
    a("s_waitcnt lgkmcnt(0)")
    a(f"v_pk_add_f32 {v(R,2)}, {v(R,2)}, {v(R+2,2)}")
    a(f"v_pk_add_f32 {v(R+4,2)}, {v(R+4,2)}, {v(R+6,2)}")
    a(f"v_pk_add_f32 {v(R,2)}, {v(R,2)}, {v(R+4,2)}")
    a(f"v_add_f32 v{R}, v{R}, v{R+1}")
    br("eq", sT+8, 1, "L_wown")
    a(f"global_store_dword v{vT+7}, v{R}, {p(sWS)} sc1")
    stamp(11)
    a("s_branch L_next")
    a("L_wown:")
    a(f"global_store_dword v{vT+7}, v{R}, {p(sWS)}")
    stamp(11)
    a("s_branch L_next")

    a("L_roleF:")
    lin(sT+4, [(sGX, 17920), (sWAVE, 2560), (sJP, 256)])
    br("lg", sL, 0, "L_f1")
    br("ge", sWAVE, 3, "L_f0b")
    a(f"v_cmp_lt_u32 vcc, 26, v{vLANE}")
    a(f"v_mov_b32 v{vT+1}, {3456 - 432}")
    a(f"v_cndmask_b32 v{vT}, 0, v{vT+1}, vcc")
    a(f"v_lshl_add_u32 v{vT}, v{vLANE}, 4, v{vT}")
    lin(sT, [(sJP, 64*3456), (sGX, 432)])
    a(f"v_add_u32 v{vT}, s{sT}, v{vT}")
    setexec((1 << 54) - 1)
    def fbody():
        a(f"s_mul_i32 s{sT+1}, s{sI}, 864"); a(f"s_add_u32 m0, s{sT+1}, {L_WA}")
        a(f"s_and_b32 s{sT+1}, s{sI}, 31"); a(f"s_mul_i32 s{sT+1}, s{sT+1}, {2*3456}")
        a(f"s_cmp_lt_u32 s{sI}, 32")
        a(f"s_cselect_b64 s[{sT+2}:{sT+3}], {p(sW1)}, {p(sW3)}")
        a(f"v_add_u32 v{vT+1}, s{sT+1}, v{vT}")
        a(f"global_load_lds_dwordx4 v{vT+1}, s[{sT+2}:{sT+3}]{NT}")
    dma_loop(64, fbody)
    setexec(-1)
    a("s_waitcnt vmcnt(0)")
    a("L_f0b:")
    a("s_barrier")
    stamp(10)
    br("eq", sWAVE, 7, "L_f1")
    a(f"v_mul_u32_u24 v{vT}, 432, v{vROWL}")
    a(f"v_and_b32 v{vT+1}, 3, v{vLANE}"); a(f"v_lshl_add_u32 v{vT}, v{vT+1}, 3, v{vT}")
    lin(sT, [(sWAVE, 64)], L_WA)
    a(f"v_add_u32 v{vT}, s{sT}, v{vT}")
    for t in range(4):
        for hf in range(2):
            for eh in range(2):
                a(f"ds_read_b64_tr_b16 {v(vW + 8*t + 4*hf + 2*eh, 2)}, v{vT} offset:{(t>>1)*27648 + (t&1)*32 + (32*hf + 2*eh)*432}")
    zero_d4()
    a(f"s_add_u32 s{sT}, s{sT+4}, {CF}"); a(f"v_add_u32 v{vT+2}, s{sT}, v{vL4}")
    a("s_waitcnt lgkmcnt(0)")
    mma4(vONE)
    gather4(vS+20)
    a(f"v_min_u32 v{vS+20}, -2, v{vS+20}")
    istore(f"global_store_dword v{vT+2}, v{vS+20}, {p(sWS)}")
    a("L_f1:")
    br("eq", sWAVE, 7, "L_fred")
    zero_d4()
    lin(sT, [(sL, 8*17920), (sT+4, 1)], GF)
    a(f"v_add_u32 v{vT+2}, s{sT}, v{vL4}")
    a("s_barrier")
    a(f"ds_read_b128 {v(vS,4)}, v{vXA} offset:{L_XL}")
    a("s_waitcnt lgkmcnt(0)")
    mma4(vS)
    gather4(vS+20)
    a(f"v_min_u32 v{vS+20}, -2, v{vS+20}")
    istore(f"global_store_dword v{vT+2}, v{vS+20}, {p(sWS)}")
    stamp(12)
    a("s_branch L_next")
    a("L_fred:")
    red_addrs(0)
    red(0, 11)
    red_relay()
    a("s_barrier")
    for o in stats_ops(R+8, R+2): a(o)
    red_publish()
    stamp(12)
    a("s_branch L_next")

    a("L_roleQ:")
    lin(sT+4, [(sGX, 17920), (sWAVE, 2560)])
    br("lg", sL, 0, "L_rq1")
    br("ge", sWAVE, 3, "L_q0z")
    rows8_off(vT, 1280)
    lin(sT, [(sGX, 216*1280), (sJP, 128)])
    dma_loop(27, rows8_body(sT, sW2, 1280, L_W2))
    a("s_waitcnt vmcnt(0)")
    a("s_branch L_q0b")
    a("L_q0z:")
    for r in range(4): a(f"v_mov_b32 v{vS+24+r}, 0")
    lin(sT, [(sWAVE, 1024)], L_W2 + 24*1024)
    a(f"v_lshl_add_u32 v{vT}, v{vLANE}, 4, s{sT}")
    a(f"ds_write_b128 v{vT}, {v(vS+24,4)}")
    a("s_waitcnt lgkmcnt(0)")
    a("L_q0b:")
    a("s_barrier")
    br("eq", sWAVE, 7, "L_rq1")
    a(f"s_add_u32 s{sT}, s{sT+4}, {CF}"); a(f"v_add_u32 v{vT}, s{sT}, v{vL4}")
    colsum_poll(vT, vCSF, 4)
    a("L_rq1:")
    H, D2 = vS + 16, vS + 32
    br("lt", sWAVE, 4, "L_now2")
    a(f"s_and_b32 s{sT+1}, s{sWAVE}, 3")
    a(f"v_lshlrev_b32 v{vT}, 7, v{vROWL}")
    a(f"v_bfe_u32 v{vT+1}, v{vROWL}, 2, 2"); a(f"v_xor_b32 v{vT+1}, s{sT+1}, v{vT+1}"); a(f"v_lshl_add_u32 v{vT}, v{vT+1}, 5, v{vT}")
    a(f"v_and_b32 v{vT+1}, 3, v{vLANE}"); a(f"v_lshl_add_u32 v{vT}, v{vT+1}, 3, v{vT}")
    a(f"v_add_u32 v{vT}, {L_W2}, v{vT}")
    for st in range(4):
        for hf in range(2):
            for eh in range(2):
                a(f"ds_read_b64_tr_b16 {v(vW + 8*st + 4*hf + 2*eh,2)}, v{vT} offset:{st*8192 + hf*4096 + eh*256}")
    a(f"v_mov_b32 v{D2}, 0"); a(f"v_mov_b32 v{D2+1}, 0")
    lin(sT, [(sL, 160*2048), (sJP, 2048), (sT+1, 64)], 80*2048)
    a(f"v_and_b32 v{vT+5}, 60, v{vL4}"); a(f"v_add_u32 v{vT+5}, s{sT}, v{vT+5}")
    a(f"v_lshrrev_b32 v{vT+4}, 4, v{vLANE}")
    for i, top in enumerate((7, 3)):
        a(f"v_sub_u32 v{vT+8}, {top}, v{vT+4}")
        a(f"v_sub_u32 v{vT+9}, s{sGX}, v{vT+8}"); a(f"v_and_b32 v{vT+9}, 7, v{vT+9}")
        a(f"v_mul_u32_u24 v{vT+9}, 20480, v{vT+9}"); a(f"v_lshl_add_u32 v{vT+9}, v{vT+8}, 8, v{vT+9}")
        a(f"v_add_u32 v{vT+6+i}, v{vT+5}, v{vT+9}")
    a(f"s_lshl_b32 s{sT}, s{sGX}, 8"); a(f"v_add_u32 v{vT+5}, s{sT}, v{vT+5}")
    a(f"s_cmp_eq_u32 s{sGX}, 0"); a(f"s_cselect_b32 s{sT+8}, s{sMODE}, 2")
    br("eq", sWAVE, 7, "L_hb")
    a("L_now2:")
    lin(sT, [(sL, 8*17920), (sT+4, 1)], GF)
    a(f"v_add_u32 v{vT}, s{sT}, v{vL4}")
    lin(sT, [(sL, 16*128), (sGX, 128)], SX)
    a(f"v_and_b32 v{vT+1}, 60, v{vL4}"); a(f"v_add_u32 v{vT+1}, s{sT}, v{vT+1}")
    a(f"s_lshl_b32 s{sT}, s{sWAVE}, 6"); a(f"v_lshl_add_u32 v{vT+2}, v{vLANE}, 1, s{sT}")
    a(f"s_cmp_eq_u32 s{sWAVE}, 6"); a(f"s_mov_b32 s{sT+9}, 0x55555555"); a(f"s_cselect_b32 s{sT+9}, 0x555555, s{sT+9}")
    consume(vT, vT+1, vCSF, None, st=10)
    a(f"v_mov_b32 v{G+1}, v{G}")
    a(f"v_mul_f32 v{G+2}, {f2u(-1.4426950408889634):#x}, v{G}")
    a(f"v_exp_f32 v{G+2}, v{G+2}")
    a(f"v_permlane32_swap_b32 v{G}, v{G+1}")
    a(f"v_add_f32 v{G+2}, 1.0, v{G+2}")
    a(f"v_rcp_f32 v{G+2}, v{G+2}")
    a(f"v_mul_f32 v{G}, v{G}, v{G+1}")
    a(f"v_mul_f32 v{G}, v{G}, v{G+2}")
    pack_pairs(G, G+1)
    a(f"s_mov_b32 exec_lo, s{sT+9}"); a("s_mov_b32 exec_hi, 0")
    a(f"ds_write_b32 v{vT+2}, v{G} offset:{L_HL}")
    setexec(-1)
    a("L_hb:")
    a("s_waitcnt lgkmcnt(0)")
    a("s_barrier")
    br("lt", sWAVE, 4, "L_nopush")
    for st in range(4): a(f"ds_read_b128 {v(H+4*st,4)}, v{vXA} offset:{L_HL + 128*st}")
    for st in range(4):
        a(f"s_waitcnt lgkmcnt({0 if instr else 3-st})")
        a(f"v_smfmac_f32_16x16x64_bf16 {v(D2,4)}, {v(H+4*st,4)}, {v(vW+8*st,8)}, v{vIA}")
    br("lg", sL, 0, "L_push1")
    a(f"v_add_f32 v{D2}, v{D2}, v{D2+1}")
    a(f"global_store_dword v{vT+6}, v{D2}, {p(sWS)} sc1")
    a("s_mov_b32 exec_hi, 0xffff")
    a(f"global_store_dword v{vT+7}, v{D2}, {p(sWS)} sc1")
    setexec(0xffff << 48)
    istore(f"global_store_dword v{vT+7}, v{D2}, {p(sWS)}")
    setexec(-1)
    stamp(11)
    a("s_branch L_nopush")
    a("L_push1:")
    setexec(0xffff)
    a(f"v_add_f32 v{D2}, v{D2}, v{D2+1}")
    istore(f"global_store_dword v{vT+5}, v{D2}, {p(sWS)}", mode=sT+8)
    setexec(-1)
    stamp(11)
    a("s_branch L_exit")
    a("L_nopush:")
    REDW = 3
    br("lg", sL, 0, "L_last")
    trq()
    zero_d4()
    lin(sT, [(sGX, 20480), (sWAVE, 2560), (sJP, 256)], GQ1)
    a(f"v_add_u32 v{vT+2}, s{sT}, v{vL4}")
    br("eq", sWAVE, REDW, "L_qred")
    a("s_barrier")
    a(f"ds_read_b128 {v(vS,4)}, v{vXA} offset:{L_XL}")
    a("s_waitcnt lgkmcnt(0)")
    mma4(vS)
    gather4(vS+20)
    istore(f"global_store_dword v{vT+2}, v{vS+20}, {p(sWS)}")
    stamp(13)
    a("s_branch L_next")
    a("L_last:")
    br("lg", sGX, 0, "L_exit")
    br("lg", sWAVE, REDW, "L_exit")
    a("L_qred:")
    red_addrs(1)
    red(1, 12)
    br("lg", sL, 0, "L_final")
    red_relay()
    a("s_barrier")
    a(f"ds_read_b128 {v(vS,4)}, v{vXA} offset:{L_XL}")
    so = stats_ops(R+8, R+2)
    for o in so[:5]: a(o)
    a("s_waitcnt lgkmcnt(0)")
    mma4(vS, so[5:])
    gather4(vS+20)
    istore(f"global_store_dword v{vT+2}, v{vS+20}, {p(sWS)}")
    red_publish()
    stamp(13)
    a("s_branch L_next")
    a("L_final:")
    a(f"s_lshl_b32 s{sT}, s{sJP}, 7"); a(f"v_add_u32 v{vT+10}, s{sT}, v{vT+10}")
    setexec(0x5555555555555555)
    a(f"global_store_dword v{vT+10}, v{R}, {p(sOUT)}")
    setexec(-1)
    br("lg", sJP, 0, "L_noep")
    a(f"v_mov_b32 v{vT}, {EPO}"); a(f"v_mov_b32 v{vT+1}, s{sEP}")
    setexec(1)
    a(f"global_store_dword v{vT}, v{vT+1}, {p(sWS)}")
    setexec(-1)
    if opt.get("x_pad"):
        if opt.get("x_at", -1) == 199: a("s_memrealtime s[62:63]")
        a("s_waitcnt lgkmcnt(0)")
        a("s_sub_u32 s62, s62, s60"); a("s_lshl_b32 s62, s62, 2"); a(f"s_add_u32 s62, s62, {opt['x_pad']*100}")
        a("L_xp:")
        a("s_memrealtime s[64:65]"); a("s_waitcnt lgkmcnt(0)")
        a("s_sub_u32 s64, s64, s60"); a("s_cmp_lt_u32 s64, s62"); a("s_cbranch_scc1 L_xp")
    a("L_noep:")
    stamp(13)
    a("s_branch L_exit")

    a("L_next:")
    br("lg", sL, 0, "L_exit")
    if instr:
        a("s_waitcnt lgkmcnt(0)")
        for i in range(16): a(f"v_writelane_b32 v{vSTV}, s{sSTAMP+2*i}, {i}")
        for i in range(1, 16): a(f"s_mov_b32 s{sSTAMP+2*i}, 0")
    a(f"s_mov_b32 s{sL}, 1")
    a("s_branch L_att")
    for l1, l2, text in slow:
        a(f"{l1}:")
        a(text + " sc1")
        a(f"s_branch {l2}")
    a("L_exit:")
    if instr:
        setexec(-1)
        stamp(15)
        a("s_memrealtime s[62:63]")
        a("s_waitcnt lgkmcnt(0)")
        a(f"v_writelane_b32 v{vSTV}, s62, 35")
        for i in range(16): a(f"v_writelane_b32 v{vSTV}, s{sSTAMP+2*i}, {16+i}")
        a(f"v_writelane_b32 v{vSTV}, s60, 32")
        a(f"v_writelane_b32 v{vSTV}, s{sBUD}, 33")
        a(f"v_writelane_b32 v{vSTV}, s{sMODE}, 34")
        lin(sT, [(2, 2048), (sWAVE, 256)], STAMPS)
        a(f"v_add_u32 v{vT}, s{sT}, v{vL4}")
        a(f"global_store_dword v{vT}, v{vSTV}, {p(sWS)}")
    a("L_end:")
    a("s_endpgm")
    body = a.finish()
    if instr:
        init = "\n".join(f"    s_mov_b32 s{sSTAMP+2*i}, 0" for i in range(1, 16))
        body = body.replace("    s_load_dwordx16", init + "\n    s_load_dwordx16", 1)
    ref = open("interleave_layers__mha_block_cached__glu_gated_swiglu__decode.s.ref").read().split("\n")
    head = [l for l in ref if l.startswith(";") and "@launch" not in l]
    return "\n".join(head) + f"""
; @launch grid=(256,1,1) block=(512,1,1) lds={LDS_BYTES}
.amdgcn_target "amdgcn-amd-amdhsa--gfx950"
.text
.globl {NAME}
.p2align 8
.type {NAME},@function
{NAME}:
{body}
.section .rodata,"a"
.p2align 6
.amdhsa_kernel {NAME}
  .amdhsa_next_free_vgpr 256
  .amdhsa_next_free_sgpr 102
  .amdhsa_accum_offset 256
  .amdhsa_group_segment_fixed_size 0
  .amdhsa_kernarg_size 96
  .amdhsa_user_sgpr_count 2
  .amdhsa_user_sgpr_kernarg_segment_ptr 1
  .amdhsa_system_sgpr_workgroup_id_x 1
  .amdhsa_float_denorm_mode_32 3
.end_amdhsa_kernel
"""

if __name__ == "__main__":
    out = sys.argv[1]
    instr = "instr" in sys.argv[2:]
    opt = {}
    for x in sys.argv[2:]:
        if "=" in x:
            k, val = x.split("="); opt[k] = int(val)
    open(out, "w").write(gen(instr, opt))
```

```python
import sys, struct
from asmlib import Asm

NAME = "interleave_layers__mha_block_cached__glu_gated_swiglu__decode_kernel"
def f2u(x): return struct.unpack('<I', struct.pack('<f', x))[0]

GS, GCLR = 204800, 98304
OA = 0
ST = 16384
GF = 17408
GQ1 = 53248
XR = 73728
PO = 81408
SX = 91648
GQ0 = GCLR
CQ = GQ0 + 65536
CF = CQ + 20480
assert SX + 384 <= GCLR and CF + 17920 <= GS
PB = 8*GS
ARR = PB + 250*2048
ARR2 = ARR + 4096
EPO = ARR + 12288
STAMPS = 3 << 20
L_MODE, L_STAT = 0, 64
L_XL, L_QL, L_HL, L_PW, L_OP = 256, 512, 768, 2048, 4096
L_WA, L_W2 = 8192, 73728
LDS_BYTES = 106496
sW = 3
sX_, sK, sV, sWQ, sWO, sGB, sW1, sW3, sW2, sOUT, sDBG, sWS = 4, 6, 8, 10, 12, 14, 16, 18, 20, 22, 24, 26
sWAVE, sGX, sJ, sJP, sL, sBUD, sMODE, sHH, sC, sROLE = 28, 29, 30, 31, 32, 33, 34, 35, 36, 37
sKB, sVB, sEP, sTAG = 38, 40, 42, 43
sPLO, sPHI, sM, sI = 44, 45, 46, 47
sT = 48
sSTAMP = 64
vLANE, vIA, vIP, vCSQ, vONE = 0, 1, 2, 3, 4
vROWL, vXA, vCSF, vL4 = 8, 9, 10, 11
vT = 12
vSTV = 31
vAT, vQ, vDA, vDB = 32, 48, 52, 56
vS, vW, vK, vV = 60, 96, 128, 192
ROLE_W, ROLE_F, ROLE_Q = 0, 1, 2
DPPF = "row_mask:0xf bank_mask:0xf"
LOG2E = 1.4426950408889634

def p(r): return f"s[{r}:{r+1}]"
def v(r, n=1): return f"v{r}" if n == 1 else f"v[{r}:{r+n-1}]"

def gen(instr=False, opt=None):
    opt = dict(opt or {})
    lite = opt.get("lite", 0)
    NT = "" if opt.get("nont") else " nt"
    a = Asm()
    uid = [0]
    slow = []
    def lab(s):
        uid[0] += 1
        return f"L_{s}_{uid[0]}"
    def br(cmp, x, y, target):
        a(f"s_cmp_{cmp}_u32 s{x}, {y}"); a(f"s_cbranch_scc1 {target}")
    def stamp(i):
        if opt.get("x_pad") and opt.get("x_at", -1) % 100 == i:
            l = lab("xat")
            a(f"s_cselect_b32 s97, 1, 0")
            br("lg", sL, opt["x_at"] // 100, l)
            a("s_memrealtime s[62:63]")
            a(f"{l}:")
            a("s_cmp_lg_u32 s97, 0")
        if instr: a(f"s_memtime s[{sSTAMP+2*i}:{sSTAMP+2*i+1}]")
    SM_ = instr or opt.get("x_pad")
    def lgkm(n): a(f"s_waitcnt lgkmcnt({0 if SM_ else n})")
    def setexec(m):
        if m == -1: a("s_mov_b64 exec, -1"); return
        lo, hi = m & 0xffffffff, m >> 32
        if hi == 0 and lo < 0x80000000: a(f"s_mov_b64 exec, {lo:#x}")
        else: a(f"s_mov_b32 exec_lo, {lo:#x}"); a(f"s_mov_b32 exec_hi, {hi:#x}")
    def budget():
        a(f"s_sub_u32 s{sBUD}, s{sBUD}, 1")
        a("s_cbranch_scc1 L_exit")
    def lin(dst, terms, const=0):
        first = True
        for reg, coef in terms:
            t = dst if first else sT + 11
            if coef == 1:
                if first: a(f"s_add_u32 s{dst}, s{reg}, {const}"); const = 0
                else: a(f"s_add_u32 s{dst}, s{dst}, s{reg}")
                first = False; continue
            if coef & (coef - 1) == 0: a(f"s_lshl_b32 s{t}, s{reg}, {coef.bit_length()-1}")
            else: a(f"s_mul_i32 s{t}, s{reg}, {coef}")
            if not first: a(f"s_add_u32 s{dst}, s{dst}, s{t}")
            first = False
        if const: a(f"s_add_u32 s{dst}, s{dst}, {const}")
    def maxchain(dst, regs, op="max"):
        regs = list(regs)
        if len(regs) == 1: return regs[0]
        if len(regs) == 2:
            a(f"v_{op}_u32 v{dst}, v{regs[0]}, v{regs[1]}"); return dst
        a(f"v_{op}3_u32 v{dst}, v{regs[0]}, v{regs[1]}, v{regs[2]}"); regs = regs[3:]
        while len(regs) >= 2:
            a(f"v_{op}3_u32 v{dst}, v{dst}, v{regs[0]}, v{regs[1]}"); regs = regs[2:]
        if regs: a(f"v_{op}_u32 v{dst}, v{dst}, v{regs[0]}")
        return dst
    def modecmp(): a(f"s_cmp_lg_u32 s{sMODE}, 1")
    def istore(text, cmp=True):
        l1, l2 = lab("slow"), lab("st")
        if cmp: modecmp()
        a(f"s_cbranch_scc1 {l1}")
        a(text)
        a(f"{l2}:")
        slow.append((l1, l2, text))
    def pack_pairs(r, tmp):
        a(f"v_mov_b32_dpp v{tmp}, v{r} quad_perm:[1,1,3,3] {DPPF}")
        a(f"v_cvt_pk_bf16_f32 v{r}, v{r}, v{tmp}")
    def tr4(off_hf, off_eh, base=0):
        for t in range(4):
            if t: a(f"v_xor_b32 v{vT+1}, {32*t}, v{vT}")
            for hf in range(2):
                for eh in range(2):
                    a(f"ds_read_b64_tr_b16 {v(vW + 8*t + 4*hf + 2*eh, 2)}, v{vT + (1 if t else 0)} offset:{base + hf*off_hf + eh*off_eh}")
    def trq(unit):
        a(f"v_lshrrev_b32 v{vT+1}, 1, v{vROWL}"); a(f"v_and_b32 v{vT+1}, 6, v{vT+1}")
        a(f"v_and_or_b32 v{vT+1}, v{vROWL}, 1, v{vT+1}"); a(f"v_lshlrev_b32 v{vT+1}, 5, v{vT+1}")
        a(f"s_lshl_b32 s{sT}, s{unit}, 7"); a(f"v_xor_b32 v{vT+1}, s{sT}, v{vT+1}")
        a(f"v_lshl_add_u32 v{vT}, v{vROWL}, 10, v{vT+1}")
        a(f"v_and_b32 v{vT+1}, 3, v{vLANE}"); a(f"v_lshl_add_u32 v{vT}, v{vT+1}, 3, v{vT}")
        tr4(32768, 2048, L_WA)
    D4 = vS + 4
    def zero_d4():
        for t in range(4): a(f"v_mov_b32 v{D4+4*t}, 0"); a(f"v_mov_b32 v{D4+4*t+1}, 0")
    def mma4(areg, fill=()):
        fill = list(fill)
        for t in range(4):
            a(f"v_smfmac_f32_16x16x64_bf16 {v(D4+4*t,4)}, {v(areg,4)}, {v(vW+8*t,8)}, v{vIA}")
            if fill: a(fill.pop(0))
        for f in fill: a(f)
    def gather4(dst):
        a(f"v_add_f32 v{dst}, v{D4}, v{D4+1}")
        a("s_mov_b32 exec_lo, 0xffff0000")
        a(f"v_add_f32 v{dst}, v{D4+4}, v{D4+5}")
        a("s_mov_b32 exec_lo, 0")
        a(f"v_add_f32 v{dst}, v{D4+8}, v{D4+9}")
        a("s_mov_b32 exec_hi, 0xffff0000")
        a(f"v_add_f32 v{dst}, v{D4+12}, v{D4+13}")
        setexec(-1)
    def stats_ops(x, t):
        o = [f"v_mul_f32 v{t+1}, v{x}, v{x}", f"v_mov_b32 v{t}, v{x}",
             f"v_permlane32_swap_b32 v{t}, v{t+1}", f"v_add_f32 v{t}, v{t}, v{t+1}"]
        o += [f"v_add_f32_dpp v{t}, v{t}, v{t} row_ror:{s} {DPPF}" for s in (8, 4, 2, 1)]
        o += [f"v_add_f32_dpp v{t}, v{t}, v{t} row_bcast:15 row_mask:0xa bank_mask:0xf"]
        return o
    STATX = (1 << 16) | (1 << 48)
    def stat_addr(dst, sreg):
        a(f"v_lshrrev_b32 v{dst}, 5, v{vLANE}"); a(f"v_lshl_add_u32 v{dst}, v{dst}, 6, s{sreg}")

    def G(i): return vS + 4*(i >> 1) + 2 + (i & 1)
    def GX(i): return vS + 4*(i >> 1) + (i & 1) if i < 16 else (vS + 30 + i - 16)
    def gloads(areg, regs):
        for t in range(10): a(f"global_load_dword v{regs(t)}, v{areg}, {p(sGB)} offset:{t*256} sc1")
    def sum10(regs):
        return [f"v_pk_add_f32 {v(regs(0),2)}, {v(regs(0),2)}, {v(regs(2),2)}", f"v_pk_add_f32 {v(regs(4),2)}, {v(regs(4),2)}, {v(regs(6),2)}",
                f"v_pk_add_f32 {v(regs(0),2)}, {v(regs(0),2)}, {v(regs(8),2)}", f"v_pk_add_f32 {v(regs(0),2)}, {v(regs(0),2)}, {v(regs(4),2)}"]
    def ln_stats(cs, scale):
        for s in (8, 4, 2, 1):
            a(f"v_add_f32_dpp v{G(10)}, v{G(10)}, v{G(10)} row_ror:{s} {DPPF}")
            a(f"v_add_f32_dpp v{G(11)}, v{G(11)}, v{G(11)} row_ror:{s} {DPPF}")
        a(f"v_mul_f32 v{G(10)}, {f2u(1/640):#x}, v{G(10)}")
        a(f"v_mul_f32 v{G(11)}, {f2u(1/640):#x}, v{G(11)}")
        a(f"v_fma_f32 v{G(11)}, -v{G(10)}, v{G(10)}, v{G(11)}")
        a(f"v_max_f32 v{G(11)}, 0, v{G(11)}")
        a(f"v_add_f32 v{G(11)}, {f2u(1e-5):#x}, v{G(11)}")
        a(f"v_rsq_f32 v{G(11)}, v{G(11)}")
        a(f"v_mul_f32 v{G(10)}, v{G(10)}, v{cs}")
        if scale: a(f"v_mul_f32 v{G(11)}, {f2u(scale):#x}, v{G(11)}")
    def consume(areg, sreg_v, cs, scale, st, first=None):
        a(f"v_mov_b32 v{G(10)}, 0"); a(f"v_mov_b32 v{G(11)}, 0")
        ls, lr, lc, ld = lab("gs"), lab("gr"), lab("gc"), lab("gd")
        setexec(0x03ff03ff03ff03ff)
        a(f"{ls}:")
        a(f"global_load_dword v{G(10)}, v{sreg_v}, {p(sGB)} sc1")
        a(f"global_load_dword v{G(11)}, v{sreg_v}, {p(sGB)} offset:64 sc1")
        budget()
        a("s_waitcnt vmcnt(0)")
        a(f"v_max_u32 v{G(12)}, v{G(10)}, v{G(11)}")
        a(f"v_cmp_eq_u32 vcc, -1, v{G(12)}")
        a(f"s_cbranch_vccnz {ls}")
        setexec(-1)
        if opt.get("gdly", 0): a(f"s_nop {opt['gdly']-1}")
        gloads(areg, G)
        ln_stats(cs, scale)
        a(f"{lc}:")
        a("s_waitcnt vmcnt(0)")
        t = maxchain(G(12), [G(i) for i in range(10)])
        s10 = sum10(G)
        a(f"v_cmp_eq_u32 vcc, -1, v{t}")
        a(s10[0])
        a(f"s_cbranch_vccnz {lr}")
        def retry():
            a(f"{lr}:"); gloads(areg, G); budget(); a(f"s_branch {lc}")
        cold.append(retry)
        a(f"{ld}:")
        stamp(st)
        a(s10[1]); a(f"v_sub_f32 v{G(8)}, v{G(8)}, v{G(10)}"); a(s10[3]); a(s10[2])
        a(f"v_add_f32 v{G(0)}, v{G(0)}, v{G(1)}")
        a(f"v_mul_f32 v{G(0)}, v{G(0)}, v{G(11)}")
        return ld
    cold = []
    CSC = LOG2E * (128 ** -0.5)

    R = vS + 24
    def red(kodd, st):
        lin(sT, [(sL, 160), (sGX, 10), (sJP, 1)], 80*kodd)
        lin(sT, [(sT, 2048)], PB)
        a(f"v_add_u32 v{vT+8}, s{sT}, v{vL4}")
        a(f"v_mov_b32 v{vT+11}, 0")
        lin(sT, [(sL, 2*2560), (sJP, 256)], XR + kodd*2560)
        a(f"v_add_u32 v{vT+12}, s{sT}, v{vL4}")
        a(f"v_add_u32 v{vT+9}, {PO - XR}, v{vT+12}")
        lin(sT, [(sL, 2*128), (sJP, 4)], SX + kodd*128)
        stat_addr(vT+13, sT)
        a(f"v_lshlrev_b32 v{vT+10}, 1, v{vLANE}")
        lres = lab("res")
        if not kodd:
            l0 = lab("r0")
            br("lg", sL, 0, l0)
            a(f"s_lshl_b32 s{sT}, s{sJP}, 7"); a(f"v_add_u32 v{R}, s{sT}, v{vT+10}")
            a(f"v_mov_b32 v{R+8}, 0")
            a(f"global_load_short_d16_hi v{R+8}, v{R}, {p(sX_)}")
            a(f"s_branch {lres}")
            a(f"{l0}:")
        l = lab("rr")
        a(f"{l}:")
        a(f"global_load_dword v{R+8}, v{vT+12}, {p(sGB)} offset:-2560 sc1")
        budget()
        a("s_waitcnt vmcnt(0)")
        a(f"v_cmp_eq_u32 vcc, -1, v{R+8}")
        a(f"s_cbranch_vccnz {l}")
        a(f"{lres}:")
        l = lab("ro")
        a(f"{l}:")
        a(f"global_load_dword v{R}, v{vT+9}, {p(sGB)} sc1")
        budget()
        a("s_waitcnt vmcnt(0)")
        a(f"v_cmp_eq_u32 vcc, -1, v{R}")
        a(f"s_cbranch_vccnz {l}")
        d = opt.get(f"rd{kodd}", 0)
        if d: a(f"s_sleep {d}")
        lr, lc = lab("rp"), lab("rc")
        for t in range(1, 8): a(f"global_load_dword v{R+t}, v{vT+8}, {p(sWS)} offset:{t*256} sc1")
        a(f"v_add_f32 v{R+8}, v{R+8}, v{R}")
        def retry():
            a(f"{lr}:")
            for t in range(1, 8):
                if opt.get("red_atomic", 1): a(f"global_atomic_add v{R+t}, v{vT+8}, v{vT+11}, {p(sWS)} offset:{t*256} sc0")
                else: a(f"global_load_dword v{R+t}, v{vT+8}, {p(sWS)} offset:{t*256} sc1")
            budget()
            a(f"s_branch {lc}")
        cold.append(retry)
        a(f"{lc}:")
        a("s_waitcnt vmcnt(0)")
        t = maxchain(R+9, range(R+1, R+8))
        a(f"v_pk_add_f32 {v(R+2,2)}, {v(R+2,2)}, {v(R+4,2)}")
        a(f"v_cmp_eq_u32 vcc, -1, v{t}")
        a(f"v_add_f32 v{R}, v{R+8}, v{R+1}")
        a(f"v_pk_add_f32 {v(R+2,2)}, {v(R+2,2)}, {v(R+6,2)}")
        a(f"s_cbranch_vccnz {lr}")
        stamp(st)
        a(f"v_add_f32 v{R}, v{R}, v{R+2}")
        a(f"v_add_f32 v{R}, v{R}, v{R+3}")
        a(f"v_cvt_pk_bf16_f32 v{R+8}, v{R}, v{R}")
        setexec(-1)
        a(f"v_mov_b32_dpp v{R+1}, v{R} quad_perm:[1,1,3,3] {DPPF}")
        setexec(0x5555555555555555)
        a(f"v_cvt_pk_bf16_f32 v{R}, v{R}, v{R+1}")
    def red_relay():
        a(f"ds_write_b32 v{vT+10}, v{R} offset:{L_XL}")
        setexec(-1)
        a(f"v_and_b32 v{R+8}, 0xffff0000, v{R+8}")
        so = stats_ops(R+8, R+2)
        for o in so[:5]: a(o)
        a("s_waitcnt lgkmcnt(0)")
        a("s_barrier")
        return so[5:]
    def red_publish_stats():
        modecmp()
        setexec(STATX)
        istore(f"global_store_dword v{vT+13}, v{R+2}, {p(sGB)}", cmp=False)
        setexec(-1)
    def dma_loop(n, body, nw=3):
        l = lab("dma")
        a(f"s_mov_b32 s{sI}, s{sWAVE}")
        a(f"{l}:")
        body()
        a(f"s_add_u32 s{sI}, s{sI}, {nw}")
        br("lt", sI, n, l)
    def rows8_off(dst, stride):
        a(f"v_lshrrev_b32 v{dst}, 3, v{vLANE}"); a(f"v_mul_u32_u24 v{dst}, {stride}, v{dst}")
        a(f"v_and_b32 v{dst+1}, 7, v{vLANE}"); a(f"v_lshlrev_b32 v{dst+1}, 4, v{dst+1}")
        a(f"v_and_b32 v{dst+2}, 32, v{vLANE}"); a(f"v_xor_b32 v{dst+1}, v{dst+1}, v{dst+2}")
        a(f"v_add_u32 v{dst}, v{dst}, v{dst+1}")
    def rows8_body(base, src, stride, lds):
        def body():
            a(f"s_lshl_b32 s{sT+1}, s{sI}, 10"); a(f"s_add_u32 m0, s{sT+1}, {lds}")
            a(f"s_and_b32 s{sT+1}, s{sI}, 1"); a(f"s_lshl_b32 s{sT+1}, s{sT+1}, 6")
            a(f"s_mul_i32 s{sT+2}, s{sI}, {8*stride}"); a(f"s_add_u32 s{sT+2}, s{sT+2}, s{base}")
            a(f"v_xor_b32 v{vT+1}, s{sT+1}, v{vT}")
            a(f"v_add_u32 v{vT+1}, s{sT+2}, v{vT+1}")
            a(f"global_load_lds_dwordx4 v{vT+1}, {p(src)}{NT}")
        return body
    def groupbase():
        a(f"s_mul_i32 s{sT+1}, s{sGX}, {GS}")
        a(f"s_add_u32 s{sGB}, s{sWS}, s{sT+1}"); a(f"s_addc_u32 s{sGB+1}, s{sWS+1}, 0")
    def consts(gb=True):
        a(f"s_mov_b32 s{sT+1}, {EPO}")
        a(f"s_load_dword s{sEP}, {p(sWS)}, s{sT+1}")
        if gb: groupbase()
        a(f"s_mov_b32 s{sL}, 0"); a(f"s_mov_b32 s{sBUD}, 100000"); a(f"s_mov_b32 s{sMODE}, 2")
        a(f"s_lshr_b32 s{sHH}, s{sJ}, 3"); a(f"s_and_b32 s{sC}, s{sJ}, 7")
        a(f"s_mul_i32 s{sJP}, s{sROLE}, 10"); a(f"s_sub_u32 s{sJP}, s{sJ}, s{sJP}")
        a(f"s_mov_b32 s{sPLO}, 0x05040100"); a(f"s_mov_b32 s{sPHI}, 0x07060302")
        a(f"v_lshlrev_b32 v{vL4}, 2, v{vLANE}")
        a(f"v_and_b32 v{vT}, 1, v{vLANE}")
        a(f"v_mul_u32_u24 v{vIA}, 0xaaaa, v{vT}"); a(f"v_add_u32 v{vIA}, 0x4444, v{vIA}")
        a(f"v_mul_u32_u24 v{vIP}, 0x5555, v{vT}"); a(f"v_add_u32 v{vIP}, 0x8888, v{vIP}")
        a(f"v_lshlrev_b32 v{vXA}, 4, v{vT}"); a(f"v_lshl_add_u32 v{vXA}, v{vG}, 5, v{vXA}")
        for r in range(4): a(f"v_mov_b32 v{vONE+r}, 0x3f803f80")
        a(f"v_lshrrev_b32 v{vROWL}, 5, v{vLANE}"); a(f"v_lshlrev_b32 v{vROWL}, 4, v{vROWL}")
        a(f"v_and_b32 v{vT}, 1, v{vG}"); a(f"v_lshl_add_u32 v{vROWL}, v{vT}, 2, v{vROWL}")
        a(f"v_bfe_u32 v{vT}, v{vLANE}, 2, 1"); a(f"v_add_u32 v{vROWL}, v{vROWL}, v{vT}")
        a(f"v_and_b32 v{vT}, 8, v{vLANE}"); a(f"v_add_u32 v{vROWL}, v{vROWL}, v{vT}")
        for r in range(16): a(f"v_mov_b32 v{vAT+r}, 0")
        for r in (3, 5, 6, 7, 9, 10): a(f"v_mov_b32 v{vT+r}, 0")
        if instr: a(f"v_mov_b32 v{vSTV}, 0")
    def epoch():
        a("s_waitcnt lgkmcnt(0)")
        a(f"s_getreg_b32 s{sT+1}, hwreg(HW_REG_XCC_ID, 0, 3)")
        a(f"s_add_u32 s{sTAG}, s{sEP}, 1")
        a(f"s_and_b32 s{sEP}, s{sTAG}, 0x1fffffff"); a(f"s_lshl_b32 s{sT+1}, s{sT+1}, 29"); a(f"s_or_b32 s{sEP}, s{sEP}, s{sT+1}")
    def tagword(r):
        a(f"v_mov_b32 v{vT+18}, 0xff")
        a(f"v_bfi_b32 v{r}, v{vT+18}, s{sTAG}, v{r}")
    def tagcheck(acc, regs):
        a(f"v_xor_b32 v{acc}, s{sTAG}, v{regs[0]}")
        for r in regs[1:]: a(f"v_bitop3_b32 v{acc}, v{r}, s{sTAG}, v{acc} bitop3:0xbe")
        a(f"v_and_b32 v{acc}, 0xff, v{acc}")
        a(f"v_cmp_ne_u32 vcc, 0, v{acc}")
    def colsum_gather(areg, dst):
        l, l2 = lab("cg"), lab("cgd")
        a(f"{l}:")
        gloads(areg, G)
        budget()
        a("s_waitcnt vmcnt(0)")
        tagcheck(G(12), [G(i) for i in range(10)])
        a(f"s_cbranch_vccz {l2}")
        a("s_sleep 4")
        a(f"s_branch {l}")
        a(f"{l2}:")
        for i in range(10): a(f"v_and_b32 v{G(i)}, 0xffffff00, v{G(i)}")
        for o in sum10(G): a(o)
        a(f"v_add_f32 v{dst}, v{G(0)}, v{G(1)}")

    vG, vKA, vVA, vVB_ = vT+14, vT+15, vT+16, vT+17
    a("s_load_dwordx16 s[4:19], s[0:1], 0")
    a("s_load_dwordx8 s[20:27], s[0:1], 64")
    br("ge", 2, 256, "L_end")
    if instr or lite or opt.get("x_pad"): a("s_memrealtime s[60:61]")
    if opt.get("x_pad"): a("s_memrealtime s[62:63]"); a(f"s_mov_b32 s{sL}, 0")
    if instr:
        stamp(0)
        for i in range(1, 16): a(f"s_mov_b32 s{sSTAMP+2*i}, 0")
    a(f"v_lshrrev_b32 v{vT}, 6, v0")
    a(f"v_and_b32 v{vLANE}, 63, v0")
    a(f"v_readfirstlane_b32 s{sWAVE}, v{vT}")
    a(f"s_and_b32 s{sGX}, s2, 7"); a(f"s_lshr_b32 s{sJ}, s2, 3")
    a(f"s_mul_i32 s{sROLE}, s{sJ}, 26"); a(f"s_lshr_b32 s{sROLE}, s{sROLE}, 8")
    if opt.get("x_norole"): a(f"s_mov_b32 s{sROLE}, 3")
    a(f"s_and_b32 s{sW}, s{sWAVE}, 3")
    MAPS = [((13, 14, 15), (11, 12, 16)), ((13, 14, 15), (11, 12, 17)), ((18, 14, 15), (12, 13, 17)), ((18, 19, 15), (12, 13, 17)),
            ((18, 11, 15), (12, 13, 17)), ((13, 19, 15), (18, 12, 17))]
    UB, WB = MAPS[opt.get("map", 0)]
    CB = [x for x in range(11, 20) if x not in UB + WB]
    def ubits(u): return sum(((u >> i) & 1) << UB[i] for i in range(3))
    a(f"s_lshr_b32 s{sT+1}, s{sJ}, 3")
    lin(sT, [(sGX, 1 << 22), (sT+1, 1 << 20)])
    for src, bits in ((sJ, CB), (sWAVE, WB)):
        i = 0
        while i < 3:
            n = 1
            while i + n < 3 and bits[i+n] == bits[i] + n: n += 1
            a(f"s_bfe_u32 s{sT+1}, s{src}, {i | (n << 16):#x}"); a(f"s_lshl_b32 s{sT+1}, s{sT+1}, {bits[i]}"); a(f"s_or_b32 s{sT}, s{sT}, s{sT+1}")
            i += n
    a(f"v_lshrrev_b32 v{vG}, 4, v{vLANE}")
    a(f"v_and_b32 v{vKA}, 7, v{vLANE}"); a(f"v_lshlrev_b32 v{vKA}, 8, v{vKA}")
    a(f"v_and_b32 v{vT}, 8, v{vLANE}"); a(f"v_lshl_add_u32 v{vKA}, v{vT}, 3, v{vKA}")
    a(f"v_lshl_add_u32 v{vKA}, v{vG}, 4, v{vKA}")
    a(f"v_and_b32 v{vT}, 15, v{vLANE}")
    if UB[1] == UB[0] + 1: a(f"v_lshlrev_b32 v{vVA}, {UB[0]}, v{vG}")
    else:
        a(f"v_and_b32 v{vVA}, 1, v{vG}"); a(f"v_lshlrev_b32 v{vVA}, {UB[0]}, v{vVA}")
        a(f"v_lshrrev_b32 v{vVB_}, 5, v{vLANE}"); a(f"v_lshl_add_u32 v{vVA}, v{vVB_}, {UB[1]}, v{vVA}")
    a(f"v_lshl_add_u32 v{vVA}, v{vT}, 4, v{vVA}")
    a(f"v_add_u32 v{vVB_}, {1 << UB[2]}, v{vVA}")
    a("s_waitcnt lgkmcnt(0)")
    a(f"s_add_u32 s{sKB}, s{sK}, s{sT}"); a(f"s_addc_u32 s{sKB+1}, s{sK+1}, 0")
    a(f"s_add_u32 s{sVB}, s{sV}, s{sT}"); a(f"s_addc_u32 s{sVB+1}, s{sV+1}, 0")
    if opt.get("x_stop"): stamp(13)
    br("ge", sWAVE, 4, "L_late")
    a("L_kv:")
    wa, wb, ma, mb = opt.get("wa", 6), opt.get("wb", 5), opt.get("ma", 0), opt.get("mb", 0)
    if opt.get("byx"):
        a(f"s_getreg_b32 s{sI}, hwreg(HW_REG_XCC_ID, 0, 3)"); a(f"s_lshl2_add_u32 s{sI}, s{sI}, s{sW}")
    else:
        a(f"s_lshl2_add_u32 s{sI}, s{sROLE}, s{sW}")
    if mb: a(f"s_bitcmp1_b32 {mb}, s{sI}"); a("s_cselect_b64 vcc, -1, 0")
    def thr(): a(f"s_bitcmp0_b32 {ma}, s{sI}")
    thr()
    def gap(i, op=None):
        if op: a(op)
        if opt.get("ps") and opt.get("p0", 5) <= i < 31:
            a(f"s_sleep {opt['ps']}")
            if opt.get("pn"): a(f"s_nop {opt['pn']-1}")
        if ma and (wb if mb else wa) - 1 <= i < 31 - opt.get("tail", 0):
            l = lab("g"); a(f"s_cbranch_scc1 {l}"); a(f"s_waitcnt vmcnt({wa-1})")
            if mb: a(f"s_cbranch_vccz {l}"); a(f"s_waitcnt vmcnt({wb-1})")
            a(f"{l}:")
        elif not op and i < 31: a("s_nop 0")
    for i in range(16):
        u, hf = i >> 1, i & 1
        a(f"global_load_dwordx4 {v(vK+8*u+4*hf,4)}, v{vKA}, {p(sKB)} offset:{hf*128}{NT}")
        gap(i, f"v_xor_b32 v{vKA}, {ubits(u) ^ ubits(u+1)}, v{vKA}" if (hf and u < 7) else None)
    for i, t in enumerate(list(range(8, 16)) + list(range(8))):
        d = vV + 8*(t-8) if t >= 8 else vW + 4*t
        a(f"global_load_dwordx4 {v(d,4)}, v{vVB_ if t >= 8 else vVA}, {p(sVB)} offset:{(t&7)*256}{NT}")
        gap(16 + i)
    stamp(4)
    br("ge", sWAVE, 4, "L_att")
    if opt.get("hand", 0): a(f"s_waitcnt vmcnt({opt['hand']})")
    a("s_barrier")
    a("s_setprio 2")
    consts()
    epoch()
    a("L_perm:")
    for grp in (1, 0):
        for tp in range(4):
            a(f"s_waitcnt vmcnt({(14 if grp else 6) - 2*tp})")
            for e in range(8):
                if grp: s1, s0 = vV + 8*(2*tp) + (e >> 1), vV + 8*(2*tp+1) + (e >> 1)
                else:   s1, s0 = vW + 4*(2*tp) + (e >> 1), vW + 4*(2*tp+1) + (e >> 1)
                a(f"v_perm_b32 v{vV + 8*e + 4*grp + tp}, v{s0}, v{s1}, s{sPHI if e & 1 else sPLO}")
    br("ge", sWAVE, 4, "L_pv")
    def prefetch_wo():
        lin(sT, [(sGX, 512*1280), (sJ, 160*128), (sW, 40*128)])
        a(f"v_lshl_add_u32 v{vT+16}, v{vLANE}, 7, s{sT}")
        setexec((1 << 40) - 1)
        a(f"global_load_dword v{vT+17}, v{vT+16}, {p(sWO)}")
        setexec(-1)
    if opt.get("pw", 1) == 1: prefetch_wo()
    br("lt", sWAVE, 0 if opt.get("x_nogather") else 2, "L_qcons")
    br("lg", sWAVE, 99 if opt.get("x_noarr") else 2, "L_att")
    a(f"s_lshl_b32 s{sT}, s{sGX}, 9")
    a(f"v_lshl_add_u32 v{vT}, v{vLANE}, 4, s{sT}")
    for t in range(4):
        a(f"v_add_u32 v{vT+4+t}, {1024*t}, v{vT}"); a(f"v_and_b32 v{vT+4+t}, 4095, v{vT+4+t}"); a(f"v_add_u32 v{vT+4+t}, {ARR}, v{vT+4+t}")
    a("L_bar:")
    for t in range(4): a(f"global_load_dword v{vT+8+t}, v{vT+4+t}, {p(sWS)} sc1")
    budget()
    a("s_waitcnt vmcnt(0)")
    for t in range(4): a(f"v_xor_b32 v{vT+8+t}, s{sEP}, v{vT+8+t}")
    a(f"v_or3_b32 v{vT+12}, v{vT+8}, v{vT+9}, v{vT+10}"); a(f"v_or_b32 v{vT+12}, v{vT+12}, v{vT+11}")
    a(f"v_lshlrev_b32 v{vT+12}, 3, v{vT+12}")
    a(f"v_cmp_ne_u32 vcc, 0, v{vT+12}")
    a("s_cbranch_vccz L_bard")
    a(f"s_sleep 40")
    a("s_branch L_bar")
    a("L_bard:")
    stamp(3)
    a(f"v_cmp_ne_u32 vcc, 0, v{vT+8}")
    a(f"v_mov_b32 v{vT+9}, 1"); a(f"v_mov_b32 v{vT+3}, 0")
    a(f"s_cmp_{'ge' if opt.get('force_slow') else 'lg'}_u32 vcc_lo, 0")
    a("s_cbranch_scc1 L_spread")
    def spread():
        a("L_spread:")
        a("buffer_wbl2 sc1")
        a("s_waitcnt vmcnt(0)")
        a("buffer_inv sc1")
        a("s_waitcnt vmcnt(0)")
        lin(sT, [(sGX, 512), (sJ, 16)], ARR2)
        a(f"v_mov_b32 v{vT}, s{sT}"); a(f"v_mov_b32 v{vT+1}, s{sEP}")
        setexec(1)
        a(f"global_store_dword v{vT}, v{vT+1}, {p(sWS)} sc1")
        a("s_mov_b32 exec_lo, -1")
        a(f"v_add_u32 v{vT+4}, {ARR2-ARR}, v{vT+4}")
        a("L_bar2:")
        a("s_sleep 10")
        a(f"global_load_dword v{vT+8}, v{vT+4}, {p(sWS)} sc1")
        budget()
        a("s_waitcnt vmcnt(0)")
        a(f"v_xor_b32 v{vT+8}, s{sEP}, v{vT+8}")
        a(f"v_lshlrev_b32 v{vT+8}, 3, v{vT+8}")
        a(f"v_cmp_ne_u32 vcc, 0, v{vT+8}")
        a("s_cbranch_vccnz L_bar2")
        setexec(-1)
        a(f"v_mov_b32 v{vT+9}, 2")
        a("s_branch L_mode")
    cold.append(spread)
    a("L_mode:")
    a(f"ds_write_b32 v{vT+3}, v{vT+9} offset:{L_MODE}")

    a("L_att:")
    for r in range(8): a(f"v_mov_b32 v{vDA+r}, 0")
    for e in range(8): a(f"v_mov_b32 v{vS+4*e}, 0"); a(f"v_mov_b32 v{vS+4*e+1}, 0")
    a(f"v_lshrrev_b32 v{vT}, 4, v{vLANE}"); a(f"v_lshlrev_b32 v{vT}, 6, v{vT}")
    a(f"v_and_b32 v{vT+1}, 3, v{vLANE}"); a(f"v_lshl_add_u32 v{vT}, v{vT+1}, 4, v{vT}")
    a(f"s_lshl_b32 s{sT}, s{sWAVE}, 9"); a(f"v_lshl_add_u32 v{vT+2}, v{vLANE}, 5, s{sT}")
    lin(sT, [(sWAVE, 4), (sL, 96)], L_STAT); a(f"v_mov_b32 v{vT+3}, s{sT}")
    a(f"v_mov_b32 v{vT+1}, 0")
    COMB = 3
    lin(sT, [(sL, 96)], L_STAT)
    a(f"v_and_b32 v{vT+9}, 28, v{vL4}"); a(f"v_add_u32 v{vT+8}, s{sT}, v{vT+9}")
    a(f"s_lshr_b32 s{sT+1}, s{sC}, 1"); a(f"s_and_b32 s{sT+2}, s{sC}, 1")
    lin(sT, [(sL, 8192), (sHH, 2048), (sT+1, 256), (sT+2, 32)], OA)
    a(f"v_add_u32 v{vT+9}, s{sT}, v{vT+9}")
    a(f"v_bfe_u32 v{vT+10}, v{vLANE}, 3, 2"); a(f"v_lshl_add_u32 v{vT+9}, v{vT+10}, 6, v{vT+9}")
    a(f"v_lshrrev_b32 v{vT+10}, 5, v{vLANE}"); a(f"v_lshl_add_u32 v{vT+9}, v{vT+10}, 10, v{vT+9}")
    lin(sT, [(sL, 512), (sHH, 128), (sC, 4)], ST)
    a(f"v_lshl_add_u32 v{vT+10}, v{vT+10}, 5, s{sT}")
    a(f"v_lshlrev_b32 v{vT+11}, 3, v{vLANE}")
    a(f"s_lshl_b32 s{sT}, s{sL}, 3"); a(f"s_sub_i32 s{sI}, s{sWAVE}, s{sT}")
    br("lt", sI, 4, "L_e0")
    def early0():
        a("L_e0:")
        a(f"ds_read_b96 {v(vT+4,3)}, v{vT+1} offset:{L_MODE}")
        budget()
        a("s_waitcnt lgkmcnt(0)")
        a(f"v_max3_u32 v{vT+4}, v{vT+4}, v{vT+5}, v{vT+6}")
        a(f"v_cmp_eq_u32 vcc, -1, v{vT+4}")
        setexec(0x000f000f000f000f)
        a("s_cbranch_vccz L_attc")
        setexec(-1)
        a("s_sleep 2")
        a("s_branch L_e0")
        a("L_e0b:")
        if opt.get("pw", 1) == 2: prefetch_wo()
        a("s_barrier")
        a("s_branch L_e0r")
    cold.append(early0)
    br("eq", sL, 0, "L_attb")
    br("ge", sWAVE, 2, "L_attb")
    a("L_qcons:")
    stamp(2)
    q0 = vT + 4
    lin(sT, [(sHH, 5120), (sWAVE, 2560)], GQ1)
    a(f"v_add_u32 v{q0}, s{sT}, v{vL4}")
    a(f"v_and_b32 v{q0+1}, 60, v{vL4}"); a(f"v_add_u32 v{q0+1}, {SX + 128}, v{q0+1}")
    a(f"v_bfe_u32 v{q0+2}, v{vLANE}, 4, 1"); a(f"v_lshlrev_b32 v{q0+2}, 6, v{q0+2}")
    a(f"v_and_b32 v{q0+3}, 44, v{vLANE}"); a(f"v_add_u32 v{q0+2}, v{q0+2}, v{q0+3}")
    a(f"v_and_b32 v{q0+3}, 2, v{vLANE}"); a(f"v_lshl_add_u32 v{q0+2}, v{q0+3}, 3, v{q0+2}")
    a(f"s_lshl_b32 s{sT}, s{sWAVE}, 7"); a(f"v_add_u32 v{q0+2}, s{sT}, v{q0+2}")
    br("eq", sL, 0, "L_g0")
    a(f"v_add_u32 v{q0+3}, {CQ-GQ1}, v{q0}")
    colsum_gather(q0+3, vCSQ)
    consume(q0, q0+1, vCSQ, CSC, 3)
    def first_gather():
        a("L_g0:")
        lin(sT, [(sHH, 16384), (sWAVE, 8192)], GQ0 + 4096)
        a(f"v_add_u32 v{q0}, s{sT}, v{vL4}")
        a("L_g0l:")
        for t in range(32): a(f"global_load_dword v{vS+t}, v{q0}, {p(sGB)} offset:{t*256-4096} sc1")
        budget()
        a("s_waitcnt vmcnt(0)")
        tagcheck(vS+32, [vS+t for t in range(32)])
        a("s_cbranch_vccz L_g0d")
        a("s_sleep 20")
        a("s_branch L_g0l")
        a("L_g0d:")
        stamp(3)
        for t in range(32): a(f"v_and_b32 v{vS+t}, 0xffffff00, v{vS+t}")
        for n in (16, 8, 4, 2):
            for t in range(0, n, 2): a(f"v_pk_add_f32 {v(vS+t,2)}, {v(vS+t,2)}, {v(vS+n+t,2)}")
        a(f"v_add_f32 v{G(0)}, v{vS}, v{vS+1}")
        a(f"v_mul_f32 v{G(0)}, {f2u(CSC):#x}, v{G(0)}")
        a("s_branch L_qpack")
    cold.append(first_gather)
    a("L_qpack:")
    a(f"s_cmp_eq_u32 s{sL}, 0")
    a(f"v_mov_b32_dpp v{G(1)}, v{G(0)} quad_perm:[1,1,3,3] {DPPF}")
    setexec(0x5555555555555555)
    a(f"v_cvt_pk_bf16_f32 v{G(0)}, v{G(0)}, v{G(1)}")
    a(f"ds_write_b32 v{q0+2}, v{G(0)} offset:{L_QL}")
    setexec(-1)
    a("s_cbranch_scc1 L_qflag")
    def qflag():
        a("L_qflag:")
        a(f"s_lshl_b32 s{sT}, s{sWAVE}, 2"); a(f"v_mov_b32 v{q0}, s{sT}")
        a(f"ds_write_b32 v{q0}, v{q0} offset:{L_MODE+4}")
        a("s_branch L_att")
    cold.append(qflag)
    a("L_attb:")
    setexec(0x000f000f000f000f)
    a("s_waitcnt vmcnt(16) lgkmcnt(0)")
    a("s_barrier")
    a("L_attc:")
    for T in range(4):
        a(f"ds_read_b128 {v(vAT+4*T,4)}, v{vT} offset:{L_QL}")
        if T < 3: a("s_lshl_b64 exec, exec, 4")
    setexec(-1)
    a(f"ds_read_b32 v{vT+4}, v{vT+1} offset:{L_MODE}")
    for T in range(4):
        lgkm(4 - T)
        if T == 0: stamp(5)
        a(f"v_smfmac_f32_16x16x64_bf16 {v(vDA,4)}, {v(vAT+4*T,4)}, {v(vK+16*T,8)}, v{vIA}")
        a(f"v_smfmac_f32_16x16x64_bf16 {v(vDB,4)}, {v(vAT+4*T,4)}, {v(vK+16*T+8,8)}, v{vIA}")
    a("s_waitcnt lgkmcnt(0)")
    a(f"v_readfirstlane_b32 s{sMODE}, v{vT+4}")
    own, oth, mx = vT+4, vT+5, vT+6
    a(f"v_add_f32 v{oth}, v{vDA+2}, v{vDA+3}")
    a(f"v_add_f32 v{own}, v{vDB+2}, v{vDB+3}")
    setexec(0x00ff00ff00ff00ff)
    a(f"v_add_f32 v{oth}, v{vDB}, v{vDB+1}")
    a(f"v_add_f32 v{own}, v{vDA}, v{vDA+1}")
    setexec(-1)
    a(f"v_add_f32_dpp v{own}, v{oth}, v{own} row_ror:8 {DPPF}")
    a(f"v_max_f32_dpp v{mx}, v{own}, v{own} row_ror:8 {DPPF}")
    for s in (4, 2, 1): a(f"v_max_f32_dpp v{mx}, v{mx}, v{mx} row_ror:{s} {DPPF}")
    a(f"v_max_f32_dpp v{mx}, v{mx}, v{mx} row_bcast:15 row_mask:0xa bank_mask:0xf")
    a(f"v_max_f32_dpp v{mx}, v{mx}, v{mx} row_bcast:31 row_mask:0xc bank_mask:0xf")
    a(f"v_readlane_b32 s{sM}, v{mx}, 63")
    a(f"v_subrev_f32 v{own}, s{sM}, v{own}")
    a(f"v_exp_f32 v{own}, v{own}")
    a(f"v_mov_b32 v{mx}, s{sM}")
    a(f"ds_write_b32 v{vT+3}, v{mx}")
    a(f"v_mov_b32_dpp v{oth}, v{own} row_shl:2 {DPPF} bound_ctrl:0")
    a(f"v_cvt_pk_bf16_f32 v{vQ}, v{own}, v{oth}")
    a(f"s_cmp_ge_i32 s{sI}, 4")
    for m in range(1, 4):
        a(f"v_mov_b32_dpp v{vQ+m}, v{vQ} row_shl:{4*m} {DPPF} bound_ctrl:0")
    stamp(6)
    a("s_cbranch_scc1 L_perm")
    a("L_pv:")
    stamp(7)
    a(f"v_mfma_f32_16x16x32_bf16 {v(vS+32,4)}, {v(vQ,4)}, {v(vONE,4)}, 0")
    for e in range(8):
        a(f"v_smfmac_f32_16x16x64_bf16 {v(vS+4*e,4)}, {v(vQ,4)}, {v(vV+8*e,8)}, v{vIP}")
        if e in (0, 1): a("s_nop 1")
        if e == 2: a(f"v_add_f32 v{mx+1}, v{vS+32}, v{vS+33}")
        if e == 3:
            a(f"v_readfirstlane_b32 s{sT}, v{mx+1}")
        if e == 4:
            a(f"v_mov_b32 v{mx+1}, s{sT}")
            a(f"ds_write_b32 v{vT+3}, v{mx+1} offset:32")
        if e >= 5: a(f"v_add_f32 v{vDA+e-5}, v{vS+4*(e-5)}, v{vS+4*(e-5)+1}")
    setexec(0xffff)
    for e in range(3, 8):
        a(f"v_add_f32 v{vDA+e}, v{vS+4*e}, v{vS+4*e+1}")
        if e == 3: a(f"ds_write_b128 v{vT+2}, {v(vDA,4)} offset:{L_OP}")
    a(f"ds_write_b128 v{vT+2}, {v(vDB,4)} offset:{L_OP+16}")
    a(f"ds_write_b32 v{vT+3}, v{vONE} offset:64")
    setexec(-1)
    stamp(8)
    br("lt", sI, 4, "L_e0b")
    a("L_e0r:")
    if opt.get("x_stop"): a("s_branch L_exit")
    br("lg", sWAVE, COMB, "L_nocomb")
    C = vS
    lsteps = ["quad_perm:[1,0,3,2]", "quad_perm:[2,3,0,1]", "row_half_mirror"]
    def red8(op, dst, src):
        for i, s in enumerate(lsteps): a(f"v_{op}_f32_dpp v{dst}, v{dst if i else src}, v{dst if i else src} {s} {DPPF}")
    a("L_cm:")
    a(f"ds_read_b32 v{C+16}, v{vT+8}")
    a(f"ds_read_b32 v{C+19}, v{vT+8} offset:64")
    for w in range(4): a(f"ds_read_b64 {v(C+2*w,2)}, v{vT+11} offset:{L_OP + 512*w}")
    budget()
    a("s_waitcnt lgkmcnt(0)")
    a(f"v_cmp_eq_u32 s[{sT}:{sT+1}], -1, v{C+19}")
    a(f"v_cmp_eq_u32 vcc, -1, v{C+16}")
    a(f"s_and_b32 s{sT}, s{sT}, 15")
    a(f"s_or_b32 s{sT}, s{sT}, vcc_lo")
    a("s_cbranch_scc1 L_cm")
    red8("max", C+18, C+16)
    a(f"v_sub_f32 v{C+16}, v{C+16}, v{C+18}")
    a(f"v_exp_f32 v{C+16}, v{C+16}")
    a("L_cl:")
    a(f"ds_read_b32 v{C+17}, v{vT+8} offset:32")
    budget()
    a("s_waitcnt lgkmcnt(0)")
    a(f"v_cmp_eq_u32 vcc, -1, v{C+17}")
    a(f"v_mul_f32 v{C+17}, v{C+16}, v{C+17}")
    a("s_cbranch_vccnz L_cl")
    acc = [f"v_mul_f32_dpp v{C+r}, v{C+16}, v{C+r} row_newbcast:{r>>1} {DPPF}" for r in range(4)]
    acc += [f"v_fmac_f32_dpp v{C+2*(w&1)+r}, v{C+16}, v{C+2*w+r} row_newbcast:{w} {DPPF}" for w in range(2, 8) for r in range(2)]
    a(acc[0])
    a(f"v_add_f32_dpp v{C+17}, v{C+17}, v{C+17} {lsteps[0]} {DPPF}")
    a(acc[1]); a(acc[2])
    a(f"v_add_f32_dpp v{C+17}, v{C+17}, v{C+17} {lsteps[1]} {DPPF}")
    a(acc[3]); modecmp()
    a(f"v_add_f32_dpp v{C+18}, v{C+17}, v{C+17} {lsteps[2]} row_mask:0xc bank_mask:0xf")
    setexec(0x0000000100000001)
    istore(f"global_store_dword v{vT+10}, v{C+18}, {p(sGB)}", cmp=False)
    setexec(-1)
    for o in acc[4:8]: a(o)
    a("L_cs:")
    a(f"ds_read_b32 v{C+19}, v{vT+8} offset:64")
    for w in range(4, 8): a(f"ds_read_b64 {v(C+2*w,2)}, v{vT+11} offset:{L_OP + 512*w}")
    budget()
    a("s_waitcnt lgkmcnt(0)")
    a(f"v_cmp_eq_u32 vcc, -1, v{C+19}")
    modecmp()
    a("s_cbranch_vccnz L_cs")
    for o in acc[8:]: a(o)
    a(f"v_pk_add_f32 {v(C,2)}, {v(C,2)}, {v(C+2,2)}")
    a(f"v_cvt_pk_bf16_f32 v{C}, v{C}, v{C+1}")
    a(f"v_min_u32 v{C}, -2, v{C}")
    istore(f"global_store_dword v{vT+9}, v{C}, {p(sGB)}", cmp=False)
    stamp(9)
    if opt.get("x_q"):
        br("lg", sL, 0, "L_nocomb")
        a("s_memrealtime s[64:65]")
        lin(sT, [(2, 8)], STAMPS)
        a("s_waitcnt lgkmcnt(0)")
        a(f"v_mov_b32 v{vT}, s{sT}"); a(f"v_mov_b32 v{vT+4}, s60"); a(f"v_mov_b32 v{vT+5}, s64")
        a(f"global_store_dwordx2 v{vT}, {v(vT+4,2)}, {p(sWS)} sc1")
    a("L_nocomb:")
    br("eq", sROLE, ROLE_F, "L_roleF")
    br("eq", sROLE, ROLE_Q, "L_roleQ")
    br("lg", sROLE, ROLE_W, "L_next")

    br("eq", sL, 0, "L_w0")
    def w_first():
        a("L_w0:")
        br("ge", sWAVE, 3, "L_w0b")
        rows8_off(vT, 1280)
        lin(sT, [(sGX, 512*1280), (sJP, 128)])
        dma_loop(64, rows8_body(sT, sWO, 1280, L_WA))
        a("s_waitcnt vmcnt(0)")
        a("L_w0b:")
        lin(sT, [(sWAVE, 8192)], L_WA)
        a(f"v_lshlrev_b32 v{vT}, 7, v{vROWL}")
        a(f"v_bfe_u32 v{vT+1}, v{vROWL}, 2, 2"); a(f"v_lshl_add_u32 v{vT}, v{vT+1}, 5, v{vT}")
        a(f"v_and_b32 v{vT+1}, 3, v{vLANE}"); a(f"v_lshl_add_u32 v{vT}, v{vT+1}, 3, v{vT}")
        a(f"v_add_u32 v{vT}, s{sT}, v{vT}")
        a("s_barrier")
        stamp(12)
        tr4(4096, 256)
        a("s_branch L_w1")
    cold.append(w_first)
    a("L_w1:")
    SM = vS + 20
    a(f"s_lshr_b32 s{sT+1}, s{sWAVE}, 1")
    lin(sT, [(sL, 512), (sT+1, 128)], ST)
    a(f"v_lshrrev_b32 v{vT+2}, 4, v{vLANE}")
    a(f"v_lshl_add_u32 v{vT+3}, v{vT+2}, 1, v{vLANE}"); a(f"v_and_b32 v{vT+3}, 7, v{vT+3}")
    a(f"v_lshl_add_u32 v{vT+3}, v{vT+3}, 2, s{sT}")
    lin(sT, [(sL, 8192), (sWAVE, 1024)], OA)
    a(f"v_and_b32 v{vT+4}, 3, v{vLANE}"); a(f"v_lshl_add_u32 v{vT+4}, v{vT+4}, 4, s{sT}")
    a(f"v_lshl_add_u32 v{vT+4}, v{vT+2}, 6, v{vT+4}")
    a(f"v_bfe_u32 v{vT+2}, v{vLANE}, 2, 2"); a(f"v_lshl_add_u32 v{vT+4}, v{vT+2}, 8, v{vT+4}")
    a("L_wos:")
    a(f"global_load_dword v{SM}, v{vT+3}, {p(sGB)} sc1")
    a(f"global_load_dword v{SM+1}, v{vT+3}, {p(sGB)} offset:32 sc1")
    budget()
    a("s_waitcnt vmcnt(0)")
    a(f"v_max_u32 v{SM+2}, v{SM}, v{SM+1}")
    a(f"v_cmp_eq_u32 vcc, -1, v{SM+2}")
    a("s_cbranch_vccnz L_wos")
    if opt.get("wdly", 0): a(f"s_nop {opt['wdly']-1}")
    a(f"global_load_dwordx4 {v(vS,4)}, v{vT+4}, {p(sGB)} sc1")
    zz = [f"v_mov_b32 v{D4+r}, 0" for r in range(16)]
    def z(n):
        for _ in range(n): a(zz.pop(0))
    for i, s in enumerate(lsteps):
        a(f"v_max_f32_dpp v{SM+2}, v{SM+2 if i else SM}, v{SM+2 if i else SM} {s} {DPPF}"); z(2)
    a(f"v_sub_f32 v{SM}, v{SM}, v{SM+2}")
    a(f"v_exp_f32 v{SM}, v{SM}"); z(1)
    a(f"v_mul_f32 v{SM+1}, v{SM}, v{SM+1}"); z(2)
    for i, s in enumerate(lsteps):
        a(f"v_add_f32_dpp v{SM+1}, v{SM+1}, v{SM+1} {s} {DPPF}")
        if i < 2: z(2)
    a(f"v_rcp_f32 v{SM+1}, v{SM+1}"); z(1)
    a(f"v_mul_f32 v{SM}, v{SM}, v{SM+1}"); z(2)
    a(f"v_mov_b32_dpp v{SM+2}, v{SM} row_newbcast:0 {DPPF}")
    a(f"v_mov_b32_dpp v{SM+3}, v{SM} row_newbcast:1 {DPPF}")
    a(f"v_lshlrev_b32 v{vT+6}, 4, v{vLANE}")
    a(f"s_lshr_b32 s{sT+1}, s{sWAVE}, 2")
    lin(sT, [(sT+1, 1024), (sW, 4)])
    a(f"v_add_u32 v{vT+5}, s{sT}, v{vT+6}")
    a("L_woc:")
    a("s_waitcnt vmcnt(0) lgkmcnt(0)")
    t = maxchain(SM, range(vS, vS+4))
    a(f"v_cmp_eq_u32 vcc, -1, v{t}")
    a("s_cbranch_vccnz L_wor")
    def w_retry():
        a("L_wor:")
        a(f"global_load_dwordx4 {v(vS,4)}, v{vT+4}, {p(sGB)} sc1")
        budget()
        a("s_branch L_woc")
    cold.append(w_retry)
    stamp(10)
    mma4(vS)
    a(f"s_sub_u32 s{sT+1}, s{sGX}, s{sWAVE}"); a(f"s_and_b32 s{sT+1}, s{sT+1}, 7")
    lin(sT, [(sL, 160), (sWAVE, 10), (sJP, 1)])
    for t in range(4):
        a(f"v_pk_mul_f32 {v(D4+4*t,2)}, {v(D4+4*t,2)}, {v(SM+2,2)} op_sel_hi:[1,0]")
    for t in range(4):
        a(f"v_pk_fma_f32 {v(D4+4*t,2)}, {v(D4+4*t+2,2)}, {v(SM+2,2)}, {v(D4+4*t,2)} op_sel:[0,1,0]")
    for t in (0, 2, 1, 3): a(f"v_add_f32 v{D4+4*t}, v{D4+4*t}, v{D4+4*t+1}")
    a(f"v_permlane32_swap_b32 v{D4}, v{D4+8}")
    a(f"v_add_f32 v{D4}, v{D4}, v{D4+8}")
    a(f"v_permlane32_swap_b32 v{D4+4}, v{D4+12}")
    a(f"v_add_f32 v{D4+4}, v{D4+4}, v{D4+12}")
    a(f"v_permlane16_swap_b32 v{D4}, v{D4+4}")
    a(f"v_add_f32 v{D4}, v{D4}, v{D4+4}")
    a(f"ds_write_b32 v{vT+5}, v{D4} offset:{L_PW}")
    lin(sT, [(sT, 2048), (sT+1, 256)], PB)
    a(f"v_add_u32 v{vT+7}, s{sT}, v{vL4}")
    a(f"s_cmp_eq_u32 s{sT+1}, 0")
    a("s_waitcnt lgkmcnt(0)")
    a("s_barrier")
    a(f"ds_read_b128 {v(R,4)}, v{vT+6} offset:{L_PW}")
    a(f"ds_read_b128 {v(R+4,4)}, v{vT+6} offset:{L_PW+1024}")
    a("s_cbranch_scc1 L_wown")
    def wsum():
        lgkm(1)
        a(f"v_pk_add_f32 {v(R,2)}, {v(R,2)}, {v(R+2,2)}")
        a("s_waitcnt lgkmcnt(0)")
        a(f"v_pk_add_f32 {v(R+4,2)}, {v(R+4,2)}, {v(R+6,2)}")
        a(f"v_pk_add_f32 {v(R,2)}, {v(R,2)}, {v(R+4,2)}")
        a(f"v_add_f32 v{R}, v{R}, v{R+1}")
    wsum()
    a(f"global_store_dword v{vT+7}, v{R}, {p(sWS)} sc1")
    stamp(11)
    a("s_branch L_next")
    a("L_wown:")
    lin(sT, [(sL, 2*2560), (sJP, 256)], PO)
    a(f"v_add_u32 v{vT+7}, s{sT}, v{vL4}")
    modecmp()
    wsum()
    istore(f"global_store_dword v{vT+7}, v{R}, {p(sGB)}", cmp=False)
    stamp(11)
    a("s_branch L_next")

    LATE_F = opt.get("latef", 1)
    a("L_roleF:")
    lin(sT+4, [(sWAVE, 2560), (sJP, 256)])
    br("eq", sL, 0, "L_f0")
    def f_first():
        a("L_f0:")
        if not LATE_F: br("ge", sWAVE, 3, "L_f0b")
        a(f"v_cmp_lt_u32 vcc, 26, v{vLANE}")
        a(f"v_mov_b32 v{vT+1}, {3456 - 432}")
        a(f"v_cndmask_b32 v{vT}, 0, v{vT+1}, vcc")
        a(f"v_lshl_add_u32 v{vT}, v{vLANE}, 4, v{vT}")
        lin(sT, [(sJP, 64*3456), (sGX, 432)])
        a(f"v_add_u32 v{vT}, s{sT}, v{vT}")
        if LATE_F: a("s_barrier")
        setexec((1 << 54) - 1)
        def fbody():
            a(f"s_mul_i32 s{sT+1}, s{sI}, 864"); a(f"s_add_u32 m0, s{sT+1}, {L_WA}")
            a(f"s_and_b32 s{sT+1}, s{sI}, 31"); a(f"s_mul_i32 s{sT+1}, s{sT+1}, {2*3456}")
            a(f"s_cmp_lt_u32 s{sI}, 32")
            a(f"s_cselect_b64 s[{sT+2}:{sT+3}], {p(sW1)}, {p(sW3)}")
            a(f"v_add_u32 v{vT+1}, s{sT+1}, v{vT}")
            a(f"global_load_lds_dwordx4 v{vT+1}, s[{sT+2}:{sT+3}]{NT}")
        dma_loop(64, fbody, 8 if LATE_F else 3)
        setexec(-1)
        a("s_waitcnt vmcnt(0)")
        a("L_f0b:")
        a("s_barrier")
        stamp(10)
        br("eq", sWAVE, 7, "L_fred")
        a(f"v_mul_u32_u24 v{vT}, 432, v{vROWL}")
        a(f"v_and_b32 v{vT+1}, 3, v{vLANE}"); a(f"v_lshl_add_u32 v{vT}, v{vT+1}, 3, v{vT}")
        lin(sT, [(sWAVE, 64)], L_WA)
        a(f"v_add_u32 v{vT}, s{sT}, v{vT}")
        for t in range(4):
            for hf in range(2):
                for eh in range(2):
                    a(f"ds_read_b64_tr_b16 {v(vW + 8*t + 4*hf + 2*eh, 2)}, v{vT} offset:{(t>>1)*27648 + (t&1)*32 + (32*hf + 2*eh)*432}")
        zero_d4()
        a(f"s_add_u32 s{sT}, s{sT+4}, {CF}"); a(f"v_add_u32 v{vT+2}, s{sT}, v{vL4}")
        a("s_waitcnt lgkmcnt(0)")
        mma4(vONE)
        gather4(vS+20)
        tagword(vS+20)
        istore(f"global_store_dword v{vT+2}, v{vS+20}, {p(sGB)}")
        a("s_branch L_f1")
    cold.append(f_first)
    br("eq", sWAVE, 7, "L_fred")
    a("L_f1:")
    lin(sT, [(sL, 17920), (sT+4, 1)], GF)
    a("L_proj:")
    a(f"v_add_u32 v{vT+2}, s{sT}, v{vL4}")
    zero_d4()
    modecmp()
    a("s_barrier")
    a(f"ds_read_b128 {v(vS,4)}, v{vXA} offset:{L_XL}")
    a("s_waitcnt lgkmcnt(0)")
    mma4(vS)
    gather4(vS+20)
    a(f"v_min_u32 v{vS+20}, -2, v{vS+20}")
    istore(f"global_store_dword v{vT+2}, v{vS+20}, {p(sGB)}", cmp=False)
    stamp(13)
    a("s_branch L_next")
    a("L_fred:")
    red(0, 11)
    for o in red_relay(): a(o)
    red_publish_stats()
    istore(f"global_store_dword v{vT+12}, v{R+8}, {p(sGB)}", cmp=False)
    a("s_branch L_next")

    a("L_roleQ:")
    br("eq", sL, 0, "L_q0")
    def q_first():
        a("L_q0:")
        br("lt", sWAVE, 3, "L_q0z")
        for r in range(4): a(f"v_mov_b32 v{vS+24+r}, 0")
        lin(sT, [(sWAVE, 1024)], L_W2 + 24*1024)
        a(f"v_lshl_add_u32 v{vT}, v{vLANE}, 4, s{sT}")
        a(f"ds_write_b128 v{vT}, {v(vS+24,4)}")
        a("L_q0z:")
        lin(sT, [(sJP, 64*8192), (sGX, 1024)])
        a(f"v_lshl_add_u32 v{vT}, v{vLANE}, 4, s{sT}")
        def qbody():
            a(f"s_lshl_b32 s{sT+1}, s{sI}, 10"); a(f"s_add_u32 m0, s{sT+1}, {L_WA}")
            a(f"s_and_b32 s{sT+1}, s{sI}, 12"); a(f"s_and_b32 s{sT+2}, s{sI}, 1"); a(f"s_lshl1_add_u32 s{sT+1}, s{sT+2}, s{sT+1}")
            a(f"s_lshl_b32 s{sT+2}, s{sI}, 13"); a(f"s_lshl4_add_u32 s{sT+1}, s{sT+1}, s{sT+2}")
            a(f"v_xor_b32 v{vT+1}, s{sT+1}, v{vT}")
            a(f"global_load_lds_dwordx4 v{vT+1}, {p(sWQ)}{NT}")
        a("s_barrier")
        dma_loop(64, qbody, 8)
        rows8_off(vT, 1280)
        lin(sT, [(sGX, 216*1280), (sJP, 128)])
        dma_loop(27, rows8_body(sT, sW2, 1280, L_W2), 8)
        a("s_waitcnt vmcnt(0) lgkmcnt(0)")
        a("s_barrier")
        stamp(14)
        trq(sWAVE)
        zero_d4()
        lin(sT, [(sWAVE, 2560), (sJP, 256)], CQ)
        a(f"v_add_u32 v{vT+2}, s{sT}, v{vL4}")
        a("s_waitcnt lgkmcnt(0)")
        mma4(vONE)
        gather4(vS+20)
        tagword(vS+20)
        istore(f"global_store_dword v{vT+2}, v{vS+20}, {p(sGB)}")
        br("eq", sWAVE, 7, "L_rq1")
        lin(sT, [(sWAVE, 2560)], CF)
        a(f"v_add_u32 v{vT}, s{sT}, v{vL4}")
        colsum_gather(vT, vCSF)
        a("s_branch L_rq1")
    cold.append(q_first)
    a("L_rq1:")
    H, D2 = vS, vS + 32
    br("lt", sWAVE, 4, "L_now2")
    a(f"v_lshlrev_b32 v{vT}, 7, v{vROWL}")
    a(f"v_bfe_u32 v{vT+1}, v{vROWL}, 2, 2"); a(f"v_xor_b32 v{vT+1}, s{sW}, v{vT+1}"); a(f"v_lshl_add_u32 v{vT}, v{vT+1}, 5, v{vT}")
    a(f"v_and_b32 v{vT+1}, 3, v{vLANE}"); a(f"v_lshl_add_u32 v{vT}, v{vT+1}, 3, v{vT}")
    a(f"v_add_u32 v{vT}, {L_W2}, v{vT}")
    for st in range(4):
        for hf in range(2):
            for eh in range(2):
                a(f"ds_read_b64_tr_b16 {v(vW + 8*st + 4*hf + 2*eh,2)}, v{vT} offset:{st*8192 + hf*4096 + eh*256}")
    a(f"v_mov_b32 v{D2}, 0"); a(f"v_mov_b32 v{D2+1}, 0")
    a(f"v_and_b32 v{vT+3}, 60, v{vL4}")
    lin(sT, [(sL, 160*2048), (sJP, 2048), (sW, 64)], PB + 80*2048)
    a(f"v_add_u32 v{vT+5}, s{sT}, v{vT+3}")
    a(f"v_lshrrev_b32 v{vT+4}, 4, v{vLANE}")
    for i, top in enumerate((7, 3)):
        a(f"v_sub_u32 v{vT+8}, {top}, v{vT+4}")
        a(f"v_sub_u32 v{vT+9}, s{sGX}, v{vT+8}"); a(f"v_and_b32 v{vT+9}, 7, v{vT+9}")
        a(f"v_mul_u32_u24 v{vT+9}, 20480, v{vT+9}"); a(f"v_lshl_add_u32 v{vT+9}, v{vT+8}, 8, v{vT+9}")
        a(f"v_add_u32 v{vT+6+i}, v{vT+5}, v{vT+9}")
    a(f"s_lshl_b32 s{sT}, s{sGX}, 8"); a(f"v_add_u32 v{vT+5}, s{sT}, v{vT+5}")
    lin(sT, [(sL, 2*2560), (sJP, 256), (sW, 64)], PO + 2560)
    a(f"v_add_u32 v{vT+3}, s{sT}, v{vT+3}")
    br("eq", sWAVE, 7, "L_hb")
    a("L_now2:")
    lin(sT, [(sL, 17920), (sWAVE, 2560)], GF)
    a(f"v_add_u32 v{vT}, s{sT}, v{vL4}")
    lin(sT, [(sL, 256)], SX)
    a(f"v_and_b32 v{vT+1}, 60, v{vL4}"); a(f"v_add_u32 v{vT+1}, s{sT}, v{vT+1}")
    a(f"s_lshl_b32 s{sT}, s{sWAVE}, 6"); a(f"v_lshl_add_u32 v{vT+2}, v{vLANE}, 1, s{sT}")
    a(f"s_cmp_eq_u32 s{sWAVE}, 6"); a(f"s_mov_b32 s{sT+8}, 0x55555555"); a(f"s_cselect_b32 s{sT+8}, 0x555555, s{sT+8}"); a(f"s_mov_b32 s{sT+9}, 0")
    consume(vT, vT+1, vCSF, None, 10)
    a(f"v_mov_b32 v{G(1)}, v{G(0)}")
    a(f"v_mul_f32 v{G(2)}, {f2u(-LOG2E):#x}, v{G(0)}")
    a(f"v_exp_f32 v{G(2)}, v{G(2)}")
    a(f"v_permlane32_swap_b32 v{G(0)}, v{G(1)}")
    a(f"v_add_f32 v{G(2)}, 1.0, v{G(2)}")
    a(f"v_rcp_f32 v{G(2)}, v{G(2)}")
    a(f"v_mul_f32 v{G(0)}, v{G(0)}, v{G(1)}")
    a(f"v_mul_f32 v{G(0)}, v{G(0)}, v{G(2)}")
    a(f"v_mov_b32_dpp v{G(1)}, v{G(0)} quad_perm:[1,1,3,3] {DPPF}")
    a(f"s_mov_b64 exec, s[{sT+8}:{sT+9}]")
    a(f"v_cvt_pk_bf16_f32 v{G(0)}, v{G(0)}, v{G(1)}")
    a(f"ds_write_b32 v{vT+2}, v{G(0)} offset:{L_HL}")
    setexec(-1)
    a("L_hb:")
    a(f"s_cmp_lt_u32 s{sWAVE}, 4")
    a("s_waitcnt lgkmcnt(0)")
    a("s_barrier")
    a("s_cbranch_scc1 L_nopush")
    for st in range(4): a(f"ds_read_b128 {v(H+4*st,4)}, v{vXA} offset:{L_HL + 128*st}")
    for st in range(4):
        lgkm(3 - st)
        a(f"v_smfmac_f32_16x16x64_bf16 {v(D2,4)}, {v(H+4*st,4)}, {v(vW+8*st,8)}, v{vIA}")
    br("lg", sL, 0, "L_push1")
    modecmp()
    a(f"v_add_f32 v{D2}, v{D2}, v{D2+1}")
    a(f"global_store_dword v{vT+6}, v{D2}, {p(sWS)} sc1")
    a("s_mov_b32 exec_hi, 0xffff")
    a(f"global_store_dword v{vT+7}, v{D2}, {p(sWS)} sc1")
    setexec(0xffff)
    istore(f"global_store_dword v{vT+3}, v{D2}, {p(sGB)}", cmp=False)
    setexec(-1)
    stamp(11)
    a("L_nopush:")
    REDW = 3
    br("lg", sL, 0, "L_last")
    trq(sWAVE)
    lin(sT, [(sWAVE, 2560), (sJP, 256)], GQ1)
    br("lg", sWAVE, REDW, "L_proj")
    a(f"v_add_u32 v{vT+2}, s{sT}, v{vL4}")
    zero_d4()
    a("L_qred:")
    red(1, 12)
    br("lg", sL, 0, "L_final")
    so = red_relay()
    a(f"ds_read_b128 {v(vS,4)}, v{vXA} offset:{L_XL}")
    for o in so: a(o)
    red_publish_stats()
    a("s_waitcnt lgkmcnt(0)")
    mma4(vS)
    gather4(vS+20)
    istore(f"global_store_dword v{vT+2}, v{vS+20}, {p(sGB)}", cmp=False)
    istore(f"global_store_dword v{vT+12}, v{R+8}, {p(sGB)}", cmp=False)
    stamp(13)
    a("L_next:")
    br("lg", sL, 0, "L_exit")
    if instr:
        a("s_waitcnt lgkmcnt(0)")
        for i in range(16): a(f"v_writelane_b32 v{vSTV}, s{sSTAMP+2*i}, {i}")
        for i in range(1, 16): a(f"s_mov_b32 s{sSTAMP+2*i}, 0")
    a(f"s_mov_b32 s{sL}, 1")
    a("s_branch L_att")
    a("L_push1:")
    setexec(0xffff)
    br("eq", sGX, 0, "L_push0")
    a(f"v_add_f32 v{D2}, v{D2}, v{D2+1}")
    a(f"global_store_dword v{vT+5}, v{D2}, {p(sWS)} sc1")
    stamp(11)
    a("s_branch L_exit")
    a("L_push0:")
    modecmp()
    a(f"v_add_f32 v{D2}, v{D2}, v{D2+1}")
    istore(f"global_store_dword v{vT+3}, v{D2}, {p(sGB)}", cmp=False)
    stamp(11)
    a("s_branch L_exit")
    a("L_last:")
    br("lg", sGX, 0, "L_exit")
    br("lg", sWAVE, REDW, "L_exit")
    a(f"s_lshl_b32 s{sT}, s{sJP}, 7"); a(f"v_lshl_add_u32 v{vT+2}, v{vLANE}, 1, s{sT}")
    a("s_branch L_qred")
    a("L_final:")
    a(f"global_store_dword v{vT+2}, v{R}, {p(sOUT)}")
    setexec(-1)
    stamp(13)
    br("lg", sJP, 0, "L_exit")
    a(f"v_mov_b32 v{vT}, {EPO}"); a(f"v_mov_b32 v{vT+1}, s{sTAG}")
    setexec(1)
    a(f"global_store_dword v{vT}, v{vT+1}, {p(sWS)}")
    if opt.get("x_pad"):
        if opt.get("x_at", -1) == 199: a("s_memrealtime s[62:63]")
        a("s_waitcnt lgkmcnt(0)")
        if opt.get("x_q"):
            setexec(-1)
            a(f"v_lshlrev_b32 v{vT}, 5, v{vLANE}"); a(f"v_add_u32 v{vT}, {STAMPS}, v{vT}")
            a(f"global_load_dwordx4 {v(vS,4)}, v{vT}, {p(sWS)} sc1"); a(f"global_load_dwordx4 {v(vS+4,4)}, v{vT}, {p(sWS)} offset:16 sc1")
            a("s_waitcnt vmcnt(0)")
            for r in range(8): a(f"v_subrev_u32 v{vS+r}, s60, v{vS+r}")
            a(f"v_min3_i32 v{vS+8}, v{vS}, v{vS+2}, v{vS+4}"); a(f"v_min_i32 v{vS+8}, v{vS+8}, v{vS+6}")
            a(f"v_max3_i32 v{vS+9}, v{vS}, v{vS+2}, v{vS+4}"); a(f"v_max_i32 v{vS+9}, v{vS+9}, v{vS+6}")
            a(f"v_max3_i32 v{vS+10}, v{vS+1}, v{vS+3}, v{vS+5}"); a(f"v_max_i32 v{vS+10}, v{vS+10}, v{vS+7}")
            a(f"v_add3_u32 v{vS+11}, v{vS+1}, v{vS+3}, v{vS+5}"); a(f"v_add_u32 v{vS+11}, v{vS+11}, v{vS+7}")
            a("s_mov_b32 s66, 0"); a("s_mov_b32 s67, 0"); a("s_mov_b32 s68, 0"); a("s_mov_b32 s69, 0"); a("s_mov_b32 s70, 0")
            a("L_xq:")
            a("s_nop 4")
            for r in range(4): a(f"v_readlane_b32 s{71+r}, v{vS+8+r}, s70")
            a("s_nop 4")
            a("s_min_i32 s66, s66, s71"); a("s_max_i32 s67, s67, s72"); a("s_max_i32 s68, s68, s73"); a("s_add_u32 s69, s69, s74")
            a("s_add_u32 s70, s70, 1"); a("s_cmp_lt_u32 s70, 64"); a("s_cbranch_scc1 L_xq")
            a("s_lshr_b32 s69, s69, 8")
            q = opt["x_q"]
            a({1: "s_sub_u32 s62, s67, s66", 2: "s_sub_u32 s62, s68, s66", 3: "s_sub_u32 s62, 0, s66", 4: "s_sub_u32 s62, s69, s66"}[q])
            a("s_add_u32 s62, s62, s60")
        a("s_sub_u32 s62, s62, s60"); a("s_lshl_b32 s62, s62, 2"); a(f"s_add_u32 s62, s62, {opt['x_pad']*100}")
        a("L_xp:")
        a("s_memrealtime s[64:65]"); a("s_waitcnt lgkmcnt(0)")
        a("s_sub_u32 s64, s64, s60"); a("s_cmp_lt_u32 s64, s62"); a("s_cbranch_scc1 L_xp")
    a("s_branch L_exit")

    a("L_late:")
    a("s_setprio 3")
    lin(sT, [(sJ, 20*8192), (sGX, 1024), (sW, 256)])
    a(f"v_and_b32 v{vT}, 15, v{vLANE}"); a(f"v_lshlrev_b32 v{vT}, 4, v{vT}")
    a(f"v_lshlrev_b32 v{vT+1}, 5, v{vG}"); a(f"v_xor_b32 v{vT}, v{vT}, v{vT+1}")
    a(f"v_lshl_add_u32 v{vT}, v{vG}, 13, v{vT}"); a(f"v_add_u32 v{vT}, s{sT}, v{vT}")
    a(f"v_xor_b32 v{vT+1}, 128, v{vT}")
    lin(sT+4, [(sW, 5120)], L_W2)
    for i in range(0 if opt.get("x_nowq") else 5):
        a(f"s_add_u32 m0, s{sT+4}, {i*1024}")
        a(f"v_add_u32 v{vT+2}, {i*32768}, v{vT + (i & 1)}")
        a(f"global_load_lds_dwordx4 v{vT+2}, {p(sWQ)}{' nt' if opt.get('pnt') else ''}")
    FX = vS + 8
    a(f"v_lshlrev_b32 v{vL4}, 2, v{vLANE}")
    for t in range(0 if opt.get("x_nox") else 5): a(f"global_load_dword v{FX+t}, v{vL4}, {p(sX_)} offset:{t*256}")
    a(f"s_mul_i32 s{sT}, s{sJ}, 40"); a(f"v_lshl_add_u32 v{vT}, v{vG}, 4, s{sT}")
    for r in range(4): a(f"v_mov_b32 v{vS+r}, 0")
    a("s_mov_b32 exec_hi, 0xffff")
    if not opt.get("x_nox"): a(f"global_load_dwordx2 {v(vS+4,2)}, v{vT}, {p(sX_)}")
    a("s_mov_b32 exec_hi, 0")
    if not opt.get("x_nox"): a(f"global_load_dwordx2 {v(vS+6,2)}, v{vT}, {p(sX_)} offset:8")
    setexec(-1)
    groupbase()
    a(f"v_mov_b32 v{vDA}, -1"); a(f"v_mov_b32 v{vT+1}, 0")
    a(f"ds_write_b32 v{vL4}, v{vDA}")
    a(f"ds_write_b32 v{vL4}, v{vT+1} offset:{L_HL+256}")
    br("lg", sWAVE, 99 if opt.get("x_noclr") else 7, "L_noclr")
    for r in range(1, 4): a(f"v_mov_b32 v{vDA+r}, -1")
    a(f"s_mul_i32 s{sT}, s{sJ}, {GCLR//32}")
    a(f"v_lshl_add_u32 v{vT}, v{vLANE}, 4, s{sT}")
    a(f"s_min_u32 s{sT}, s2, 249"); lin(sT, [(sT, 2048)], PB)
    a(f"v_lshl_add_u32 v{vT+1}, v{vLANE}, 4, s{sT}")
    a(f"global_store_dwordx4 v{vT+1}, {v(vDA,4)}, {p(sWS)} offset:1024 sc1")
    a(f"global_store_dwordx4 v{vT+1}, {v(vDA,4)}, {p(sWS)} offset:256 sc1")
    for off in (0, 1024, 2048): a(f"global_store_dwordx4 v{vT}, {v(vDA,4)}, {p(sGB)} offset:{off}")
    a("L_noclr:")
    consts(gb=False)
    epoch()
    for eh in range(2):
        a(f"v_bfe_u32 v{vT+2}, v{vLANE}, 2, 2"); a(f"v_lshl_add_u32 v{vT+2}, v{vG}, 3, v{vT+2}")
        a(f"v_add_u32 v{vT+2}, {4*eh}, v{vT+2}"); a(f"v_min_u32 v{vT+2}, 19, v{vT+2}")
        a(f"v_and_b32 v{vT+4}, 7, v{vT+2}"); a(f"v_lshlrev_b32 v{vT+4}, 5, v{vT+4}"); a(f"v_lshl_add_u32 v{vT+2}, v{vT+2}, 8, v{vT+4}")
        a(f"v_and_b32 v{vT+4}, 3, v{vLANE}"); a(f"v_lshl_add_u32 v{vT+2}, v{vT+4}, 3, v{vT+2}")
        a(f"v_add_u32 v{vT+eh}, s{sT+4}, v{vT+2}")
    a("s_waitcnt vmcnt(0)")
    stamp(1)
    br("lg", sWAVE, 99 if opt.get("x_noclr") else 7, "L_noarr")
    lin(sT, [(sGX, 512), (sJ, 16)], ARR)
    a(f"v_mov_b32 v{vT+2}, s{sT}"); a(f"v_mov_b32 v{vT+8}, s{sEP}")
    a(f"s_mul_i32 s{sT}, s{sJ}, {GCLR//32}")
    a(f"v_lshl_add_u32 v{vT+4}, v{vLANE}, 6, s{sT}")
    setexec(1)
    a(f"global_store_dword v{vT+2}, v{vT+8}, {p(sWS)} sc1")
    setexec((1 << 48) - 1)
    a(f"global_load_dword v{vT+13}, v{vT+4}, {p(sGB)} sc1")
    setexec(-1)
    a("L_noarr:")
    for t in range(8):
        for eh in range(2):
            if t: a(f"v_xor_b32 v{vT+2}, {32*t}, v{vT+eh}")
            a(f"ds_read_b64_tr_b16 {v(vW + 4*t + 2*eh, 2)}, v{vT + (2 if t else eh)}")
    sq, sm = FX+5, FX+6
    a(f"v_dot2_f32_bf16 v{sq}, v{FX}, v{FX}, 0")
    a(f"v_dot2_f32_bf16 v{sm}, v{FX}, v{vONE}, 0")
    for t in range(1, 5):
        a(f"v_dot2_f32_bf16 v{sq}, v{FX+t}, v{FX+t}, v{sq}")
        a(f"v_dot2_f32_bf16 v{sm}, v{FX+t}, v{vONE}, v{sm}")
    a(f"v_permlane32_swap_b32 v{sq}, v{sm}")
    a(f"v_add_f32 v{sq}, v{sq}, v{sm}")
    for s_ in (8, 4, 2, 1): a(f"v_add_f32_dpp v{sq}, v{sq}, v{sq} row_ror:{s_} {DPPF}")
    a(f"v_add_f32_dpp v{sq}, v{sq}, v{sq} row_bcast:15 row_mask:0xa bank_mask:0xf")
    a(f"v_mul_f32 v{sq}, {f2u(1/640):#x}, v{sq}")
    a(f"v_readlane_b32 s{sT+2}, v{sq}, 48")
    a(f"v_readlane_b32 s{sT+3}, v{sq}, 16")
    a(f"v_mov_b32 v{sm}, s{sT+2}")
    a(f"v_fma_f32 v{sm}, -v{sm}, v{sm}, s{sT+3}")
    a(f"v_max_f32 v{sm}, 0, v{sm}")
    a(f"v_add_f32 v{sm}, {f2u(1e-5):#x}, v{sm}")
    a(f"v_rsq_f32 v{sm}, v{sm}")
    for r in range(4):
        if r == 0: a("s_mov_b32 exec_hi, 0xffff")
        if r == 2: a("s_mov_b32 exec_hi, 0")
        a(f"v_lshlrev_b32 v{FX}, 16, v{vS+4+r}"); a(f"v_and_b32 v{FX+1}, 0xffff0000, v{vS+4+r}")
        a(f"v_subrev_f32 v{FX}, s{sT+2}, v{FX}"); a(f"v_subrev_f32 v{FX+1}, s{sT+2}, v{FX+1}")
        a(f"v_mul_f32 v{FX}, v{FX}, v{sm}"); a(f"v_mul_f32 v{FX+1}, v{FX+1}, v{sm}")
        a(f"v_cvt_pk_bf16_f32 v{vS+r}, v{FX}, v{FX+1}")
    setexec(-1)
    lin(sT, [(sW, 16384), (sJ, 256)], GQ0)
    a(f"v_add_u32 v{vT+2}, s{sT}, v{vL4}"); a(f"v_add_u32 v{vT+4}, 8192, v{vT+2}")
    a("s_waitcnt lgkmcnt(0)")
    for t in range(8): a(f"v_mfma_f32_16x16x32_bf16 {v(vS+4+4*t,4)}, {v(vS,4)}, {v(vW+4*t,4)}, 0")
    for t in range(1, 4):
        a(["s_mov_b32 exec_lo, 0xffff0000", "s_mov_b32 exec_lo, 0", "s_mov_b32 exec_hi, 0xffff0000"][t-1])
        a(f"v_mov_b32 v{vS+4}, v{vS+4+4*t}"); a(f"v_mov_b32 v{vS+20}, v{vS+20+4*t}")
    setexec(-1)
    tagword(vS+4); tagword(vS+20)
    if not opt.get("x_noqst"):
        a(f"global_store_dword v{vT+2}, v{vS+4}, {p(sGB)}")
        a(f"global_store_dword v{vT+4}, v{vS+20}, {p(sGB)}")
    stamp(2)
    a("L_hand:")
    a("s_setprio 0")
    a("s_waitcnt vmcnt(0)")
    a("s_barrier")
    a("s_branch L_kv")

    for c in cold: c()
    for l1, l2, text in slow:
        a(f"{l1}:")
        a(text + " sc1")
        a(f"s_branch {l2}")
    a("L_exit:")
    if lite:
        setexec(-1)
        a("s_memrealtime s[62:63]")
        lin(sT, [(2, 64), (sWAVE, 8)], STAMPS)
        a("s_waitcnt lgkmcnt(0)")
        a(f"v_mov_b32 v{vT}, s{sT}"); a(f"v_mov_b32 v{vT+2}, s60"); a(f"v_mov_b32 v{vT+3}, s62")
        a(f"global_store_dwordx2 v{vT}, {v(vT+2,2)}, {p(sWS)}")
    if instr:
        setexec(-1)
        stamp(15)
        a("s_memrealtime s[62:63]")
        a("s_waitcnt lgkmcnt(0)")
        a(f"v_writelane_b32 v{vSTV}, s62, 35")
        for i in range(16): a(f"v_writelane_b32 v{vSTV}, s{sSTAMP+2*i}, {16+i}")
        a(f"v_writelane_b32 v{vSTV}, s60, 32")
        a(f"v_writelane_b32 v{vSTV}, s{sBUD}, 33")
        a(f"v_writelane_b32 v{vSTV}, s{sMODE}, 34")
        lin(sT, [(2, 2048), (sWAVE, 256)], STAMPS)
        a(f"v_add_u32 v{vT}, s{sT}, v{vL4}")
        a(f"global_store_dword v{vT}, v{vSTV}, {p(sWS)}")
    a("L_end:")
    a("s_endpgm")
    body = a.finish()
    ref = open("interleave_layers__mha_block_cached__glu_gated_swiglu__decode.s.ref").read().split("\n")
    head = [l for l in ref if l.startswith(";") and "@launch" not in l]
    return "\n".join(head) + f"""
; @launch grid=(256,1,1) block=(512,1,1) lds={opt.get('lds', LDS_BYTES)}
.amdgcn_target "amdgcn-amd-amdhsa--gfx950"
.text
.globl {NAME}
.p2align 8
.type {NAME},@function
{NAME}:
{body}
.section .rodata,"a"
.p2align 6
.amdhsa_kernel {NAME}
  .amdhsa_next_free_vgpr 256
  .amdhsa_next_free_sgpr 102
  .amdhsa_accum_offset 256
  .amdhsa_group_segment_fixed_size 0
  .amdhsa_kernarg_size 96
  .amdhsa_user_sgpr_count 2
  .amdhsa_user_sgpr_kernarg_segment_ptr 1
  .amdhsa_system_sgpr_workgroup_id_x 1
  .amdhsa_float_denorm_mode_32 3
.end_amdhsa_kernel
"""

if __name__ == "__main__":
    out = sys.argv[1]
    instr = "instr" in sys.argv[2:]
    opt = {}
    for x in sys.argv[2:]:
        if "=" in x:
            k, val = x.split("="); opt[k] = int(val, 0)
    open(out, "w").write(gen(instr, opt))
```

```python
import sys, struct
from asmlib import Asm

NAME = "interleave_layers__mha_block_cached__glu_gated_swiglu__decode_kernel"
def f2u(x): return struct.unpack('<I', struct.pack('<f', x))[0]

GS, GCLR = 163840, 98304
ST = 0
SX = 4096
PO = 7168
OA = 17408
EARLY = 28672
GF = 33792
GQ1 = 69632
XR = 90112
GQ0 = GCLR
CF = GQ0 + 40960
RS = CF + 17920
assert XR + 7680 <= GCLR and RS + 6144 <= GS and OA + 8192 <= EARLY and EARLY + 20*27*128 >= XR + 7680
PB = 8*GS
PBC = 250*2048
ARR = PB + 4*PBC
ARR2 = ARR + 4096
EPO = ARR + 12288
STAMPS = 4 << 20
L_MODE, L_STAT = 0, 64
L_XL, L_QL, L_HL, L_PW, L_OP = 256, 512, 768, 2048, 4096
L_WA, L_W2 = 8192, 73728
LDS_BYTES = 106496
sW = 3
sX_, sK, sV, sWQ, sWO, sGB, sW1, sW3, sW2, sOUT, sWS = 4, 6, 8, 10, 12, 14, 16, 18, 20, 22, 26
sT8, sNU = 24, 25
sWAVE, sGX, sJ, sJP, sL, sBUD, sMODE, sHH, sC, sROLE = 28, 29, 30, 31, 32, 33, 34, 35, 36, 37
sKB, sVB, sEP, sTAG = 38, 40, 42, 43
sPLO, sPHI, sM, sI = 44, 45, 46, 47
sT = 48
sSTAMP = 64
sMQ, sMH, sMS = 6, 8, 38
vLANE, vIA, vIP, vCSQ, vONE = 0, 1, 2, 3, 4
vROWL, vXA, vCSF, vL4 = 8, 9, 10, 11
vT = 12
vFF, vSTV = 30, 31
vAT, vQ, vDA, vDB = 32, 48, 52, 56
vS, vW, vK, vV = 60, 96, 128, 192
ROLE_W, ROLE_F, ROLE_Q = 0, 1, 2
DPPF = "row_mask:0xf bank_mask:0xf"
LOG2E = 1.4426950408889634

def sst(i): return sSTAMP + 2*i if i < 13 else 96 + 2*(i - 13)
def p(r): return f"s[{r}:{r+1}]"
def v(r, n=1): return f"v{r}" if n == 1 else f"v[{r}:{r+n-1}]"

def gen(instr=False, opt=None):
    opt = dict(opt or {})
    lite = opt.get("lite", 0)
    NT = "" if opt.get("nont") else " nt"
    a = Asm()
    uid = [0]
    slow, cold = [], []
    def lab(s):
        uid[0] += 1
        return f"L_{s}_{uid[0]}"
    def br(cmp, x, y, target):
        a(f"s_cmp_{cmp}_u32 s{x}, {y}"); a(f"s_cbranch_scc1 {target}")
    def stamp(i):
        if instr: a(f"s_memtime s[{sst(i)}:{sst(i)+1}]")
    def count(site):
        if lite == 2:
            a(f"s_lshl_b32 s66, s{sL}, 5"); a(f"s_add_u32 s66, s66, {8*site}"); a("s_lshl_b64 s[66:67], 1, s66")
            a("s_add_u32 s64, s64, s66"); a("s_addc_u32 s65, s65, s67")
    npad = {}
    def pad(chain, last=False):
        if chain is None or not opt.get("walk", 1): return
        n = npad.get(chain, 0); npad[chain] = n + 1
        a(f"L_pad{chain}{n}:")
        a(f"s_cbranch_execz L_pad{chain}{'r' if last else n+1}")
    def walk(chain):
        if not opt.get("walk", 1): return
        a("s_mov_b64 exec, 0")
        a(f"s_branch L_pad{chain}0")
        a(f"L_pad{chain}r:")
        setexec(-1)
    def bank():
        if instr:
            a("s_waitcnt lgkmcnt(0)")
            for i in range(16): a(f"v_writelane_b32 v{vSTV}, s{sst(i)}, {i}")
            for i in (2, 3, 9, 10, 11, 12, 13, 14): a(f"s_mov_b32 s{sst(i)}, 0")
    def lgkm(n): a(f"s_waitcnt lgkmcnt({0 if instr else n})")
    def setexec(m):
        if m == -1: a("s_mov_b64 exec, -1"); return
        lo, hi = m & 0xffffffff, m >> 32
        if hi == 0 and lo < 0x80000000: a(f"s_mov_b64 exec, {lo:#x}")
        else: a(f"s_mov_b32 exec_lo, {lo:#x}"); a(f"s_mov_b32 exec_hi, {hi:#x}")
    def execs(r): a(f"s_mov_b64 exec, {p(r)}")
    def budget():
        a(f"s_sub_u32 s{sBUD}, s{sBUD}, 1")
        a("s_cbranch_scc1 L_exit")
    def lin(dst, terms, const=0):
        first = True
        for reg, coef in terms:
            t = dst if first else sT + 11
            if coef == 1:
                if first: a(f"s_add_u32 s{dst}, s{reg}, {const}"); const = 0
                else: a(f"s_add_u32 s{dst}, s{dst}, s{reg}")
                first = False; continue
            if coef & (coef - 1) == 0: a(f"s_lshl_b32 s{t}, s{reg}, {coef.bit_length()-1}")
            else: a(f"s_mul_i32 s{t}, s{reg}, {coef}")
            if not first: a(f"s_add_u32 s{dst}, s{dst}, s{t}")
            first = False
        if const: a(f"s_add_u32 s{dst}, s{dst}, {const}")
    def sentinel(dst, regs):
        regs = list(regs)
        if len(regs) == 2: a(f"v_max_u32 v{dst}, v{regs[0]}, v{regs[1]}")
        else:
            a(f"v_max3_u32 v{dst}, v{regs[0]}, v{regs[1]}, v{regs[2]}"); regs = regs[3:]
            while len(regs) >= 2:
                a(f"v_max3_u32 v{dst}, v{dst}, v{regs[0]}, v{regs[1]}"); regs = regs[2:]
            if regs: a(f"v_max_u32 v{dst}, v{dst}, v{regs[0]}")
        a(f"v_cmp_eq_u32 vcc, -1, v{dst}")
    def zero2(r): return f"v_mov_b64 {v(r,2)}, 0"
    NC = opt.get("nc", 4)
    sPB = [sWS, 90, 92, 94]
    def ppoll(loads, check, PD=1):
        for _ in range(PD - 1):
            for t in loads: a(t)
            a("s_nop 12" if PD > 2 else "s_sleep 2")
        l = lab("pp")
        a(f"{l}:")
        for t in loads: a(t)
        budget()
        a(f"s_waitcnt vmcnt({len(loads)*(PD-1)})")
        check()
        a(f"s_cbranch_vccnz {l}")
    def modecmp(): a(f"s_cmp_lg_u32 s{sMODE}, 1")
    def istore(text, cmp=False):
        l1, l2 = lab("slow"), lab("st")
        if cmp: modecmp()
        a(f"s_cbranch_scc1 {l1}")
        a(text)
        a(f"{l2}:")
        slow.append((l1, l2, text))
    def tr4(t0, off_hf, off_eh, base=0):
        for t in range(4):
            if t: a(f"v_xor_b32 v{t0+1}, {32*t}, v{t0}")
            for hf in range(2):
                for eh in range(2):
                    a(f"ds_read_b64_tr_b16 {v(vW + 8*t + 4*hf + 2*eh, 2)}, v{t0 + (1 if t else 0)} offset:{base + hf*off_hf + eh*off_eh}")
    def trq(unit):
        a(f"v_lshrrev_b32 v{vT+1}, 1, v{vROWL}"); a(f"v_and_b32 v{vT+1}, 6, v{vT+1}")
        a(f"v_and_or_b32 v{vT+1}, v{vROWL}, 1, v{vT+1}"); a(f"v_lshlrev_b32 v{vT+1}, 5, v{vT+1}")
        a(f"s_and_b32 s{sT}, s{unit}, 1"); a(f"s_lshr_b32 s{sT+1}, s{unit}, 1")
        lin(sT, [(sT, 128), (sT+1, 16384)])
        a(f"v_xor_b32 v{vT+1}, s{sT}, v{vT+1}")
        a(f"v_lshl_add_u32 v{vT}, v{vROWL}, 8, v{vT+1}")
        a(f"v_and_b32 v{vT+1}, 3, v{vLANE}"); a(f"v_lshl_add_u32 v{vT}, v{vT+1}, 3, v{vT}")
        tr4(vT, 8192, 512, L_WA)
    def trf(unit):
        a(f"v_mul_u32_u24 v{vT}, 448, v{vROWL}")
        a(f"v_and_b32 v{vT+1}, 3, v{vLANE}"); a(f"v_lshl_add_u32 v{vT}, v{vT+1}, 3, v{vT}")
        lin(sT, [(unit, 64)], L_WA)
        a(f"v_add_u32 v{vT}, s{sT}, v{vT}")
        for t in range(4):
            for hf in range(2):
                for eh in range(2):
                    a(f"ds_read_b64_tr_b16 {v(vW + 8*t + 4*hf + 2*eh, 2)}, v{vT} offset:{(t>>1)*64*448 + (t&1)*32 + (32*hf + 2*eh)*448}")
    D4 = vS + 4
    def mma4(areg):
        for t in range(4):
            a(f"v_smfmac_f32_16x16x64_bf16 {v(D4+4*t,4)}, {v(areg,4)}, {v(vW+8*t,8)}, v{vIA}")
    GMASK = ["s_mov_b32 exec_lo, 0xffff0000", "s_mov_b32 exec_lo, 0", "s_mov_b32 exec_hi, 0xffff0000"]
    def read4(addr, off):
        for t in range(4):
            a(f"ds_read_b128 {v(vAT+4*t,4)}, v{addr} offset:{off}")
            if t < 3: a("s_lshl_b64 exec, exec, 4")
        setexec(-1)
    DP = vS + 32
    def proj_mma():
        for t in range(4):
            lgkm(3 - t)
            a(f"v_smfmac_f32_16x16x64_bf16 {v(DP,4)}, {v(vAT+4*t,4)}, {v(vW+8*t,8)}, v{vIA}")
    def stats_ops(x, t):
        o = [f"v_mul_f32 v{t+1}, v{x}, v{x}", f"v_mov_b32 v{t}, v{x}",
             f"v_permlane32_swap_b32 v{t}, v{t+1}", f"v_add_f32 v{t}, v{t}, v{t+1}"]
        o += [f"v_add_f32_dpp v{t}, v{t}, v{t} row_ror:{s} {DPPF}" for s in (8, 4, 2, 1)]
        o += [f"v_add_f32_dpp v{t}, v{t}, v{t} row_bcast:15 row_mask:0xa bank_mask:0xf"]
        return o
    def tagword(r): a(f"v_bfi_b32 v{r}, v{vFF}, s{sTAG}, v{r}")
    def untag(regs, src=None):
        for r, q in zip(regs, src or regs): a(f"v_xor_b32 v{r}, s{sT8}, v{q}")
    def tagcheck(acc, regs):
        regs = list(regs)
        a(f"v_or3_b32 v{acc}, v{regs[0]}, v{regs[1]}, v{regs[2]}"); regs = regs[3:]
        while len(regs) > 2:
            a(f"v_or3_b32 v{acc}, v{acc}, v{regs[0]}, v{regs[1]}"); regs = regs[2:]
        if len(regs) == 2:
            a(f"v_or_b32 v{acc}, v{acc}, v{regs[0]}"); regs = regs[1:]
        a(f"v_bitop3_b32 v{acc}, v{acc}, v{regs[0]}, v{vFF} bitop3:0xa8")
        a(f"v_cmp_ne_u32 vcc, 0, v{acc}")

    def G(i): return vS + 4*(i >> 1) + 2 + (i & 1)
    GA = vQ
    def gloads(areg):
        for t in range(10): a(f"global_load_dword v{G(t)}, v{areg}, {p(sGB)} offset:{t*256} sc1")
    def stat_addr(dst, terms, const):
        lin(sT, terms + [(sC, 128)], const)
        a(f"v_and_b32 v{dst}, 124, v{vL4}"); a(f"v_add_u32 v{dst}, s{sT}, v{dst}")
        a(f"v_mov_b32 v{G(14)}, 0")
    def consume(areg, sreg, cs, scale, st, tail, chain=None, mid=None):
        lr, lc, lgo = lab("gr"), lab("gc"), lab("go")
        execs(sMS)
        ppoll([f"global_load_dword v{G(14)}, v{sreg}, {p(sGB)} sc1"], lambda: a(f"v_cmp_eq_u32 vcc, -1, v{G(14)}"), PD=opt.get('pdq' if scale else 'pdh', 1))
        setexec(-1)
        d = opt.get("dq" if scale else "dh", 0)
        if d: a(f"s_nop {d-1}")
        if mid: a(f"{mid}:")
        gloads(areg)
        for s in (8, 4, 2, 1):
            src = G(14) if s == 8 else G(12)
            if s == 1: a(f"v_add_f32_dpp v{G(13)}, v{src}, v{src} row_ror:{s} {DPPF}")
            a(f"v_add_f32_dpp v{G(12)}, v{src}, v{src} row_ror:{s} {DPPF}")
            if s in (8, 1): pad(chain)
        a(f"v_permlane16_swap_b32 v{G(12)}, v{G(13)}")
        a(f"v_mul_f32 v{G(12)}, {f2u(-1/640):#x}, v{G(12)}")
        a(f"v_mul_f32 v{G(13)}, {f2u(1/640):#x}, v{G(13)}")
        a(f"v_fma_f32 v{G(13)}, -v{G(12)}, v{G(12)}, v{G(13)}")
        a(f"v_max_f32 v{G(13)}, 0, v{G(13)}")
        a(f"v_add_f32 v{G(13)}, {f2u(1e-5):#x}, v{G(13)}")
        a(f"v_rsq_f32 v{G(13)}, v{G(13)}")
        a(f"v_mul_f32 v{G(10)}, v{G(12)}, v{cs}")
        a(f"v_mov_b32 v{G(11)}, 0")
        if scale: a(f"v_mul_f32 v{G(13)}, {f2u(scale):#x}, v{G(13)}")
        pad(chain)
        a(f"{lc}:")
        for t in range(5):
            a(f"s_waitcnt vmcnt({8 - 2*t})")
            a(f"v_pk_add_f32 {v(GA,2)}, {v(G(2*t),2)}, {v(GA if t else G(10),2)}")
        stamp(st)
        a(f"v_add_f32 v{GA}, v{GA}, v{GA+1}")
        a(f"v_mul_f32 v{GA}, v{GA}, v{G(13)}")
        tail()
        pad(chain, last=True)
        sentinel(G(12), [G(i) for i in range(10)])
        a(f"s_cbranch_vccnz {lr}")
        def retry():
            a(f"{lr}:"); gloads(areg); count(0 if scale else 1); budget(); a(f"s_branch {lc}")
        cold.insert(0, retry)
    CSC = LOG2E * (128 ** -0.5)

    R = vS
    Y = vQ
    def red(kodd, st):
        lin(sT, [(sL, 160), (sGX, 10), (sJP, 1)], 80*kodd)
        lin(sT, [(sT, 2048)], PB)
        a(f"v_add_u32 v{vT+8}, s{sT}, v{vL4}")
        lin(sT, [(sL, 2*2560), (sJP, 256)], XR + kodd*2560)
        a(f"v_add_u32 v{vT+12}, s{sT}, v{vL4}")
        a(f"v_add_u32 v{vT+9}, {PO - XR}, v{vT+12}")
        lin(sT, [(sL, 2048), (sJP, 4)], SX + kodd*1024)
        a(f"v_lshrrev_b32 v{vT+13}, 5, v{vLANE}"); a(f"v_lshl_add_u32 v{vT+13}, v{vT+13}, 6, s{sT}")
        a(f"v_and_b32 v{vT+10}, 7, v{vLANE}"); a(f"v_lshl_add_u32 v{vT+13}, v{vT+10}, 7, v{vT+13}")
        a(f"v_lshlrev_b32 v{vT+10}, 1, v{vLANE}")
        a(f"v_mov_b32 v{R+9}, 0")
        a(f"s_mov_b32 s{sI}, 0")
        lres = lab("res")
        if not kodd:
            l0 = lab("r0")
            br("lg", sL, 0, l0)
            a(f"s_lshl_b32 s{sT}, s{sJP}, 7"); a(f"v_add_u32 v{R}, s{sT}, v{vT+10}")
            a(f"v_mov_b32 v{R+8}, 0")
            a(f"global_load_short_d16_hi v{R+8}, v{R}, {p(sX_)}")
            a(f"s_branch {lres}")
            a(f"{l0}:")
        if kodd:
            l0 = lab("r1")
            br("lg", sL, 0, l0); a("s_barrier"); a(f"{l0}:")
        ppoll([f"global_load_dword v{R+8}, v{vT+12}, {p(sGB)} offset:-2560 sc1"], lambda: a(f"v_cmp_eq_u32 vcc, -1, v{R+8}"))
        a(f"{lres}:")
        if kodd:
            a("s_barrier")
            a(f"s_sleep {opt.get('rd1', 10)}")
        else:
            def chk():
                a(f"v_bitop3_b32 v{R+16}, v{Y}, s{sT8}, v{vFF} bitop3:0x28")
                a(f"v_cmp_ne_u32 vcc, 0, v{R+16}")
            ppoll([f"global_load_dword v{Y}, v{vT+9}, {p(sGB)} sc1"], chk, PD=opt.get("pdr", 3))
            if opt.get("rd0", 0): a(f"s_sleep {opt['rd0']}")
        def rows(c):
            a(f"global_load_dword v{Y}, v{vT+9}, {p(sGB)} sc1")
            for t in range(1, 8): a(f"global_load_dword v{Y+t}, v{vT+8}, {p(sPB[c])} offset:{t*256} sc1")
        ltry, lm, lfin = lab("try"), lab("rm"), lab("fin")
        n0 = min(NC, 3)
        for c in range(n0):
            rows(c)
            if c < n0 - 1: a(f"s_sleep {opt.get('cd', 3)}")
        if kodd: a(f"s_cmp_lg_u32 s{sL}, 0")
        a(f"s_waitcnt vmcnt({8*(n0-1)})")
        a(f"{ltry}:")
        untag(range(R, R+2), range(Y, Y+2)); a(f"v_pk_add_f32 {v(R+10,2)}, {v(R,2)}, {v(R+8,2)}")
        untag(range(R+2, R+6), range(Y+2, Y+6)); a(f"v_pk_add_f32 {v(R+12,2)}, {v(R+2,2)}, {v(R+4,2)}")
        untag(range(R+6, R+8), range(Y+6, Y+8)); a(f"v_pk_add_f32 {v(R+10,2)}, {v(R+10,2)}, {v(R+6,2)}")
        a(f"v_pk_add_f32 {v(R+10,2)}, {v(R+10,2)}, {v(R+12,2)}")
        a(f"v_add_f32 v{R+10}, v{R+10}, v{R+11}")
        a(f"v_cvt_pk_bf16_f32 v{R+11}, v{R+10}, v{R+10}")
        if kodd: a("s_cbranch_scc1 L_final")
        a(f"ds_write_b16 v{vT+10}, v{R+11} offset:{L_XL}")
        a(f"v_and_b32 v{R+14}, 0xffff0000, v{R+11}")
        so = stats_ops(R+14, R+16)
        a(so[0]); a(so[1])
        tagcheck(R+15, range(R, R+8))
        a(so[2]); a(so[3])
        a(f"s_cbranch_vccnz {lm}")
        stamp(st)
        def more():
            a(f"{lm}:")
            count(2)
            a(f"s_add_u32 s{sI}, s{sI}, 1")
            for c in range(1, NC):
                l = lab("rn")
                br("lg", sI, c, l)
                if c == 1 and NC > 3: rows(3)
                if kodd: a(f"s_cmp_lg_u32 s{sL}, 0")
                a(f"s_waitcnt vmcnt({8*(NC-1-c)})")
                a(f"s_branch {ltry}")
                a(f"{l}:")
            rows(NC-1)
            budget()
            if kodd: a(f"s_cmp_lg_u32 s{sL}, 0")
            a("s_waitcnt vmcnt(0)")
            a(f"s_branch {ltry}")
        cold.insert(0, more)
        if kodd: execs(sMQ)
        a("s_waitcnt lgkmcnt(0)")
        a("s_barrier")
        return so[4:], lm
    def red_publish_stats():
        modecmp()
        setexec((0xff << 16) | (0xff << 48))
        istore(f"global_store_dword v{vT+13}, v{R+16}, {p(sGB)}")
        setexec(-1)
    def dma_run(areg, src, lstep, gstep, flip):
        l = lab("dma")
        a(f"s_mov_b32 s{sT+10}, {gstep}")
        a(f"{l}:")
        a(f"global_load_lds_dwordx4 v{areg}, {src}{NT}")
        a(f"s_add_u32 m0, m0, {lstep}")
        a(f"v_xad_u32 v{areg}, v{areg}, {flip}, s{sT+10}")
        a(f"s_sub_u32 s{sI}, s{sI}, 1")
        br("lg", sI, 0, l)
    def rows8_off(dst, stride):
        a(f"v_lshrrev_b32 v{dst}, 3, v{vLANE}"); a(f"v_mul_u32_u24 v{dst}, {stride}, v{dst}")
        a(f"v_and_b32 v{dst+1}, 7, v{vLANE}"); a(f"v_lshlrev_b32 v{dst+1}, 4, v{dst+1}")
        a(f"v_and_b32 v{dst+2}, 32, v{vLANE}"); a(f"v_xor_b32 v{dst+1}, v{dst+1}, v{dst+2}")
        a(f"v_add_u32 v{dst}, v{dst}, v{dst+1}")
    def unit0(dst):
        a(f"s_mul_i32 s{dst}, s{sGX}, 7"); a(f"s_min_u32 s{dst}, s{dst}, 48")
    def groupbase():
        a(f"s_mul_i32 s{sT+1}, s{sGX}, {GS}")
        a(f"s_add_u32 s{sGB}, s{sWS}, s{sT+1}"); a(f"s_addc_u32 s{sGB+1}, s{sWS+1}, 0")
    def epoch_load():
        a(f"s_mov_b32 s{sT+1}, {EPO}")
        a(f"s_load_dword s{sEP}, {p(sWS)}, s{sT+1}")
    def consts():
        for c in range(1, NC): a(f"s_add_u32 s{sPB[c]}, s{sWS}, {c*PBC}"); a(f"s_addc_u32 s{sPB[c]+1}, s{sWS+1}, 0")
        a(f"s_mov_b32 s{sL}, 0"); a(f"s_mov_b32 s{sBUD}, 100000"); a(f"s_mov_b32 s{sMODE}, 2")
        a(f"s_lshr_b32 s{sHH}, s{sJ}, 3"); a(f"s_and_b32 s{sC}, s{sJ}, 7")
        a(f"s_cmp_lt_u32 s{sGX}, 6"); a(f"s_cselect_b32 s{sNU}, 7, 6")
        a(f"s_mov_b32 s{sPLO}, 0x05040100"); a(f"s_mov_b32 s{sPHI}, 0x07060302")
        for r, m in ((sMQ, 0x000f000f), (sMH, 0x00ff00ff)): a(f"s_mov_b32 s{r}, {m:#x}"); a(f"s_mov_b32 s{r+1}, s{r}")
        a(f"v_lshlrev_b32 v{vL4}, 2, v{vLANE}")
        a(f"v_mov_b32 v{vFF}, 0xff")
        a(f"v_and_b32 v{vT}, 1, v{vLANE}")
        a(f"v_mul_u32_u24 v{vIA}, 0xaaaa, v{vT}"); a(f"v_add_u32 v{vIA}, 0x4444, v{vIA}")
        a(f"v_mul_u32_u24 v{vIP}, 0x5555, v{vT}"); a(f"v_add_u32 v{vIP}, 0x8888, v{vIP}")
        a(f"v_lshlrev_b32 v{vXA}, 4, v{vT}"); a(f"v_lshl_add_u32 v{vXA}, v{vG}, 5, v{vXA}")
        for r in range(4): a(f"v_mov_b32 v{vONE+r}, 0x3f803f80")
        a(f"v_lshrrev_b32 v{vROWL}, 5, v{vLANE}"); a(f"v_lshlrev_b32 v{vROWL}, 4, v{vROWL}")
        a(f"v_and_b32 v{vT}, 1, v{vG}"); a(f"v_lshl_add_u32 v{vROWL}, v{vT}, 2, v{vROWL}")
        a(f"v_bfe_u32 v{vT}, v{vLANE}, 2, 1"); a(f"v_add_u32 v{vROWL}, v{vROWL}, v{vT}")
        a(f"v_and_b32 v{vT}, 8, v{vLANE}"); a(f"v_add_u32 v{vROWL}, v{vROWL}, v{vT}")
        for r in range(0, 16, 2): a(zero2(vAT+r))
        if instr: a(f"v_mov_b32 v{vSTV}, 0")
    def epoch():
        a("s_waitcnt lgkmcnt(0)")
        a(f"s_getreg_b32 s{sT+1}, hwreg(HW_REG_XCC_ID, 0, 3)")
        a(f"s_add_u32 s{sTAG}, s{sEP}, 1"); a(f"s_and_b32 s{sT8}, s{sTAG}, 0xff")
        a(f"s_and_b32 s{sEP}, s{sTAG}, 0x1fffffff"); a(f"s_lshl_b32 s{sT+1}, s{sT+1}, 29"); a(f"s_or_b32 s{sEP}, s{sEP}, s{sT+1}")

    vG, vKA, vVA, vVB_ = vT+14, vT+15, vT+16, vT+17
    a("s_load_dwordx16 s[4:19], s[0:1], 0")
    a("s_load_dwordx8 s[20:27], s[0:1], 64")
    br("ge", 2, 256, "L_end")
    if instr or lite or opt.get("x_pad"): a("s_memrealtime s[60:61]")
    if lite: a("s_mov_b64 s[64:65], 0"); a("s_mov_b32 s68, 0")
    if instr:
        stamp(0)
        for i in range(1, 16): a(f"s_mov_b32 s{sst(i)}, 0")
    a(f"v_lshrrev_b32 v{vT}, 6, v0")
    a(f"v_and_b32 v{vLANE}, 63, v0")
    a(f"v_readfirstlane_b32 s{sWAVE}, v{vT}")
    a(f"s_and_b32 s{sGX}, s2, 7"); a(f"s_lshr_b32 s{sJ}, s2, 3")
    MAPS = [((13, 14, 15), (11, 12, 16)), ((13, 14, 15), (11, 12, 17)), ((18, 14, 15), (12, 13, 17)), ((18, 19, 15), (12, 13, 17)),
            ((18, 11, 15), (12, 13, 17)), ((13, 19, 15), (18, 12, 17))]
    UB, WB = MAPS[opt.get("map", 2)]
    CB = [x for x in range(11, 20) if x not in UB + WB]
    def ubits(u): return sum(((u >> i) & 1) << UB[i] for i in range(3))
    a(f"s_lshr_b32 s{sT+1}, s{sJ}, 3"); a(f"s_and_b32 s{sT+2}, s{sJ}, 16")
    a(f"s_lshl2_add_u32 s{sT}, s{sGX}, s{sT+1}"); a(f"s_xor_b32 s{sT}, s{sT}, s{sT+2}"); a(f"s_lshl_b32 s{sT}, s{sT}, 20")
    for src, bits in ((sJ, CB), (sWAVE, WB)):
        i = 0
        while i < 3:
            n = 1
            while i + n < 3 and bits[i+n] == bits[i] + n: n += 1
            a(f"s_bfe_u32 s{sT+1}, s{src}, {i | (n << 16):#x}"); a(f"s_lshl_b32 s{sT+1}, s{sT+1}, {bits[i]}"); a(f"s_or_b32 s{sT}, s{sT}, s{sT+1}")
            i += n
    a(f"v_lshrrev_b32 v{vG}, 4, v{vLANE}")
    a(f"v_and_b32 v{vKA}, 7, v{vLANE}"); a(f"v_lshlrev_b32 v{vKA}, 8, v{vKA}")
    a(f"v_and_b32 v{vT}, 8, v{vLANE}"); a(f"v_lshl_add_u32 v{vKA}, v{vT}, 3, v{vKA}")
    a(f"v_lshl_add_u32 v{vKA}, v{vG}, 4, v{vKA}")
    def entry2():
        a(f"s_add_u32 s{sVB}, s{sV}, s{sT}"); a(f"s_addc_u32 s{sVB+1}, s{sV+1}, 0")
        a(f"s_mul_i32 s{sROLE}, s{sJ}, 26"); a(f"s_lshr_b32 s{sROLE}, s{sROLE}, 8")
        if opt.get("x_norole"): a(f"s_mov_b32 s{sROLE}, 3")
        a(f"s_and_b32 s{sW}, s{sWAVE}, 3")
        a(f"s_mul_i32 s{sJP}, s{sROLE}, 10"); a(f"s_sub_u32 s{sJP}, s{sJ}, s{sJP}")
        a(f"v_and_b32 v{vT}, 15, v{vLANE}")
        if UB[1] == UB[0] + 1: a(f"v_lshlrev_b32 v{vVA}, {UB[0]}, v{vG}")
        else:
            a(f"v_and_b32 v{vVA}, 1, v{vG}"); a(f"v_lshlrev_b32 v{vVA}, {UB[0]}, v{vVA}")
            a(f"v_lshrrev_b32 v{vVB_}, 5, v{vLANE}"); a(f"v_lshl_add_u32 v{vVA}, v{vVB_}, {UB[1]}, v{vVA}")
        a(f"v_lshl_add_u32 v{vVA}, v{vT}, 4, v{vVA}")
        a(f"v_add_u32 v{vVB_}, {1 << UB[2]}, v{vVA}")
        for r in range(2, 14, 2): a(zero2(vT+r))
    N0, N1, WIN, TAIL = opt.get("n0", 4), opt.get("n1", 5), opt.get("wa", 6), opt.get("tail", 6)
    def kload(i):
        u, hf = i >> 1, i & 1
        a(f"global_load_dwordx4 {v(vK+8*u+4*hf,4)}, v{vKA}, {p(sKB)} offset:{hf*128}{NT}")
        gap(i, f"v_xor_b32 v{vKA}, {ubits(u) ^ ubits(u+1)}, v{vKA}" if (hf and u < 7) else None)
    def gap(i, op=None):
        if op: a(op)
        if WIN and WIN - 1 <= i < 31 - TAIL: a(f"s_waitcnt vmcnt({WIN-1})")
        elif not op and i < 31: a("s_nop 0")
    a("s_waitcnt lgkmcnt(0)")
    a(f"s_add_u32 s{sKB}, s{sK}, s{sT}"); a(f"s_addc_u32 s{sKB+1}, s{sK+1}, 0")
    br("ge", sWAVE, 4, "L_late")
    for i in range(N0): kload(i)
    entry2()
    a(f"s_mov_b32 s{sI}, 16")
    br("eq", sROLE, ROLE_W, "L_lw")
    br("eq", sROLE, ROLE_F, "L_lf")
    br("lg", sROLE, ROLE_Q, "L_kv")
    a(f"s_and_b32 s{sT+1}, s{sW}, 2"); a(f"s_lshl_b32 s{sT+1}, s{sT+1}, 11")
    lin(sT, [(sJP, 64*8192), (sGX, 1024), (sW, 256)])
    a(f"s_xor_b32 s{sT}, s{sT}, s{sT+1}")
    a(f"v_lshlrev_b32 v{vT}, 4, v{vT}")
    a(f"v_and_b32 v{vT+1}, 16, v{vLANE}"); a(f"v_lshlrev_b32 v{vT+1}, 1, v{vT+1}"); a(f"v_xor_b32 v{vT}, v{vT}, v{vT+1}")
    a(f"v_lshl_add_u32 v{vT}, v{vG}, 13, v{vT}"); a(f"v_add_u32 v{vT}, s{sT}, v{vT}")
    lin(sT+4, [(sW, 16384)], L_WA)
    for i in range(16):
        a(f"s_add_u32 m0, s{sT+4}, {i*1024}")
        a(f"v_xor_b32 v{vT+2}, {i*32768 + 64*(i & 3)}, v{vT}")
        a(f"global_load_lds_dwordx4 v{vT+2}, {p(sWQ)}{NT}")
    a("s_branch L_kv")
    a("L_lw:")
    rows8_off(vT, 1280)
    a(f"s_and_b32 s{sT+1}, s{sW}, 2"); a(f"s_lshl_b32 s{sT+1}, s{sT+1}, 3")
    a(f"s_lshl2_add_u32 s{sT}, s{sGX}, s{sW}"); a(f"s_xor_b32 s{sT}, s{sT}, s{sT+1}")
    lin(sT, [(sT, 128*1280), (sJP, 128)])
    a(f"v_add_u32 v{vT}, s{sT}, v{vT}")
    lin(sT, [(sW, 16384)], L_WA); a(f"s_mov_b32 m0, s{sT}")
    dma_run(vT, p(sWO), 1024, 10240, 64)
    a("s_branch L_kv")
    a("L_lf:")
    a(f"s_and_b32 s{sT+1}, s{sW}, 1")
    a(f"s_cmp_lt_u32 s{sW}, 2")
    a(f"s_cselect_b64 s[{sT+2}:{sT+3}], {p(sW1)}, {p(sW3)}")
    lin(sT, [(sW, 16*896)], L_WA); a(f"s_mov_b32 m0, s{sT}")
    a(f"v_cmp_lt_u32 vcc, 27, v{vLANE}")
    a(f"v_mov_b32 v{vT+1}, {3456 - 448}")
    a(f"v_cndmask_b32 v{vT}, 0, v{vT+1}, vcc")
    a(f"v_lshl_add_u32 v{vT}, v{vLANE}, 4, v{vT}")
    unit0(sT+4)
    lin(sT, [(sJP, 64*3456), (sT+4, 64), (sT+1, 32*3456)])
    a(f"v_add_u32 v{vT}, s{sT}, v{vT}")
    a(f"s_cmp_lt_u32 s{sGX}, 6")
    a("s_cselect_b32 exec_lo, -1, 0xf0ffffff"); a("s_mov_b32 exec_hi, 0xfffff"); a("s_cselect_b32 exec_hi, 0xffffff, exec_hi")
    dma_run(vT, f"s[{sT+2}:{sT+3}]", 896, 2*3456, 0)
    setexec(-1)
    a("L_kv:")
    for i in range(N0, 16):
        kload(i)
        if i == N0 + N1 - 1:
            br("ge", sWAVE, 4, "L_nob0"); a(f"s_bitcmp0_b32 6, s{sROLE}"); a("s_cbranch_scc1 L_nob0")
            a(f"s_waitcnt vmcnt({N1})"); a("s_barrier"); a("L_nob0:")
    for i, t in enumerate(list(range(8, 16)) + list(range(8))):
        d = vV + 8*(t-8) if t >= 8 else vW + 4*t
        a(f"global_load_dwordx4 {v(d,4)}, v{vVB_ if t >= 8 else vVA}, {p(sVB)} offset:{(t&7)*256}{NT}")
        gap(16 + i)
    stamp(4)
    a(f"s_mov_b32 s{sMS}, 0x03ff03ff"); a(f"s_mov_b32 s{sMS+1}, s{sMS}")
    br("ge", sWAVE, 4, "L_att")
    a("s_barrier")
    a("s_setprio 2")
    epoch_load(); groupbase(); consts(); epoch()
    a("L_perm:")
    for grp in (1, 0):
        for tp in range(4):
            a(f"s_waitcnt vmcnt({(14 if grp else 6) - 2*tp})")
            for e in range(8):
                if grp: s1, s0 = vV + 8*(2*tp) + (e >> 1), vV + 8*(2*tp+1) + (e >> 1)
                else:   s1, s0 = vW + 4*(2*tp) + (e >> 1), vW + 4*(2*tp+1) + (e >> 1)
                a(f"v_perm_b32 v{vV + 8*e + 4*grp + tp}, v{s0}, v{s1}, s{sPHI if e & 1 else sPLO}")
    br("ge", sWAVE, 4, "L_pv")
    q0 = vT + 4
    def qpos():
        a(f"v_bfe_u32 v{q0+2}, v{vLANE}, 4, 1"); a(f"v_lshlrev_b32 v{q0+2}, 6, v{q0+2}")
        a(f"v_and_b32 v{q0+3}, 44, v{vLANE}"); a(f"v_add_u32 v{q0+2}, v{q0+2}, v{q0+3}")
        a(f"v_and_b32 v{q0+3}, 2, v{vLANE}"); a(f"v_lshl_add_u32 v{q0+2}, v{q0+3}, 3, v{q0+2}")
        a(f"v_and_b32 v{q0+3}, 1, v{vLANE}"); a(f"v_lshl_add_u32 v{q0+2}, v{q0+3}, 1, v{q0+2}")
        a(f"s_lshl_b32 s{sT}, s{sWAVE}, 7"); a(f"v_add_u32 v{q0+2}, s{sT}, v{q0+2}")
    br("lg", sWAVE, 2, "L_noarr")
    lin(sT, [(sGX, 512)], ARR)
    a(f"v_and_b32 v{vT+4}, 31, v{vLANE}"); a(f"v_lshl_add_u32 v{vT+4}, v{vT+4}, 4, s{sT}")
    a("L_bar:")
    a(f"global_load_dword v{vT+8}, v{vT+4}, {p(sWS)} sc1")
    budget()
    a("s_waitcnt vmcnt(0)")
    a(f"v_xor_b32 v{vT+8}, s{sEP}, v{vT+8}")
    a(f"v_lshlrev_b32 v{vT+12}, 3, v{vT+8}")
    a(f"v_cmp_ne_u32 vcc, 0, v{vT+12}")
    a("s_cbranch_vccz L_bard")
    a(f"s_sleep 40")
    a("s_branch L_bar")
    a("L_bard:")
    a(f"v_cmp_ne_u32 vcc, 0, v{vT+8}")
    a(f"v_mov_b32 v{vT+9}, 1"); a(f"v_mov_b32 v{vT+3}, 0")
    a(f"s_cmp_{'ge' if opt.get('force_slow') else 'lg'}_u32 vcc_lo, 0")
    a("s_cbranch_scc1 L_spread")
    def spread():
        a("L_spread:")
        a("buffer_wbl2 sc1")
        a("s_waitcnt vmcnt(0)")
        a("buffer_inv sc1")
        a("s_waitcnt vmcnt(0)")
        lin(sT, [(sGX, 512), (sJ, 16)], ARR2)
        a(f"v_mov_b32 v{vT}, s{sT}"); a(f"v_mov_b32 v{vT+1}, s{sEP}")
        setexec(1)
        a(f"global_store_dword v{vT}, v{vT+1}, {p(sWS)} sc1")
        setexec(-1)
        a(f"v_add_u32 v{vT+4}, {ARR2-ARR}, v{vT+4}")
        a("L_bar2:")
        a("s_sleep 10")
        a(f"global_load_dword v{vT+8}, v{vT+4}, {p(sWS)} sc1")
        budget()
        a("s_waitcnt vmcnt(0)")
        a(f"v_xor_b32 v{vT+8}, s{sEP}, v{vT+8}")
        a(f"v_lshlrev_b32 v{vT+8}, 3, v{vT+8}")
        a(f"v_cmp_ne_u32 vcc, 0, v{vT+8}")
        a("s_cbranch_vccnz L_bar2")
        setexec(-1)
        a(f"v_mov_b32 v{vT+9}, 2")
        a("s_branch L_mode")
    cold.append(spread)
    a("L_mode:")
    a(f"ds_write_b32 v{vT+3}, v{vT+9} offset:{L_MODE}")
    a(f"s_mul_i32 s{sT}, s{sJ}, {EARLY//32}")
    a(f"v_lshl_add_u32 v{vT+15}, v{vLANE}, 7, s{sT}")
    setexec((1 << (EARLY//32 >> 7)) - 1)
    a(f"global_load_dword v{vT+15}, v{vT+15}, {p(sGB)} sc1")
    setexec(-1)
    a("L_noarr:")
    B0 = vS
    br("eq", sROLE, 3, "L_n0")
    def reduce0():
        a("L_n0:")
        a(f"s_lshl2_add_u32 s{sI}, s{sJP}, s{sW}")
        lin(sT, [(sI, 5120)], GQ0 + 2560); a(f"v_add_u32 v{q0}, s{sT}, v{vL4}")
        a(f"s_sub_u32 s{sT+1}, s{sNU}, 1"); a(f"s_min_u32 s{sT+1}, s{sT+1}, s{sI}")
        lin(sT, [(sT+1, 2560)], CF); a(f"v_add_u32 v{q0+1}, s{sT}, v{vL4}")
        lin(sT, [(sI, 768)], RS); a(f"v_add_u32 v{q0+2}, s{sT}, v{vL4}")
        br("eq", sWAVE, 2, "L_n0l")
        a(f"s_sleep {opt.get('nd', 10)}")
        a("L_n0l:")
        for t in range(20): a(f"global_load_dword v{B0+t}, v{q0}, {p(sGB)} offset:{t*256-2560} sc1")
        for t in range(10): a(f"global_load_dword v{B0+20+t}, v{q0+1}, {p(sGB)} offset:{t*256} sc1")
        budget()
        a("s_waitcnt vmcnt(0)")
        untag(range(B0, B0+30)); tagcheck(q0+3, range(B0, B0+30))
        a("s_cbranch_vccz L_n0d")
        a("s_sleep 10")
        a("s_branch L_n0l")
        a("L_n0d:")
        for i, b in enumerate((B0, B0+10, B0+20)):
            for t in range(2, 10, 2): a(f"v_pk_add_f32 {v(b,2)}, {v(b,2)}, {v(b+t,2)}")
            a(f"v_add_f32 v{b}, v{b}, v{b+1}")
            tagword(b)
        a(f"v_mov_b32 v{q0}, 0")
        a("L_n0m:")
        a(f"ds_read_b32 v{q0+1}, v{q0} offset:{L_MODE}")
        budget()
        a("s_waitcnt lgkmcnt(0)")
        a(f"v_readfirstlane_b32 s{sMODE}, v{q0+1}")
        br("eq", sMODE, -1, "L_n0m")
        modecmp()
        for i in range(3): istore(f"global_store_dword v{q0+2}, v{B0+10*i}, {p(sGB)} offset:{256*i}")
        a(f"global_load_dword v{vT+15}, v{q0+2}, {p(sGB)} offset:512 sc1")
        stamp(1)
        a("s_branch L_n0r")
    cold.append(reduce0)
    a("L_n0r:")
    br("ge", sWAVE, 2, "L_att")
    stamp(2)
    qpos()
    lin(sT, [(sHH, 1536), (sWAVE, 768)], RS)
    a(f"v_add_u32 v{q0}, s{sT}, v{vL4}")
    a("L_g0l:")
    a(f"global_load_dword v{B0}, v{q0}, {p(sGB)} sc1")
    a(f"global_load_dword v{vCSQ}, v{q0}, {p(sGB)} offset:256 sc1")
    budget()
    a("s_waitcnt vmcnt(0)")
    untag((B0, vCSQ))
    a(f"v_bitop3_b32 v{q0+3}, v{B0}, v{vCSQ}, v{vFF} bitop3:0xa8")
    a(f"v_cmp_ne_u32 vcc, 0, v{q0+3}")
    a("s_cbranch_vccz L_g0d")
    a("s_sleep 4")
    a("s_branch L_g0l")
    a("L_g0d:")
    stamp(3)
    a(f"v_mul_f32 v{B0}, {f2u(CSC):#x}, v{B0}")
    a(f"v_cvt_pk_bf16_f32 v{B0}, v{B0}, v{B0}")
    a(f"ds_write_b16 v{q0+2}, v{B0} offset:{L_QL}")
    a(f"s_lshl_b32 s{sT}, s{sWAVE}, 2"); a(f"v_mov_b32 v{q0}, s{sT}")
    a(f"ds_write_b32 v{q0}, v{q0} offset:{L_MODE+4}")
    def late_touch():
        l = lab("nt")
        br("lg", sWAVE, 3, l)
        lin(sT, [(sJ, 27*128)], EARLY - 10*27*128)
        a(f"v_lshl_add_u32 v{vT+15}, v{vLANE}, 7, s{sT}")
        setexec((1 << 27) - 1)
        a(f"global_load_dword v{vT+15}, v{vT+15}, {p(sGB)} sc1")
        setexec(-1)
        a(f"{l}:")

    WS_, WA_, SL_ = vT+12, vT+13, vT+16
    a("L_att:")
    for r in range(0, 8, 2): a(zero2(vDA+r))
    for e in range(8): a(zero2(vS+4*e))
    a(f"v_lshrrev_b32 v{vT+2}, 4, v{vLANE}"); a(f"v_lshlrev_b32 v{vT}, 6, v{vT+2}")
    a(f"v_and_b32 v{vT+1}, 3, v{vLANE}"); a(f"v_lshl_add_u32 v{vT}, v{vT+1}, 4, v{vT}")
    a(f"s_lshr_b32 s{sT+1}, s{sWAVE}, 1")
    a(f"s_and_b32 s{sT+2}, s{sJ}, 3")
    lin(sT, [(sL, 2048), (sT+1, 512), (sT+2, 128)], ST)
    a(f"v_lshl_add_u32 v{WS_}, v{vT+2}, 1, v{vLANE}"); a(f"v_and_b32 v{WS_}, 7, v{WS_}")
    a(f"v_and_or_b32 v{WS_}, v{vLANE}, 8, v{WS_}"); a(f"v_lshl_add_u32 v{WS_}, v{WS_}, 2, s{sT}")
    lin(sT, [(sL, 8192), (sWAVE, 1024)], OA)
    a(f"v_bfe_u32 v{WA_}, v{vLANE}, 2, 2"); a(f"v_lshl_add_u32 v{WA_}, v{WA_}, 8, v{vT}"); a(f"v_add_u32 v{WA_}, s{sT}, v{WA_}")
    a(f"s_lshl_b32 s{sT}, s{sWAVE}, 9"); a(f"v_lshl_add_u32 v{vT+2}, v{vLANE}, 5, s{sT}")
    lin(sT, [(sWAVE, 4), (sL, 96)], L_STAT); a(f"v_mov_b32 v{vT+3}, s{sT}")
    a(f"v_mov_b32 v{vT+1}, 0")
    a(f"s_lshl_b32 s{sT}, s{sL}, 3"); a(f"s_sub_i32 s{sI}, s{sWAVE}, s{sT}")
    a(f"s_and_b32 s{sT}, s{sWAVE}, 6")
    br("lg", sT, 2, "L_nca")
    lin(sT, [(sL, 96)], L_STAT)
    a(f"v_and_b32 v{vT+9}, 28, v{vL4}"); a(f"v_add_u32 v{vT+8}, s{sT}, v{vT+9}")
    a(f"s_lshr_b32 s{sT+1}, s{sC}, 1"); a(f"s_and_b32 s{sT+2}, s{sC}, 1")
    lin(sT, [(sL, 8192), (sHH, 2048), (sT+1, 256), (sT+2, 32)], OA)
    a(f"v_add_u32 v{vT+9}, s{sT}, v{vT+9}")
    a(f"v_bfe_u32 v{vT+10}, v{vLANE}, 3, 2"); a(f"v_lshl_add_u32 v{vT+9}, v{vT+10}, 6, v{vT+9}")
    a(f"v_lshrrev_b32 v{vT+10}, 5, v{vLANE}"); a(f"v_lshl_add_u32 v{vT+9}, v{vT+10}, 10, v{vT+9}")
    lin(sT, [(sL, 2048), (sHH, 512), (sC, 4)], ST)
    a(f"v_lshl_add_u32 v{vT+10}, v{vT+10}, 5, s{sT}")
    a(f"v_and_b32 v{vT+11}, 3, v{vLANE}"); a(f"v_lshl_add_u32 v{vT+10}, v{vT+11}, 7, v{vT+10}")
    a(f"v_lshlrev_b32 v{vT+11}, 3, v{vLANE}")
    a("L_nca:")
    a("s_setprio 1"); br("ge", sWAVE, 4, "L_npr"); a("s_setprio 2"); a("L_npr:")
    br("lt", sI, 4, "L_e0")
    def early0():
        a("L_e0:")
        a(f"ds_read_b96 {v(vT+4,3)}, v{vT+1} offset:{L_MODE}")
        budget()
        a("s_waitcnt lgkmcnt(0)")
        a(f"v_max3_u32 v{vT+4}, v{vT+4}, v{vT+5}, v{vT+6}")
        a(f"v_cmp_eq_u32 vcc, -1, v{vT+4}")
        execs(sMQ)
        a("s_cbranch_vccz L_attc")
        setexec(-1)
        a("s_sleep 2")
        a("s_branch L_e0")
        a("L_e0b:")
        a("s_barrier")
        br("lg", sROLE, ROLE_W, "L_e0r")
        wfrag()
        a("s_branch L_e0r")
    cold.append(early0)
    br("eq", sL, 0, "L_attb")
    br("ge", sWAVE, 2, "L_nqs")
    qpos()
    lin(sT, [(sHH, 5120), (sWAVE, 2560)], GQ1)
    a(f"v_add_u32 v{q0}, s{sT}, v{vL4}")
    stat_addr(q0+1, [], SX + 1024)
    walk("q")
    a("L_nqs:")
    br("lg", sROLE, ROLE_Q, "L_qgo")
    br("eq", sWAVE, 7, "L_attb")
    lin(sT, [(sWAVE, 2560), (sJP, 256)], GQ1)
    a(f"v_add_u32 v{vT+14}, s{sT}, v{vL4}")
    a(zero2(DP))
    execs(sMQ)
    a("s_waitcnt lgkmcnt(0)")
    a("s_barrier")
    read4(vXA, L_XL)
    proj_mma()
    modecmp()
    pad("q")
    a(f"v_add_f32 v{DP}, v{DP}, v{DP+1}")
    istore(f"global_store_dword v{vT+14}, v{DP}, {p(sGB)}")
    stamp(14)
    a("L_qgo:")
    br("ge", sWAVE, 2, "L_attb")
    stamp(2)
    def qtail():
        a(f"v_cvt_pk_bf16_f32 v{GA}, v{GA}, v{GA}")
        a(f"ds_write_b16 v{q0+2}, v{GA} offset:{L_QL}")
    consume(q0, q0+1, vCSQ, CSC, 3, qtail, "q")
    a("L_attb:")
    execs(sMQ)
    a("s_waitcnt vmcnt(16) lgkmcnt(0)")
    a("s_barrier")
    a("L_attc:")
    read4(vT, L_QL)
    a(f"ds_read_b32 v{vT+4}, v{vT+1} offset:{L_MODE}")
    for T in range(4):
        lgkm(4 - T)
        if T == 0: stamp(5)
        a(f"v_smfmac_f32_16x16x64_bf16 {v(vDA,4)}, {v(vAT+4*T,4)}, {v(vK+16*T,8)}, v{vIA}")
        a(f"v_smfmac_f32_16x16x64_bf16 {v(vDB,4)}, {v(vAT+4*T,4)}, {v(vK+16*T+8,8)}, v{vIA}")
    a("s_waitcnt lgkmcnt(0)")
    a(f"v_readfirstlane_b32 s{sMODE}, v{vT+4}")
    own, oth, mx = vT+4, vT+5, vT+6
    a(f"v_add_f32 v{oth}, v{vDA+2}, v{vDA+3}")
    a(f"v_add_f32 v{own}, v{vDB+2}, v{vDB+3}")
    execs(sMH)
    a(f"v_add_f32 v{oth}, v{vDB}, v{vDB+1}")
    a(f"v_add_f32 v{own}, v{vDA}, v{vDA+1}")
    setexec(-1)
    a(f"v_add_f32_dpp v{own}, v{oth}, v{own} row_ror:8 {DPPF}")
    a(f"v_max_f32_dpp v{mx}, v{own}, v{own} row_ror:8 {DPPF}")
    for s in (4, 2, 1): a(f"v_max_f32_dpp v{mx}, v{mx}, v{mx} row_ror:{s} {DPPF}")
    a(f"v_max_f32_dpp v{mx}, v{mx}, v{mx} row_bcast:15 row_mask:0xa bank_mask:0xf")
    a(f"v_max_f32_dpp v{mx}, v{mx}, v{mx} row_bcast:31 row_mask:0xc bank_mask:0xf")
    a(f"v_readlane_b32 s{sM}, v{mx}, 63")
    a(f"v_subrev_f32 v{own}, s{sM}, v{own}")
    a(f"v_exp_f32 v{own}, v{own}")
    a(f"v_mov_b32 v{mx}, s{sM}")
    a(f"ds_write_b32 v{vT+3}, v{mx}")
    a(f"v_mov_b32_dpp v{oth}, v{own} row_shl:2 {DPPF} bound_ctrl:0")
    a(f"v_cvt_pk_bf16_f32 v{vQ}, v{own}, v{oth}")
    a(f"s_cmp_ge_i32 s{sI}, 4")
    for m in range(1, 4):
        a(f"v_mov_b32_dpp v{vQ+m}, v{vQ} row_shl:{4*m} {DPPF} bound_ctrl:0")
    stamp(6)
    a("s_cbranch_scc1 L_perm")
    a("L_pv:")
    stamp(7)
    a(f"v_mfma_f32_16x16x32_bf16 {v(vS+32,4)}, {v(vQ,4)}, {v(vONE,4)}, 0")
    for e in range(8):
        a(f"v_smfmac_f32_16x16x64_bf16 {v(vS+4*e,4)}, {v(vQ,4)}, {v(vV+8*e,8)}, v{vIP}")
        if e in (0, 1): a("s_nop 1")
        if e == 2: a(f"v_add_f32 v{mx+1}, v{vS+32}, v{vS+33}")
        if e == 3: a(f"v_readfirstlane_b32 s{sT}, v{mx+1}"); a(f"v_add_f32 v{vDA}, v{vS}, v{vS+1}")
        if e == 4:
            a(f"v_mov_b32 v{mx+1}, s{sT}")
            a(f"ds_write_b32 v{vT+3}, v{mx+1} offset:32")
        if e == 5: a(f"v_add_f32 v{vDA+1}, v{vS+4}, v{vS+5}"); a(f"v_add_f32 v{vDA+2}, v{vS+8}, v{vS+9}")
        if e == 6: a(f"v_add_f32 v{vDA+3}, v{vS+12}, v{vS+13}")
    setexec(0xffff)
    a(f"ds_write_b128 v{vT+2}, {v(vDA,4)} offset:{L_OP}")
    for e in range(4, 8): a(f"v_add_f32 v{vDA+e}, v{vS+4*e}, v{vS+4*e+1}")
    a(f"ds_write_b128 v{vT+2}, {v(vDB,4)} offset:{L_OP+16}")
    a(f"ds_write_b32 v{vT+3}, v{vONE} offset:64")
    setexec(-1)
    a("s_setprio 0")
    stamp(8)
    br("lt", sI, 4, "L_e0b")
    a("L_e0r:")
    if opt.get("x_stop"): a("s_branch L_exit")
    br("eq", sWAVE, 2, "L_cstat")
    br("lg", sWAVE, 3, "L_nocomb")
    C = vS
    lsteps = ["quad_perm:[1,0,3,2]", "quad_perm:[2,3,0,1]", "row_half_mirror"]
    wst = [f"global_load_dword v{SL_}, v{WS_}, {p(sGB)} sc1"]
    def cstat():
        a("L_cstat:")
        a(f"ds_read2_b32 {v(C+16,2)}, v{vT+8} offset1:8")
        budget()
        a("s_waitcnt lgkmcnt(0)")
        a(f"v_cmp_eq_u32 vcc, -1, v{C+17}")
        a(f"v_max_f32_dpp v{C+18}, v{C+16}, v{C+16} {lsteps[0]} {DPPF}")
        a("s_cbranch_vccnz L_cstat")
        for s_ in lsteps[1:]: a(f"v_max_f32_dpp v{C+18}, v{C+18}, v{C+18} {s_} {DPPF}")
        a(f"v_sub_f32 v{C+16}, v{C+16}, v{C+18}")
        a(f"v_exp_f32 v{C+16}, v{C+16}")
        modecmp()
        a(f"v_mul_f32 v{C+17}, v{C+16}, v{C+17}")
        for s_ in lsteps[:2]: a(f"v_add_f32_dpp v{C+17}, v{C+17}, v{C+17} {s_} {DPPF}")
        a(f"v_add_f32_dpp v{C+18}, v{C+17}, v{C+17} {lsteps[2]} row_mask:0xc bank_mask:0xf")
        setexec(0x0000000f0000000f)
        istore(f"global_store_dword v{vT+10}, v{C+18}, {p(sGB)}")
        setexec(-1)
        a("s_branch L_nocomb")
    cold.insert(0, cstat)
    a("L_cm:")
    a(f"ds_read_b32 v{C+16}, v{vT+8}")
    a(f"ds_read_b32 v{C+19}, v{vT+8} offset:64")
    for w in range(4): a(f"ds_read_b64 {v(C+2*w,2)}, v{vT+11} offset:{L_OP + 512*w}")
    budget()
    a("s_waitcnt lgkmcnt(0)")
    a(f"v_cmp_eq_u32 s[{sT}:{sT+1}], -1, v{C+19}")
    a(f"v_cmp_eq_u32 vcc, -1, v{C+16}")
    a(f"s_and_b32 s{sT}, s{sT}, 15")
    a(f"s_or_b32 s{sT}, s{sT}, vcc_lo")
    a("s_cbranch_scc1 L_cm")
    for i, s in enumerate(lsteps): a(f"v_max_f32_dpp v{C+18}, v{C+18 if i else C+16}, v{C+18 if i else C+16} {s} {DPPF}")
    a(f"v_sub_f32 v{C+16}, v{C+16}, v{C+18}")
    a(f"v_exp_f32 v{C+16}, v{C+16}")
    for w in range(8): a(f"v_mov_b32_dpp v{C+20+w}, v{C+16} row_newbcast:{w} {DPPF}")
    def scaled(dst, w, acc):
        sel = f"op_sel:[0,{w&1},0] op_sel_hi:[1,{w&1},1]"
        a(f"v_pk_fma_f32 {v(dst,2)}, {v(C+2*w,2)}, {v(C+20+(w&6),2)}, {acc} {sel}")
    scaled(C, 0, "0")
    for w in range(1, 4): scaled(C, w, v(C,2))
    a("L_cs:")
    a(f"ds_read_b32 v{C+19}, v{vT+8} offset:64")
    for w in range(4, 8): a(f"ds_read_b64 {v(C+2*w,2)}, v{vT+11} offset:{L_OP + 512*w}")
    budget()
    modecmp()
    lgkm(4)
    a(f"v_cmp_eq_u32 vcc, -1, v{C+19}")
    a("s_cbranch_vccnz L_cs")
    for w in range(4, 8):
        lgkm(7 - w)
        scaled(C, w, v(C,2))
    a(wst[0])
    a(f"v_cvt_pk_bf16_f32 v{C}, v{C}, v{C+1}")
    a(f"v_min_u32 v{C+4}, -2, v{C}")
    istore(f"global_store_dword v{vT+9}, v{C+4}, {p(sGB)}")
    stamp(9)
    if lite:
        br("lg", sL, 0, "L_nolp"); a("s_memrealtime s[68:69]"); a("L_nolp:")
    br("lg", sROLE, ROLE_W, "L_nocomb")
    a("s_waitcnt vmcnt(1)")
    a(f"v_cmp_eq_u32 vcc, -1, v{SL_}")
    a("s_cbranch_vccz L_wgo")
    count(2)
    a("L_nocomb:")
    br("eq", sROLE, ROLE_F, "L_roleF")
    br("eq", sROLE, ROLE_Q, "L_roleQ")
    br("lg", sROLE, ROLE_W, "L_next")

    SM = vS + 20
    def wfrag():
        lin(sT, [(sWAVE, 8192)], L_WA)
        a(f"v_lshlrev_b32 v{vT+4}, 7, v{vROWL}")
        a(f"v_bfe_u32 v{vT+5}, v{vROWL}, 2, 2"); a(f"v_lshl_add_u32 v{vT+4}, v{vT+5}, 5, v{vT+4}")
        a(f"v_and_b32 v{vT+5}, 3, v{vLANE}"); a(f"v_lshl_add_u32 v{vT+4}, v{vT+5}, 3, v{vT+4}")
        a(f"v_add_u32 v{vT+4}, s{sT}, v{vT+4}")
        tr4(vT+4, 4096, 256)
    a(f"s_cmp_ge_i32 s{sI}, 4")
    a("s_cbranch_scc1 L_w0")
    def w_first():
        a("L_w0:")
        if opt.get("wsl", 0): a(f"s_sleep {opt.get('wsl', 3)}")
        wfrag(); a("s_branch L_wos")
    cold.append(w_first)
    a("L_wos:")
    ppoll(wst, lambda: a(f"v_cmp_eq_u32 vcc, -1, v{SL_}"), PD=opt.get('pdw', 1))
    a("L_wgo:")
    if opt.get("wdly", 0): a(f"s_nop {opt['wdly']-1}")
    a(f"global_load_dwordx4 {v(vS,4)}, v{WA_}, {p(sGB)} sc1")
    for i, s in enumerate(lsteps): a(f"v_max_f32_dpp v{SM+2}, v{SM+2 if i else SL_}, v{SM+2 if i else SL_} {s} {DPPF}")
    a(f"v_sub_f32 v{SM}, v{SL_}, v{SM+2}")
    a(f"v_exp_f32 v{SM}, v{SM}")
    a(f"v_lshlrev_b32 v{vT+6}, 4, v{vLANE}")
    a(f"v_mul_f32_dpp v{SM+1}, v{SL_}, v{SM} row_ror:8 {DPPF}")
    for s in lsteps: a(f"v_add_f32_dpp v{SM+1}, v{SM+1}, v{SM+1} {s} {DPPF}")
    a(f"v_rcp_f32 v{SM+1}, v{SM+1}")
    a(f"s_lshr_b32 s{sT+1}, s{sWAVE}, 2")
    a(f"v_mul_f32 v{SM}, v{SM}, v{SM+1}")
    lin(sT, [(sT+1, 1024), (sW, 4)])
    a(f"v_mov_b32_dpp v{SM+2}, v{SM} row_newbcast:0 {DPPF}")
    a(f"v_mov_b32_dpp v{SM+3}, v{SM} row_newbcast:1 {DPPF}")
    a(f"v_add_u32 v{vT+5}, s{sT}, v{vT+6}")
    a("L_woc:")
    for r in range(0, 16, 2): a(zero2(D4+r))
    a("s_waitcnt vmcnt(0) lgkmcnt(0)")
    stamp(10)
    mma4(vS)
    sentinel(SM, range(vS, vS+4))
    a("s_cbranch_vccnz L_wor")
    def w_retry():
        a("L_wor:")
        a(f"global_load_dwordx4 {v(vS,4)}, v{WA_}, {p(sGB)} sc1")
        count(3)
        budget()
        a("s_branch L_woc")
    cold.insert(0, w_retry)
    for t in range(4):
        a(f"v_pk_mul_f32 {v(D4+4*t,2)}, {v(D4+4*t,2)}, {v(SM+2,2)} op_sel_hi:[1,0]")
    for t in range(4):
        a(f"v_pk_fma_f32 {v(D4+4*t,2)}, {v(D4+4*t+2,2)}, {v(SM+2,2)}, {v(D4+4*t,2)} op_sel:[0,1,0]")
    for t in (0, 2, 1, 3): a(f"v_add_f32 v{D4+4*t}, v{D4+4*t}, v{D4+4*t+1}")
    a(f"v_permlane32_swap_b32 v{D4}, v{D4+8}")
    a(f"v_add_f32 v{D4}, v{D4}, v{D4+8}")
    a(f"v_permlane32_swap_b32 v{D4+4}, v{D4+12}")
    a(f"v_add_f32 v{D4+4}, v{D4+4}, v{D4+12}")
    a(f"s_sub_u32 s{sT+1}, s{sGX}, s{sWAVE}"); a(f"s_and_b32 s{sT+1}, s{sT+1}, 7")
    a(f"v_permlane16_swap_b32 v{D4}, v{D4+4}")
    a(f"v_add_f32 v{D4}, v{D4}, v{D4+4}")
    a(f"ds_write_b32 v{vT+5}, v{D4} offset:{L_PW}")
    lin(sT, [(sL, 160*2048), (sWAVE, 10*2048), (sJP, 2048), (sT+1, 256)], PB)
    a(f"v_add_u32 v{vT+7}, s{sT}, v{vL4}")
    a(f"s_cmp_eq_u32 s{sT+1}, 0")
    a("s_waitcnt lgkmcnt(0)")
    a("s_barrier")
    RW = vS + 24
    a(f"ds_read_b128 {v(RW,4)}, v{vT+6} offset:{L_PW}")
    a(f"ds_read_b128 {v(RW+4,4)}, v{vT+6} offset:{L_PW+1024}")
    a("s_cbranch_scc1 L_wown")
    def wsum():
        lgkm(1)
        a(f"v_pk_add_f32 {v(RW,2)}, {v(RW,2)}, {v(RW+2,2)}")
        a("s_waitcnt lgkmcnt(0)")
        a(f"v_pk_add_f32 {v(RW+4,2)}, {v(RW+4,2)}, {v(RW+6,2)}")
        a(f"v_pk_add_f32 {v(RW,2)}, {v(RW,2)}, {v(RW+4,2)}")
        a(f"v_add_f32 v{RW}, v{RW}, v{RW+1}")
        tagword(RW)
    wsum()
    for c in range(NC):
        a(f"global_store_dword v{vT+7}, v{RW}, {p(sPB[c])} sc1")
        if c == 0: stamp(11)
    br("lg", sL, 0, "L_exit")
    if opt.get("warm", 1):
        a(f"s_sleep {opt.get('ws', 8)}")
        a(f"v_mov_b32 v{vT+5}, 0")
        for k in range(1, 4):
            if k == 2: a(f"s_sleep {opt.get('ws2', 24)}")
            if k == 3: br("lg", sWAVE, 0, "L_next")
            a(f"v_add_u32 v{vT+7}, {80*2048}, v{vT+7}")
            for c in range(NC): a(f"global_atomic_add v{vT+7}, v{vT+5}, {p(sPB[c])}")
    a("s_branch L_next")
    a("L_wown:")
    lin(sT, [(sL, 2*2560), (sJP, 256)], PO)
    a(f"v_add_u32 v{vT+7}, s{sT}, v{vL4}")
    modecmp()
    wsum()
    istore(f"global_store_dword v{vT+7}, v{RW}, {p(sGB)}")
    stamp(11)
    a("s_branch L_next")

    a("L_roleF:")
    br("eq", sWAVE, 7, "L_fred")
    a(f"s_cmp_ge_u32 s{sWAVE}, s{sNU}"); a("s_cbranch_scc1 L_fidle")
    lin(sT+4, [(sWAVE, 2560), (sJP, 256)])
    br("eq", sL, 0, "L_f0")
    def f_first():
        a("L_f0:")
        late_touch()
        a(f"s_sleep {opt.get('fs', 4)}")
        trf(sWAVE)
        a("s_waitcnt lgkmcnt(0)")
        a("s_branch L_f1")
        a("L_fidle:")
        a("s_barrier")
        a("s_branch L_next")
    cold.append(f_first)
    a("L_f1:")
    lin(sT, [(sL, 17920), (sT+4, 1)], GF)
    a(f"v_add_u32 v{vT+2}, s{sT}, v{vL4}")
    a(zero2(DP))
    execs(sMQ)
    a("s_barrier")
    read4(vXA, L_XL)
    proj_mma()
    modecmp()
    a(f"v_add_f32 v{DP}, v{DP}, v{DP+1}")
    istore(f"global_store_dword v{vT+2}, v{DP}, {p(sGB)}")
    stamp(13)
    a("s_branch L_next")
    a("L_fred:")
    so, _ = red(0, 11)
    for o in so: a(o)
    red_publish_stats()
    istore(f"global_store_dword v{vT+12}, v{R+14}, {p(sGB)}")
    a("s_waitcnt vmcnt(2)")
    a("s_branch L_next")

    a("L_roleQ:")
    br("eq", sL, 0, "L_q0")
    def q_first():
        a("L_q0:")
        late_touch()
        a(zero2(vS+24)); a(zero2(vS+26))
        lin(sT, [(sWAVE, 1024)], L_W2 + 24*1024)
        a(f"v_lshl_add_u32 v{vT}, v{vLANE}, 4, s{sT}")
        a(f"ds_write_b128 v{vT}, {v(vS+24,4)}")
        lin(sT, [(sWAVE, 4096)], L_W2); a(f"s_mov_b32 m0, s{sT}")
        rows8_off(vT, 1280)
        unit0(sT+1)
        lin(sT, [(sT+1, 32*1280), (sWAVE, 32*1280), (sJP, 128)])
        a(f"v_add_u32 v{vT}, s{sT}, v{vT}")
        a(f"s_mov_b32 s{sI}, 4")
        lin(sT, [(sWAVE, 768)], RS + 512)
        a(f"v_add_u32 v{vT+17}, s{sT}, v{vL4}")
        a("s_waitcnt lgkmcnt(0)")
        a("s_barrier")
        a(f"s_cmp_ge_u32 s{sWAVE}, s{sNU}"); a("s_cbranch_scc1 L_q0b")
        a(f"global_load_dword v{vCSF}, v{vT+17}, {p(sGB)} sc1")
        dma_run(vT, p(sW2), 1024, 10240, 64)
        a("s_branch L_rq1")
        a("L_q0b:")
        br("eq", sWAVE, 7, "L_rq1")
        a("s_barrier")
        a("s_branch L_rq1")
        a("L_w2f:")
        execs(sMS)
        a(f"global_load_dword v{G(14)}, v{vT+1}, {p(sGB)} sc1")
        setexec(-1)
        a("s_waitcnt vmcnt(0)")
        a("s_barrier")
        stamp(14)
        br("ge", sWAVE, 4, "L_w2c")
        w2frag()
        a("L_w2c:")
        untag((vCSF,)); a(f"v_and_b32 v{vT+16}, 0xff, v{vCSF}"); a(f"v_cmp_ne_u32 vcc, 0, v{vT+16}")
        a("s_cbranch_vccnz L_w2d")
        a(f"v_cmp_eq_u32 vcc, -1, v{G(14)}")
        a("s_cbranch_vccz L_hgo")
        a("s_branch L_w2r")
        a("L_w2d:")
        a(f"global_load_dword v{vCSF}, v{vT+17}, {p(sGB)} sc1")
        budget()
        a("s_waitcnt vmcnt(0)")
        a("s_branch L_w2c")
    cold.append(q_first)
    a("L_rq1:")
    H = vS
    br("eq", sWAVE, 7, "L_q7")
    br("ge", sWAVE, 4, "L_now2")
    a(f"v_lshlrev_b32 v{vT+10}, 7, v{vROWL}")
    a(f"v_bfe_u32 v{vT+1}, v{vROWL}, 2, 2"); a(f"v_xor_b32 v{vT+1}, s{sW}, v{vT+1}"); a(f"v_lshl_add_u32 v{vT+10}, v{vT+1}, 5, v{vT+10}")
    a(f"v_and_b32 v{vT+1}, 3, v{vLANE}"); a(f"v_lshl_add_u32 v{vT+10}, v{vT+1}, 3, v{vT+10}")
    a(f"v_add_u32 v{vT+10}, {L_W2}, v{vT+10}")
    def w2frag():
        for st in range(4):
            for hf in range(2):
                for eh in range(2):
                    a(f"ds_read_b64_tr_b16 {v(vW + 8*st + 4*hf + 2*eh,2)}, v{vT+10} offset:{st*8192 + hf*4096 + eh*256}")
    br("eq", sL, 0, "L_nw2f")
    w2frag()
    a("L_nw2f:")
    a(zero2(DP))
    a(f"v_and_b32 v{vT+3}, 60, v{vL4}")
    lin(sT, [(sL, 160*2048), (sJP, 2048), (sW, 64)], PB + 80*2048)
    a(f"v_add_u32 v{vT+5}, s{sT}, v{vT+3}")
    a(f"v_lshrrev_b32 v{vT+4}, 4, v{vLANE}")
    for i, top in enumerate((7, 3)):
        a(f"v_sub_u32 v{vT+8}, {top}, v{vT+4}")
        a(f"v_sub_u32 v{vT+9}, s{sGX}, v{vT+8}"); a(f"v_and_b32 v{vT+9}, 7, v{vT+9}")
        a(f"v_mul_u32_u24 v{vT+9}, 20480, v{vT+9}"); a(f"v_lshl_add_u32 v{vT+9}, v{vT+8}, 8, v{vT+9}")
        a(f"v_add_u32 v{vT+6+i}, v{vT+5}, v{vT+9}")
    a(f"s_lshl_b32 s{sT}, s{sGX}, 8"); a(f"v_add_u32 v{vT+5}, s{sT}, v{vT+5}")
    lin(sT, [(sL, 2*2560), (sJP, 256), (sW, 64)], PO + 2560)
    a(f"v_add_u32 v{vT+3}, s{sT}, v{vT+3}")
    a("L_now2:")
    a(f"s_cmp_ge_u32 s{sWAVE}, s{sNU}"); a("s_cbranch_scc1 L_hb")
    lin(sT, [(sL, 17920), (sWAVE, 2560)], GF)
    a(f"v_add_u32 v{vT}, s{sT}, v{vL4}")
    stat_addr(vT+1, [(sL, 2048)], SX)
    a(f"v_lshrrev_b32 v{vT+2}, 5, v{vLANE}"); a(f"v_mul_u32_u24 v{vT+2}, 448, v{vT+2}")
    a(f"v_lshl_add_u32 v{vT+2}, v{vLANE}, 1, v{vT+2}")
    a(f"s_lshl_b32 s{sT}, s{sWAVE}, 6"); a(f"v_add_u32 v{vT+2}, s{sT}, v{vT+2}")
    def htail():
        a(f"v_mov_b32 v{GA+1}, v{GA}")
        a(f"v_mul_f32 v{GA+2}, {f2u(-LOG2E):#x}, v{GA}")
        a(f"v_exp_f32 v{GA+2}, v{GA+2}")
        a(f"v_permlane32_swap_b32 v{GA}, v{GA+1}")
        a(f"v_add_f32 v{GA+2}, 1.0, v{GA+2}")
        a(f"v_rcp_f32 v{GA+2}, v{GA+2}")
        a(f"v_mul_f32 v{GA}, v{GA}, v{GA+1}")
        a(f"v_mul_f32 v{GA}, v{GA}, v{GA+2}")
        a(f"v_cvt_pk_bf16_f32 v{GA}, v{GA}, v{GA}")
        a(f"ds_write_b16 v{vT+2}, v{GA} offset:{L_HL}")
    br("eq", sL, 0, "L_w2f"); a("L_w2r:")
    consume(vT, vT+1, vCSF, None, 10, htail, mid="L_hgo")
    a("L_hb:")
    a(f"s_cmp_ge_u32 s{sWAVE}, 4")
    a("s_waitcnt lgkmcnt(0)")
    a("s_barrier")
    a("s_cbranch_scc1 L_nopush")
    for st in range(4): a(f"ds_read_b128 {v(H+4*st,4)}, v{vXA} offset:{L_HL + 128*st}")
    for st in range(4):
        lgkm(3 - st)
        a(f"v_smfmac_f32_16x16x64_bf16 {v(DP,4)}, {v(H+4*st,4)}, {v(vW+8*st,8)}, v{vIA}")
    br("lg", sL, 0, "L_push1")
    modecmp()
    a(f"v_add_f32 v{DP}, v{DP}, v{DP+1}")
    a(f"v_bfi_b32 v{DP+2}, v{vFF}, s{sTAG}, v{DP}")
    for c in range(NC):
        a(f"global_store_dword v{vT+6}, v{DP+2}, {p(sPB[c])} sc1")
        a("s_mov_b32 exec_hi, 0xffff")
        a(f"global_store_dword v{vT+7}, v{DP+2}, {p(sPB[c])} sc1")
        if c == 0:
            setexec(0xffff)
            istore(f"global_store_dword v{vT+3}, v{DP+2}, {p(sGB)}")
            stamp(11)
        setexec(-1)
    a("L_nopush:")
    br("lg", sL, 0, "L_exit")
    trq(sWAVE)
    a("L_next:")
    br("lg", sL, 0, "L_exit")
    bank()
    a(f"s_mov_b32 s{sL}, 1")
    a("s_branch L_att")
    a("L_q7:")
    br("lg", sL, 0, "L_last")
    trq(sWAVE)
    lin(sT, [(sJP, 256)], GQ1 + 7*2560)
    a(f"v_add_u32 v{vT+2}, s{sT}, v{vL4}")
    a(zero2(DP))
    a("L_qred:")
    so, lmore = red(1, 12)
    read4(vXA, L_XL)
    for o in so: a(o)
    red_publish_stats()
    proj_mma()
    a(f"v_add_f32 v{DP}, v{DP}, v{DP+1}")
    istore(f"global_store_dword v{vT+2}, v{DP}, {p(sGB)}")
    stamp(13)
    istore(f"global_store_dword v{vT+12}, v{R+14}, {p(sGB)}")
    a("s_waitcnt vmcnt(3)")
    a("s_branch L_next")
    a("L_push1:")
    setexec(0xffff)
    br("eq", sGX, 0, "L_push0")
    a(f"v_add_f32 v{DP}, v{DP}, v{DP+1}")
    tagword(DP)
    for c in range(NC):
        a(f"global_store_dword v{vT+5}, v{DP}, {p(sPB[c])} sc1")
        if c == 0: stamp(11)
    a("s_branch L_exit")
    a("L_push0:")
    modecmp()
    a(f"v_add_f32 v{DP}, v{DP}, v{DP+1}")
    tagword(DP)
    istore(f"global_store_dword v{vT+3}, v{DP}, {p(sGB)}")
    stamp(11)
    a("s_branch L_exit")
    a("L_last:")
    br("lg", sGX, 0, "L_exit")
    a(f"s_lshl_b32 s{sT}, s{sJP}, 7"); a(f"v_lshl_add_u32 v{vT+2}, v{vLANE}, 1, s{sT}")
    br("lg", sJP, 0, "L_qred")
    a(f"v_mov_b32 v{vT}, {EPO}"); a(f"v_mov_b32 v{vT+1}, s{sTAG}")
    setexec(1)
    a(f"global_store_dword v{vT}, v{vT+1}, {p(sWS)}")
    setexec(-1)
    a("s_branch L_qred")
    a("L_final:")
    tagcheck(R+15, range(R, R+8))
    a(f"s_cbranch_vccnz {lmore}")
    a(f"global_store_short v{vT+2}, v{R+11}, {p(sOUT)}")
    stamp(12)
    if opt.get("x_pad"):
        br("lg", sJP, 0, "L_exit")
        a("s_memrealtime s[62:63]"); a("s_waitcnt lgkmcnt(0)")
        a("s_sub_u32 s62, s62, s60"); a(f"s_mul_i32 s62, s62, {4 if opt.get('x_at') else 0}"); a(f"s_add_u32 s62, s62, {opt['x_pad']*100}")
        a("L_xp:")
        a("s_memrealtime s[64:65]"); a("s_waitcnt lgkmcnt(0)")
        a("s_sub_u32 s64, s64, s60"); a("s_cmp_lt_u32 s64, s62"); a("s_cbranch_scc1 L_xp")
    a("s_branch L_exit")

    a("L_late:")
    a("s_setprio 3")
    entry2()
    FX = vS + 8
    a(f"v_lshlrev_b32 v{vL4}, 2, v{vLANE}")
    epoch_load()
    br("lg", sROLE, ROLE_Q, "L_nox")
    a(f"v_lshlrev_b32 v{vT}, 4, v{vLANE}")
    a(f"global_load_dwordx4 {v(FX,4)}, v{vT}, {p(sX_)}")
    a(f"global_load_dword v{FX+4}, v{vL4}, {p(sX_)} offset:1024")
    a(f"s_lshl_b32 s{sT}, s{sJP}, 7"); a(f"v_and_b32 v{vT}, 16, v{vT}"); a(f"v_lshl_add_u32 v{vT}, v{vG}, 5, v{vT}"); a(f"v_add_u32 v{vT}, s{sT}, v{vT}")
    a(f"global_load_dwordx4 {v(vS+4,4)}, v{vT}, {p(sX_)}")
    a("L_nox:")
    groupbase()
    a(f"v_mov_b32 v{vDA}, -1"); a(f"v_mov_b32 v{vT+1}, 0")
    a(f"ds_write_b32 v{vL4}, v{vDA}")
    a(f"ds_write_b32 v{vL4}, v{vT+1} offset:{L_HL+256}")
    br("lg", sWAVE, 7, "L_noclr")
    for r in range(1, 4): a(f"v_mov_b32 v{vDA+r}, -1")
    a(f"s_mul_i32 s{sT}, s{sJ}, {GCLR//32}")
    a(f"v_lshl_add_u32 v{vT}, v{vLANE}, 4, s{sT}")
    for off in (0, 1024, 2048): a(f"global_store_dwordx4 v{vT}, {v(vDA,4)}, {p(sGB)} offset:{off}")
    epoch()
    lin(sT, [(sGX, 512), (sJ, 16)], ARR)
    a(f"v_mov_b32 v{vT+2}, s{sT}"); a(f"v_mov_b32 v{vT+8}, s{sEP}")
    setexec(1)
    a("s_waitcnt vmcnt(0)")
    a(f"global_store_dword v{vT+2}, v{vT+8}, {p(sWS)} sc1")
    setexec(-1)
    a("L_noclr:")
    consts()
    br("eq", sWAVE, 7, "L_hep")
    epoch()
    a("s_waitcnt vmcnt(0)")
    a("L_hep:")
    stamp(1)
    br("eq", sROLE, ROLE_F, "L_cf")
    def colsum_f():
        a("L_cf:")
        a(f"s_mov_b32 s{sI}, s{sW}")
        a("s_barrier")
        a("L_cfl:")
        trf(sI)
        for t in range(4): a(zero2(D4+4*t))
        lin(sT, [(sI, 2560), (sJP, 256)], CF); a(f"v_add_u32 v{vT+2}, s{sT}, v{vL4}")
        a("s_waitcnt lgkmcnt(0)")
        mma4(vONE)
        for t in range(4):
            if t: a(GMASK[t-1])
            a(f"v_add_f32 v{vS+20}, v{D4+4*t}, v{D4+4*t+1}")
        setexec(-1)
        tagword(vS+20)
        a(f"global_store_dword v{vT+2}, v{vS+20}, {p(sGB)}")
        a(f"s_add_u32 s{sI}, s{sI}, 4")
        a(f"s_cmp_lt_u32 s{sI}, s{sNU}"); a("s_cbranch_scc1 L_cfl")
        a("s_branch L_hand")
    cold.append(colsum_f)
    br("lg", sROLE, ROLE_Q, "L_hand")
    sq, sm = FX+5, FX+6
    a(f"v_dot2_f32_bf16 v{sq}, v{FX}, v{FX}, 0")
    a(f"v_dot2_f32_bf16 v{sm}, v{FX}, v{vONE}, 0")
    for t in range(1, 5):
        a(f"v_dot2_f32_bf16 v{sq}, v{FX+t}, v{FX+t}, v{sq}")
        a(f"v_dot2_f32_bf16 v{sm}, v{FX+t}, v{vONE}, v{sm}")
    a(f"v_permlane32_swap_b32 v{sq}, v{sm}")
    a(f"v_add_f32 v{sq}, v{sq}, v{sm}")
    for s_ in (8, 4, 2, 1): a(f"v_add_f32_dpp v{sq}, v{sq}, v{sq} row_ror:{s_} {DPPF}")
    a(f"v_add_f32_dpp v{sq}, v{sq}, v{sq} row_bcast:15 row_mask:0xa bank_mask:0xf")
    a(f"v_mul_f32 v{sq}, {f2u(1/640):#x}, v{sq}")
    a(f"v_readlane_b32 s{sT+2}, v{sq}, 48")
    a(f"v_readlane_b32 s{sT+3}, v{sq}, 16")
    a(f"v_mov_b32 v{sm}, s{sT+2}")
    a(f"v_fma_f32 v{sm}, -v{sm}, v{sm}, s{sT+3}")
    a(f"v_max_f32 v{sm}, 0, v{sm}")
    a(f"v_add_f32 v{sm}, {f2u(1e-5):#x}, v{sm}")
    a(f"v_rsq_f32 v{sm}, v{sm}")
    for r in range(4):
        a(f"v_lshlrev_b32 v{FX}, 16, v{vS+4+r}"); a(f"v_and_b32 v{FX+1}, 0xffff0000, v{vS+4+r}")
        a(f"v_subrev_f32 v{FX}, s{sT+2}, v{FX}"); a(f"v_subrev_f32 v{FX+1}, s{sT+2}, v{FX+1}")
        a(f"v_mul_f32 v{FX}, v{FX}, v{sm}"); a(f"v_mul_f32 v{FX+1}, v{FX+1}, v{sm}")
        a(f"v_cvt_pk_bf16_f32 v{vS+r}, v{FX}, v{FX+1}")
    setexec(0xcccccccccccccccc)
    for r in range(4): a(f"v_mov_b32 v{vS+r}, v{vONE}")
    setexec(-1)
    a(f"s_lshl_b32 s{sI}, s{sW}, 1")
    a("s_barrier")
    a("L_q1l:")
    trq(sI)
    for r in range(0, 16, 2): a(zero2(D4+r))
    lin(sT, [(sI, 5120), (sJP, 256)], GQ0)
    a(f"v_add_u32 v{vT+2}, s{sT}, v{vL4}")
    a("s_waitcnt lgkmcnt(0)")
    mma4(vS)
    for t in range(4):
        if t: a(GMASK[t-1])
        a(f"v_add_f32 v{vS+20}, v{D4+4*t}, v{D4+4*t+1}"); a(f"v_add_f32 v{vS+21}, v{D4+4*t+2}, v{D4+4*t+3}")
    setexec(-1)
    tagword(vS+20); tagword(vS+21)
    a(f"global_store_dword v{vT+2}, v{vS+20}, {p(sGB)}")
    a(f"global_store_dword v{vT+2}, v{vS+21}, {p(sGB)} offset:2560")
    a(f"s_add_u32 s{sI}, s{sI}, 1")
    a(f"s_bitcmp1_b32 s{sI}, 0"); a("s_cbranch_scc1 L_q1l")
    stamp(2)
    a("L_hand:")
    a("s_setprio 0")
    a("s_waitcnt vmcnt(0)")
    a("s_barrier")
    for i in range(N0): kload(i)
    a("s_branch L_kv")

    for c in cold: c()
    for l1, l2, text in slow:
        a(f"{l1}:")
        a(text + " sc1")
        a(f"s_branch {l2}")
    a("L_exit:")
    if lite:
        setexec(-1)
        a("s_memrealtime s[62:63]")
        lin(sT, [(2, 64), (sWAVE, 8)], STAMPS)
        a("s_waitcnt lgkmcnt(0)")
        a(f"v_mov_b32 v{vT}, s{sT}"); a(f"v_mov_b32 v{vT+2}, s60"); a(f"v_mov_b32 v{vT+3}, s62")
        a(f"global_store_dwordx2 v{vT}, {v(vT+2,2)}, {p(sWS)}")
        a(f"v_add_u32 v{vT}, 16384, v{vT}"); a(f"v_mov_b32 v{vT+4}, s{64 if lite == 2 else 68}"); a(f"v_mov_b32 v{vT+5}, s65")
        a(f"global_store_dwordx2 v{vT}, {v(vT+4,2)}, {p(sWS)}")
    if instr:
        setexec(-1)
        stamp(15)
        a("s_memrealtime s[62:63]")
        a("s_waitcnt lgkmcnt(0)")
        a(f"v_writelane_b32 v{vSTV}, s62, 35")
        for i in range(16): a(f"v_writelane_b32 v{vSTV}, s{sst(i)}, {16+i}")
        a(f"v_writelane_b32 v{vSTV}, s60, 32")
        a(f"v_writelane_b32 v{vSTV}, s{sBUD}, 33")
        a(f"v_writelane_b32 v{vSTV}, s{sMODE}, 34")
        lin(sT, [(2, 2048), (sWAVE, 256)], STAMPS)
        a(f"v_add_u32 v{vT}, s{sT}, v{vL4}")
        a(f"global_store_dword v{vT}, v{vSTV}, {p(sWS)}")
    a("L_end:")
    a("s_endpgm")
    body = a.finish()
    ref = open("interleave_layers__mha_block_cached__glu_gated_swiglu__decode.s.ref").read().split("\n")
    head = [l for l in ref if l.startswith(";") and "@launch" not in l]
    return "\n".join(head) + f"""
; @launch grid=(256,1,1) block=(512,1,1) lds={opt.get('lds', LDS_BYTES)}
.amdgcn_target "amdgcn-amd-amdhsa--gfx950"
.text
.globl {NAME}
.p2align 8
.type {NAME},@function
{NAME}:
{body}
.section .rodata,"a"
.p2align 6
.amdhsa_kernel {NAME}
  .amdhsa_next_free_vgpr 256
  .amdhsa_next_free_sgpr 102
  .amdhsa_accum_offset 256
  .amdhsa_group_segment_fixed_size 0
  .amdhsa_kernarg_size 96
  .amdhsa_user_sgpr_count 2
  .amdhsa_user_sgpr_kernarg_segment_ptr 1
  .amdhsa_system_sgpr_workgroup_id_x 1
  .amdhsa_float_denorm_mode_32 3
.end_amdhsa_kernel
"""

if __name__ == "__main__":
    out = sys.argv[1]
    instr = "instr" in sys.argv[2:]
    opt = {}
    for x in sys.argv[2:]:
        if "=" in x:
            k, val = x.split("="); opt[k] = int(val, 0)
    open(out, "w").write(gen(instr, opt))
```

```python
import re

REG = re.compile(r'\b([vsa])(\d+)\b|\b([vsa])\[(\d+):(\d+)\]|\b(vcc|exec|m0|vcc_lo|vcc_hi|exec_lo|exec_hi)\b')
TRANS = ('v_exp_', 'v_log_', 'v_rcp_', 'v_rsq_', 'v_sqrt_', 'v_sin_', 'v_cos_')

def regs_of(tok):
    out = set()
    for m in REG.finditer(tok):
        if m.group(1): out.add(m.group(1) + m.group(2))
        elif m.group(3):
            for i in range(int(m.group(4)), int(m.group(5)) + 1): out.add(m.group(3) + str(i))
        else:
            n = m.group(6)
            if n in ('vcc', 'vcc_lo', 'vcc_hi'): out.add('vcc')
            elif n.startswith('exec'): out.add('exec')
            else: out.add(n)
    return out

def split_ops(s):
    ops, depth, cur = [], 0, ''
    for ch in s:
        if ch == '[': depth += 1
        if ch == ']': depth -= 1
        if ch == ',' and depth == 0: ops.append(cur.strip()); cur = ''
        else: cur += ch
    if cur.strip(): ops.append(cur.strip())
    return ops

class Ins:
    def __init__(self, text):
        self.text = text
        t = text.split(';')[0].strip()
        self.label = t[:-1] if t.endswith(':') else None
        self.directive = t.startswith('.') and not self.label
        self.op = '' if (self.label or self.directive or not t) else t.split()[0]
        rest = t[len(self.op):].strip() if self.op else ''
        ops = split_ops(rest)
        op = self.op
        self.ops = ops
        self.mfma = op.startswith('v_mfma') or op.startswith('v_smfmac')
        self.valu = op.startswith('v_') and not self.mfma
        self.dpp = '_dpp' in op
        self.trans = op.startswith(TRANS)
        self.dot = op.startswith('v_dot')
        self.perml = op.startswith('v_permlane')
        self.rdlane = op.startswith('v_readlane') or op.startswith('v_readfirstlane')
        self.vmem = op.startswith(('global_', 'buffer_'))
        self.ds = op.startswith('ds_')
        self.salu = op.startswith('s_')
        self.dma = self.vmem and ('_lds_' in op or ' lds' in t)
        self.branch = op.startswith('s_cbranch') or op == 's_branch'
        self.target = ops[0] if self.branch else None
        self.uncond = op in ('s_branch', 's_endpgm')
        w, r = set(), set()
        allr = [regs_of(o) for o in ops]
        if self.mfma:
            w = allr[0]; self.srcab = allr[1] | allr[2]
            if op.startswith('v_smfmac'): self.srcc = allr[0]; self.srcab |= allr[3]
            else: self.srcc = allr[3]
            r = self.srcab | self.srcc
        elif self.valu:
            w = set(allr[0])
            for x in allr[1:]: r |= x
            if self.perml: w |= allr[1]; r |= allr[0]
            if self.dpp or 'fmac' in op or 'dot2c' in op or op.startswith('v_writelane'): r |= allr[0]
            if '_co_' in op: w |= allr[1]
            if op.startswith('v_cndmask') and len(ops) == 3: r.add('vcc')
        elif self.vmem or self.ds:
            isload = ('load' in op or 'read' in op or 'bpermute' in op or 'swizzle' in op or ('atomic' in op and ' sc0' in t) or '_rtn' in op) and not self.dma
            if isload:
                w = allr[0]
                for x in allr[1:]: r |= x
            else:
                for x in allr: r |= x
            if self.dma: r.add('m0')
        elif self.salu and ops and not self.branch:
            if op.startswith(('s_cmp', 's_waitcnt', 's_nop', 's_sleep', 's_setprio', 's_bitcmp')):
                for x in allr: r |= x
            else:
                w = allr[0]
                for x in allr[1:]: r |= x
        self.w, self.r = w, r
        self.widestore = self.vmem and 'store' in op and ('x4' in op or 'x3' in op)
        self.states = (int(ops[0]) + 1) if op == 's_nop' else (1 if op else 0)

def need(p, c):
    n = 0
    vw = {x for x in p.w if x[0] in 'va' and x != 'vcc'}
    sw = p.w - vw
    if p.valu:
        if vw & c.r:
            if c.dpp or c.perml or c.mfma: n = max(n, 2)
            if c.rdlane: n = max(n, 1)
            if p.trans: n = max(n, 1)
        if p.dot and (vw & (c.r | c.w)):
            if c.op == p.op and not (vw & (regs_of(c.ops[1]) | regs_of(c.ops[2]))): pass
            else: n = max(n, 3)
        if sw & c.r:
            if c.valu or c.mfma: n = max(n, 4 if (c.rdlane or c.op.startswith('v_writelane')) else 2)
            if c.vmem: n = max(n, 5)
            if c.salu: n = max(n, 1)
    if p.mfma:
        assert '16x16x' in p.op
        if c.mfma:
            if vw & c.srcab: n = max(n, 8)
            if vw & c.srcc and not (vw == c.srcc and p.op == c.op): n = max(n, 6)
            if vw & c.w and not (vw == c.srcc and p.op == c.op): n = max(n, 8)
        elif vw & (c.r | c.w): n = max(n, 8)
        if c.valu and (p.srcc & c.w): n = max(n, 3)
    if p.widestore and (regs_of(p.ops[1]) & c.w): n = max(n, 2)
    if p.salu and 'm0' in p.w and c.dma: n = max(n, 1)
    return n

class Asm:
    def __init__(self): self.lines = []
    def __call__(self, s):
        for l in s.split('\n'):
            l = l.strip()
            if l: self.lines.append(l)
    def finish(self):
        ins = [Ins(l) for l in self.lines]
        incoming = {}
        for _pass in range(3):
            out, hist, nops = [], [], 0
            newin = {}
            for i in ins:
                if i.label:
                    hist = hist + incoming.get(i.label, []) + newin.get(i.label, [])
                    out.append(i.text); continue
                if not i.op:
                    out.append(i.text); continue
                k = 0
                for p, age in hist:
                    k = max(k, need(p, i) - age)
                if k > 0:
                    out.append(f's_nop {k-1}'); nops += 1
                    hist = [(p, a + k) for p, a in hist]
                out.append(i.text)
                hist = [(p, a + i.states) for p, a in hist if a + i.states < 10]
                if i.w or i.widestore or i.mfma: hist.append((i, 0))
                if i.branch: newin.setdefault(i.target, []).extend(hist)
                if i.uncond: hist = []
            incoming = newin
        self.nops = nops
        return '\n'.join(('' if (l.endswith(':') or l.startswith('.')) else '    ') + l for l in out)


import subprocess, tempfile, os

def sizes_of(lines):
    src = ['.amdgcn_target "amdgcn-amd-amdhsa--gfx950"', '.text']
    for i, l in enumerate(lines): src += [f"__m{i}:", l]
    src.append(f"__m{len(lines)}:")
    with tempfile.TemporaryDirectory() as d:
        open(d + "/a.s", "w").write("\n".join(src) + "\n")
        subprocess.run(["clang", "-x", "assembler", "-target", "amdgcn-amd-amdhsa", "-mcpu=gfx950", "-c", d + "/a.s", "-o", d + "/a.o"], check=True)
        out = subprocess.run(["llvm-objdump", "-t", d + "/a.o"], capture_output=True, text=True, check=True).stdout
    addr = {}
    for l in out.splitlines():
        f = l.split()
        if f and f[-1].startswith("__m"): addr[int(f[-1][3:])] = int(f[0], 16)
    return [addr[i+1] - addr[i] for i in range(len(lines))]

def add_pads(text, regions, nchain, ret, step=64):
    lines = [l.strip() for l in text.split("\n")]
    sz = sizes_of(lines)
    out, pos, last, inside, spots = [], 0, -1, False, []
    starts, ends = {a + ":" for a, _ in regions}, {b + ":" for _, b in regions}
    prev = ""
    for l, n in zip(lines, sz):
        if l in ends: inside = False
        if l in starts: inside = True
        op = l.split()[0] if l and not l.endswith(":") else ""
        if inside and pos // step != last:
            kind = None
            if prev.startswith(("s_branch", "s_endpgm")): kind = "dead"
            elif op == "s_nop": kind = "nop"
            elif op in ("s_barrier", "s_sleep") or (op == "s_waitcnt" and prev.split()[0:1] != ["v_smfmac_f32_16x16x64_bf16"] and "pk_" not in prev): kind = "wait"
            elif op.startswith(("s_mul_i32", "s_lshl_b32", "v_mov_b64", "ds_read_b64_tr", "global_atomic")): kind = "wait"
            if kind:
                spots.append(len(out)); out.append(kind); last = pos // step
                if kind == "nop":
                    k = int(l.split()[1])
                    if k == 0:
                        pos += 4; prev = l; continue
                    l = f"s_nop {k-1}"
                pos += 4
        out.append(l); pos += n
        if op or l.endswith(":"): prev = l
    per = -(-len(spots) // nchain)
    for i, s in enumerate(spots):
        nxt = ret if (i + 1) % per == 0 or i + 1 == len(spots) else f"L_wp{i+1}"
        head = f"L_wk{i // per}:\n" if i % per == 0 else ""
        out[s] = f"{head}L_wp{i}:\n" + (f"s_branch {nxt}" if out[s] == "dead" else f"s_cbranch_execz {nxt}")
    res = "\n".join(out).split("\n")
    return "\n".join(('' if (l.endswith(':') or l.startswith('.')) else '    ') + l for l in res), len(spots)
```

```python
import sys, struct
from asmlib import Asm, add_pads

NAME = "interleave_layers__mha_block_cached__glu_gated_swiglu__decode_kernel"
def f2u(x): return struct.unpack('<I', struct.pack('<f', x))[0]

GS, GCLR = 163840, 98304
ST = 0
SX = 4096
PO = 7168
OA = 17408
EARLY = 28672
GF = 33792
GQ1 = 69632
XR = 90112
GQ0 = GCLR
CF = GQ0 + 40960
RS = CF + 17920
assert XR + 7680 <= GCLR and RS + 6144 <= GS and OA + 8192 <= EARLY and EARLY + 20*27*128 >= XR + 7680
ARR = 8*GS
ARR2 = ARR + 4096
VOT = ARR + 8192
EPO = ARR + 12288
PB = 2 << 20
PBC = 2048
PROBE = PB + 125*16384
STAMPS = 4 << 20
L_MODE, L_STAT = 0, 64
L_XL, L_QL, L_HL, L_PW, L_OP = 256, 512, 768, 2048, 4096
L_WA, L_W2 = 8192, 73728
LDS_BYTES = 106496
sW = 3
sX_, sK, sV, sWQ, sWO, sGB, sW1, sW3, sW2, sOUT, sWS = 4, 6, 8, 10, 12, 14, 16, 18, 20, 22, 26
sT8, sNU = 24, 25
sWAVE, sGX, sJ, sJP, sL, sBUD, sMODE, sHH, sC, sROLE = 28, 29, 30, 31, 32, 33, 34, 35, 36, 37
sKB, sVB, sEP, sTAG = 38, 40, 42, 43
sPLO, sPHI, sM, sI = 44, 45, 46, 47
sT = 48
sSTAMP = 64
sCLS, sYF, sBF = 40, 41, 10
sMQ, sMH, sMS = 6, 8, 38
vLANE, vIA, vIP, vCSQ, vONE = 0, 1, 2, 3, 4
vROWL, vXA, vCSF, vL4 = 8, 9, 10, 11
vT = 12
vFF, vSTV = 30, 31
vAT, vQ, vDA, vDB = 32, 48, 52, 56
vS, vW, vK, vV = 60, 96, 128, 192
ROLE_W, ROLE_F, ROLE_Q = 0, 1, 2
DPPF = "row_mask:0xf bank_mask:0xf"
LOG2E = 1.4426950408889634

def sst(i): return sSTAMP + 2*i if i < 13 else 96 + 2*(i - 13)
def p(r): return f"s[{r}:{r+1}]"
def v(r, n=1): return f"v{r}" if n == 1 else f"v[{r}:{r+n-1}]"

def gen(instr=False, opt=None):
    opt = dict(opt or {})
    lite = opt.get("lite", 0)
    NT = "" if opt.get("nont") else " nt"
    a = Asm()
    uid = [0]
    slow, cold = [], []
    def lab(s):
        uid[0] += 1
        return f"L_{s}_{uid[0]}"
    def br(cmp, x, y, target):
        a(f"s_cmp_{cmp}_u32 s{x}, {y}"); a(f"s_cbranch_scc1 {target}")
    def stamp(i):
        if instr: a(f"s_memtime s[{sst(i)}:{sst(i)+1}]")
    def count(site):
        if lite == 2:
            a(f"s_lshl_b32 s66, s{sL}, 5"); a(f"s_add_u32 s66, s66, {8*site}"); a("s_lshl_b64 s[66:67], 1, s66")
            a("s_add_u32 s64, s64, s66"); a("s_addc_u32 s65, s65, s67")
    npad = {}
    def pad(chain, last=False):
        if chain is None or opt.get("walk", 0) != 1: return
        n = npad.get(chain, 0); npad[chain] = n + 1
        a(f"L_pad{chain}{n}:")
        a(f"s_cbranch_execz L_pad{chain}{'r' if last else n+1}")
    def walk(chain):
        if opt.get("walk", 0) != 1: return
        a("s_mov_b64 exec, 0")
        a(f"s_branch L_pad{chain}0")
        a(f"L_pad{chain}r:")
        setexec(-1)
    def align(name):
        al = opt.get("al", 0)
        if al: a(f".p2align {al}")
        for _ in range(opt.get("sh" + name, opt.get("sh", 0))): a("s_nop 0")
    def bank():
        if instr:
            a("s_waitcnt lgkmcnt(0)")
            for i in range(16): a(f"v_writelane_b32 v{vSTV}, s{sst(i)}, {i}")
            for i in (2, 3, 9, 10, 11, 12, 13, 14): a(f"s_mov_b32 s{sst(i)}, 0")
    def lgkm(n): a(f"s_waitcnt lgkmcnt({0 if instr else n})")
    def setexec(m):
        if m == -1: a("s_mov_b64 exec, -1"); return
        lo, hi = m & 0xffffffff, m >> 32
        if hi == 0 and lo < 0x80000000: a(f"s_mov_b64 exec, {lo:#x}")
        else: a(f"s_mov_b32 exec_lo, {lo:#x}"); a(f"s_mov_b32 exec_hi, {hi:#x}")
    def execs(r): a(f"s_mov_b64 exec, {p(r)}")
    def budget():
        a(f"s_sub_u32 s{sBUD}, s{sBUD}, 1")
        a("s_cbranch_scc1 L_exit")
    def lin(dst, terms, const=0):
        first = True
        for reg, coef in terms:
            t = dst if first else sT + 11
            if coef == 1:
                if first: a(f"s_add_u32 s{dst}, s{reg}, {const}"); const = 0
                else: a(f"s_add_u32 s{dst}, s{dst}, s{reg}")
                first = False; continue
            if coef & (coef - 1) == 0: a(f"s_lshl_b32 s{t}, s{reg}, {coef.bit_length()-1}")
            else: a(f"s_mul_i32 s{t}, s{reg}, {coef}")
            if not first: a(f"s_add_u32 s{dst}, s{dst}, s{t}")
            first = False
        if const: a(f"s_add_u32 s{dst}, s{dst}, {const}")
    def sentinel(dst, regs):
        regs = list(regs)
        if len(regs) == 2: a(f"v_max_u32 v{dst}, v{regs[0]}, v{regs[1]}")
        else:
            a(f"v_max3_u32 v{dst}, v{regs[0]}, v{regs[1]}, v{regs[2]}"); regs = regs[3:]
            while len(regs) >= 2:
                a(f"v_max3_u32 v{dst}, v{dst}, v{regs[0]}, v{regs[1]}"); regs = regs[2:]
            if regs: a(f"v_max_u32 v{dst}, v{dst}, v{regs[0]}")
        a(f"v_cmp_eq_u32 vcc, -1, v{dst}")
    def zero2(r): return f"v_mov_b64 {v(r,2)}, 0"
    HINT = opt.get("hint", 0)
    NC = opt.get("nc", 4)
    sPB = [sWS, 90, 92, 94]
    def ppoll(loads, check, PD=1):
        for _ in range(PD - 1):
            for t in loads: a(t)
            a({2: "s_sleep 2", 3: "s_nop 12"}.get(PD, "s_nop 9"))
        l = lab("pp")
        a(f"{l}:")
        for t in loads: a(t)
        budget()
        a(f"s_waitcnt vmcnt({len(loads)*(PD-1)})")
        check()
        a(f"s_cbranch_vccnz {l}")
    def modecmp(): a(f"s_cmp_lg_u32 s{sMODE}, 1")
    def istore(text, cmp=False):
        l1, l2 = lab("slow"), lab("st")
        if cmp: modecmp()
        a(f"s_cbranch_scc1 {l1}")
        a(text)
        a(f"{l2}:")
        slow.append((l1, l2, text))
    def tr4(t0, off_hf, off_eh, base=0):
        for t in range(4):
            if t: a(f"v_xor_b32 v{t0+1}, {32*t}, v{t0}")
            for hf in range(2):
                for eh in range(2):
                    a(f"ds_read_b64_tr_b16 {v(vW + 8*t + 4*hf + 2*eh, 2)}, v{t0 + (1 if t else 0)} offset:{base + hf*off_hf + eh*off_eh}")
    def trq(unit):
        a(f"v_lshrrev_b32 v{vT+1}, 1, v{vROWL}"); a(f"v_and_b32 v{vT+1}, 6, v{vT+1}")
        a(f"v_and_or_b32 v{vT+1}, v{vROWL}, 1, v{vT+1}"); a(f"v_lshlrev_b32 v{vT+1}, 5, v{vT+1}")
        a(f"s_and_b32 s{sT}, s{unit}, 1"); a(f"s_lshr_b32 s{sT+1}, s{unit}, 1")
        lin(sT, [(sT, 128), (sT+1, 16384)])
        a(f"v_xor_b32 v{vT+1}, s{sT}, v{vT+1}")
        a(f"v_lshl_add_u32 v{vT}, v{vROWL}, 8, v{vT+1}")
        a(f"v_and_b32 v{vT+1}, 3, v{vLANE}"); a(f"v_lshl_add_u32 v{vT}, v{vT+1}, 3, v{vT}")
        tr4(vT, 8192, 512, L_WA)
    def trf(unit):
        a(f"v_mul_u32_u24 v{vT}, 448, v{vROWL}")
        a(f"v_and_b32 v{vT+1}, 3, v{vLANE}"); a(f"v_lshl_add_u32 v{vT}, v{vT+1}, 3, v{vT}")
        lin(sT, [(unit, 64)], L_WA)
        a(f"v_add_u32 v{vT}, s{sT}, v{vT}")
        for t in range(4):
            for hf in range(2):
                for eh in range(2):
                    a(f"ds_read_b64_tr_b16 {v(vW + 8*t + 4*hf + 2*eh, 2)}, v{vT} offset:{(t>>1)*64*448 + (t&1)*32 + (32*hf + 2*eh)*448}")
    D4 = vS + 4
    def mma4(areg):
        for t in range(4):
            a(f"v_smfmac_f32_16x16x64_bf16 {v(D4+4*t,4)}, {v(areg,4)}, {v(vW+8*t,8)}, v{vIA}")
    GMASK = ["s_mov_b32 exec_lo, 0xffff0000", "s_mov_b32 exec_lo, 0", "s_mov_b32 exec_hi, 0xffff0000"]
    def read4(addr, off):
        for t in range(4):
            a(f"ds_read_b128 {v(vAT+4*t,4)}, v{addr} offset:{off}")
            if t < 3: a("s_lshl_b64 exec, exec, 4")
        setexec(-1)
    DP = vS + 32
    def proj_mma():
        for t in range(4):
            lgkm(3 - t)
            a(f"v_smfmac_f32_16x16x64_bf16 {v(DP,4)}, {v(vAT+4*t,4)}, {v(vW+8*t,8)}, v{vIA}")
    def stats_ops(x, t):
        o = [f"v_mul_f32 v{t+1}, v{x}, v{x}", f"v_mov_b32 v{t}, v{x}",
             f"v_permlane32_swap_b32 v{t}, v{t+1}", f"v_add_f32 v{t}, v{t}, v{t+1}"]
        o += [f"v_add_f32_dpp v{t}, v{t}, v{t} row_ror:{s} {DPPF}" for s in (8, 4, 2, 1)]
        o += [f"v_add_f32_dpp v{t}, v{t}, v{t} row_bcast:15 row_mask:0xa bank_mask:0xf"]
        return o
    def tagword(r): a(f"v_bfi_b32 v{r}, v{vFF}, s{sTAG}, v{r}")
    def untag(regs, src=None):
        for r, q in zip(regs, src or regs): a(f"v_xor_b32 v{r}, s{sT8}, v{q}")
    def tagcheck(acc, regs):
        regs = list(regs)
        a(f"v_or3_b32 v{acc}, v{regs[0]}, v{regs[1]}, v{regs[2]}"); regs = regs[3:]
        while len(regs) > 2:
            a(f"v_or3_b32 v{acc}, v{acc}, v{regs[0]}, v{regs[1]}"); regs = regs[2:]
        if len(regs) == 2:
            a(f"v_or_b32 v{acc}, v{acc}, v{regs[0]}"); regs = regs[1:]
        a(f"v_bitop3_b32 v{acc}, v{acc}, v{regs[0]}, v{vFF} bitop3:0xa8")
        a(f"v_cmp_ne_u32 vcc, 0, v{acc}")

    def G(i): return vS + 4*(i >> 1) + 2 + (i & 1)
    GA = vQ
    def gloads(areg):
        for t in range(10): a(f"global_load_dword v{G(t)}, v{areg}, {p(sGB)} offset:{t*256} sc1")
    def stat_addr(dst, terms, const):
        lin(sT, terms + [(sC, 128)], const)
        a(f"v_and_b32 v{dst}, 124, v{vL4}"); a(f"v_add_u32 v{dst}, s{sT}, v{dst}")
        a(f"v_mov_b32 v{G(14)}, 0")
    def consume(areg, sreg, cs, scale, st, tail, chain=None, mid=None):
        lr, lc, lgo = lab("gr"), lab("gc"), lab("go")
        execs(sMS)
        ppoll([f"global_load_dword v{G(14)}, v{sreg}, {p(sGB)} sc1"], lambda: a(f"v_cmp_eq_u32 vcc, -1, v{G(14)}"), PD=opt.get('pdq' if scale else 'pdh', 4))
        setexec(-1)
        d = opt.get("dq" if scale else "dh", 0)
        if d: a(f"s_nop {d-1}")
        if mid: a(f"{mid}:")
        if not scale and opt.get('fine'): stamp(1)
        gloads(areg)
        for s in (8, 4, 2, 1):
            src = G(14) if s == 8 else G(12)
            if s == 1: a(f"v_add_f32_dpp v{G(13)}, v{src}, v{src} row_ror:{s} {DPPF}")
            a(f"v_add_f32_dpp v{G(12)}, v{src}, v{src} row_ror:{s} {DPPF}")
            if s in (8, 1): pad(chain)
        a(f"v_permlane16_swap_b32 v{G(12)}, v{G(13)}")
        a(f"v_mul_f32 v{G(12)}, {f2u(-1/640):#x}, v{G(12)}")
        a(f"v_mul_f32 v{G(13)}, {f2u(1/640):#x}, v{G(13)}")
        a(f"v_fma_f32 v{G(13)}, -v{G(12)}, v{G(12)}, v{G(13)}")
        a(f"v_max_f32 v{G(13)}, 0, v{G(13)}")
        a(f"v_add_f32 v{G(13)}, {f2u(1e-5):#x}, v{G(13)}")
        a(f"v_rsq_f32 v{G(13)}, v{G(13)}")
        a(f"v_mul_f32 v{G(10)}, v{G(12)}, v{cs}")
        a(f"v_mov_b32 v{G(11)}, 0")
        if scale: a(f"v_mul_f32 v{G(13)}, {f2u(scale):#x}, v{G(13)}")
        pad(chain)
        a(f"{lc}:")
        for t in range(5):
            a(f"s_waitcnt vmcnt({8 - 2*t})")
            a(f"v_pk_add_f32 {v(GA,2)}, {v(G(2*t),2)}, {v(GA if t else G(10),2)}")
        stamp(st)
        a(f"v_add_f32 v{GA}, v{GA}, v{GA+1}")
        a(f"v_mul_f32 v{GA}, v{GA}, v{G(13)}")
        tail()
        pad(chain, last=True)
        sentinel(G(12), [G(i) for i in range(10)])
        a(f"s_cbranch_vccnz {lr}")
        def retry():
            a(f"{lr}:"); gloads(areg); count(0 if scale else 1); budget(); a(f"s_branch {lc}")
        cold.insert(0, retry)
    CSC = LOG2E * (128 ** -0.5)

    R = vS
    Y = vQ
    def red(kodd, st):
        pbaddr(sT, sGX, kodd)
        if kodd:
            pblast(sT+1); a(f"s_cmp_lg_u32 s{sL}, 0"); a(f"s_cselect_b32 s{sT}, s{sT+1}, s{sT}")
        a(f"v_add_u32 v{vT+8}, s{sT}, v{vL4}")
        lin(sT, [(sL, 2*2560), (sJP, 256)], XR + kodd*2560)
        a(f"v_add_u32 v{vT+12}, s{sT}, v{vL4}")
        a(f"v_add_u32 v{vT+9}, {PO - XR}, v{vT+12}")
        lin(sT, [(sL, 2048), (sJP, 4)], SX + kodd*1024)
        a(f"v_lshrrev_b32 v{vT+13}, 5, v{vLANE}"); a(f"v_lshl_add_u32 v{vT+13}, v{vT+13}, 6, s{sT}")
        a(f"v_and_b32 v{vT+10}, 7, v{vLANE}"); a(f"v_lshl_add_u32 v{vT+13}, v{vT+10}, 7, v{vT+13}")
        a(f"v_lshlrev_b32 v{vT+10}, 1, v{vLANE}")
        a(f"v_mov_b32 v{R+9}, 0")
        a(f"s_sub_u32 s{sT+8}, 0, s{sT8}"); a(f"s_subb_u32 s{sT+9}, 0, s{sT8}")
        a(f"s_mov_b32 s{sI}, 0")
        lres = lab("res")
        if not kodd:
            l0 = lab("r0")
            br("lg", sL, 0, l0)
            a(f"s_lshl_b32 s{sT}, s{sJP}, 7"); a(f"v_add_u32 v{R}, s{sT}, v{vT+10}")
            a(f"v_mov_b32 v{R+8}, 0")
            a(f"global_load_short_d16_hi v{R+8}, v{R}, {p(sX_)}")
            if HINT:
                pbaddr(sT, sGX, 0)
                a(f"v_bfe_u32 v{R+2}, v{vLANE}, 2, 3"); a(f"v_max_u32 v{R+2}, 1, v{R+2}")
                a(f"v_and_b32 v{R}, 6, v{R+2}"); a(f"v_lshlrev_b32 v{R}, 10, v{R}")
                a(f"v_and_b32 v{R+1}, 1, v{R+2}"); a(f"v_lshl_add_u32 v{R}, v{R+1}, 7, v{R}")
                a(f"v_and_b32 v{R+1}, 12, v{vL4}"); a(f"v_add3_u32 v{R}, v{R}, v{R+1}, s{sT}")
                def chk0():
                    a(f"v_bitop3_b32 v{R+16}, v{Y}, s{sT8}, v{vFF} bitop3:0x28")
                    a(f"v_bitop3_b32 v{R+16}, v{R+1}, s{sTAG}, v{R+16} bitop3:0xbe")
                    a(f"v_cmp_ne_u32 vcc, 0, v{R+16}")
                ppoll([f"global_load_dword v{R+1}, v{R}, {p(sWS)} sc1", f"global_load_dword v{Y}, v{vT+9}, {p(sGB)} sc1"], chk0, PD=opt.get("ph", 3))
                if opt.get("hd", 0): a(f"s_sleep {opt['hd']}")
                a("s_branch L_fgo")
            a(f"s_branch {lres}")
            a(f"{l0}:")
        if kodd:
            l0 = lab("r1")
            br("lg", sL, 0, l0); a("s_barrier"); a(f"{l0}:")
        ppoll([f"global_load_dword v{R+8}, v{vT+12}, {p(sGB)} offset:-2560 sc1"], lambda: a(f"v_cmp_eq_u32 vcc, -1, v{R+8}"))
        a(f"{lres}:")
        if kodd:
            a("s_barrier")
            a(f"s_sleep {opt.get('rd1', 12)}")
        else:
            def chk():
                a(f"v_bitop3_b32 v{R+16}, v{Y}, s{sT8}, v{vFF} bitop3:0x28")
                a(f"v_cmp_ne_u32 vcc, 0, v{R+16}")
            ppoll([f"global_load_dword v{Y}, v{vT+9}, {p(sGB)} sc1"], chk, PD=opt.get("pdr", 4))
            if opt.get("rd0", 1): a(f"s_sleep {opt.get('rd0', 1)}")
            a("L_fgo:")
        def rows(c):
            a(f"global_load_dword v{Y}, v{vT+9}, {p(sGB)} sc1")
            for t in range(1, 8): a(f"global_load_dword v{Y+t}, v{vT+8}, {p(sPB[c])} offset:{t*256} sc1")
        ltry, lm, lfin = lab("try"), lab("rm"), lab("fin")
        n0 = min(NC, 3)
        for c in range(n0):
            rows(c)
            if c < n0 - 1: a(f"s_sleep {opt.get('cd', 3)}")
        if kodd: a(f"s_cmp_lg_u32 s{sL}, 0")
        a(f"s_waitcnt vmcnt({8*(n0-1)})")
        a(f"{ltry}:")
        def un2(*ts):
            for t in ts:
                if opt.get("u64", 1): a(f"v_lshl_add_u64 {v(R+t,2)}, {v(Y+t,2)}, 0, s[{sT+8}:{sT+9}]")
                else: untag(range(R+t, R+t+2), range(Y+t, Y+t+2))
        un2(0); a(f"v_pk_add_f32 {v(R+10,2)}, {v(R,2)}, {v(R+8,2)}")
        un2(2, 4); a(f"v_pk_add_f32 {v(R+12,2)}, {v(R+2,2)}, {v(R+4,2)}")
        un2(6); a(f"v_pk_add_f32 {v(R+10,2)}, {v(R+10,2)}, {v(R+6,2)}")
        a(f"v_pk_add_f32 {v(R+10,2)}, {v(R+10,2)}, {v(R+12,2)}")
        a(f"v_add_f32 v{R+10}, v{R+10}, v{R+11}")
        a(f"v_cvt_pk_bf16_f32 v{R+11}, v{R+10}, v{R+10}")
        if kodd: a("s_cbranch_scc1 L_final")
        a(f"ds_write_b16 v{vT+10}, v{R+11} offset:{L_XL}")
        a(f"v_and_b32 v{R+14}, 0xffff0000, v{R+11}")
        so = stats_ops(R+14, R+16)
        a(so[0]); a(so[1])
        tagcheck(R+15, range(R, R+8))
        a(so[2]); a(so[3])
        a(f"s_cbranch_vccnz {lm}")
        stamp(st)
        def more():
            a(f"{lm}:")
            count(2)
            a(f"s_add_u32 s{sI}, s{sI}, 1")
            for c in range(1, NC):
                l = lab("rn")
                br("lg", sI, c, l)
                if c == 1 and NC > 3: rows(3)
                if kodd: a(f"s_cmp_lg_u32 s{sL}, 0")
                a(f"s_waitcnt vmcnt({8*(NC-1-c)})")
                a(f"s_branch {ltry}")
                a(f"{l}:")
            PF = opt.get("pf", 2)
            for _ in range(PF - 1): rows(NC-1); a("s_nop 8")
            l = lab("rf")
            a(f"{l}:")
            rows(NC-1)
            budget()
            a(f"s_waitcnt vmcnt({8*(PF-1)})")
            a(f"v_xor_b32 v{R+15}, s{sT8}, v{Y}")
            for t in range(1, 8): a(f"v_bitop3_b32 v{R+15}, v{Y+t}, s{sT8}, v{R+15} bitop3:0xbe")
            a(f"v_and_b32 v{R+15}, 0xff, v{R+15}")
            a(f"v_cmp_ne_u32 vcc, 0, v{R+15}")
            if kodd: a(f"s_cmp_lg_u32 s{sL}, 0")
            a(f"s_cbranch_vccz {ltry}")
            a(f"s_branch {l}")
        cold.insert(0, more)
        if kodd: execs(sMQ)
        a("s_waitcnt lgkmcnt(0)")
        a("s_barrier")
        return so[4:], lm
    def red_publish_stats():
        modecmp()
        setexec((0xff << 16) | (0xff << 48))
        istore(f"global_store_dword v{vT+13}, v{R+16}, {p(sGB)}")
        if opt.get('fine'): stamp(4)
        setexec(-1)
    def dma_run(areg, src, lstep, gstep, flip):
        l = lab("dma")
        a(f"s_mov_b32 s{sT+10}, {gstep}")
        a(f"{l}:")
        a(f"global_load_lds_dwordx4 v{areg}, {src}{NT}")
        a(f"s_add_u32 m0, m0, {lstep}")
        a(f"v_xad_u32 v{areg}, v{areg}, {flip}, s{sT+10}")
        a(f"s_sub_u32 s{sI}, s{sI}, 1")
        br("lg", sI, 0, l)
    def rows8_off(dst, stride):
        a(f"v_lshrrev_b32 v{dst}, 3, v{vLANE}"); a(f"v_mul_u32_u24 v{dst}, {stride}, v{dst}")
        a(f"v_and_b32 v{dst+1}, 7, v{vLANE}"); a(f"v_lshlrev_b32 v{dst+1}, 4, v{dst+1}")
        a(f"v_and_b32 v{dst+2}, 32, v{vLANE}"); a(f"v_xor_b32 v{dst+1}, v{dst+1}, v{dst+2}")
        a(f"v_add_u32 v{dst}, v{dst}, v{dst+1}")
    def unit0(dst):
        a(f"s_mul_i32 s{dst}, s{sGX}, 7"); a(f"s_min_u32 s{dst}, s{dst}, 48")
    def pbaddr(dst, Y, kodd):
        a(f"s_lshr_b32 s{sT+10}, s{sCLS}, s{Y}"); a(f"s_and_b32 s{sT+10}, s{sT+10}, 1"); a(f"s_and_b32 s{dst}, s{Y}, 3")
        lin(dst, [(dst, 163840), (sT+10, 8192), (sL, 80*16384), (sJP, 16384)], PB + kodd*40*16384)
    def pblast(dst):
        a(f"s_lshr_b32 s{sT+10}, s{sCLS}, s{sYF}"); a(f"s_and_b32 s{sT+10}, s{sT+10}, 1")
        lin(dst, [(sBF, 16384), (sT+10, 8192)], PB)
    def groupbase():
        a(f"s_mul_i32 s{sT+1}, s{sGX}, {GS}")
        a(f"s_add_u32 s{sGB}, s{sWS}, s{sT+1}"); a(f"s_addc_u32 s{sGB+1}, s{sWS+1}, 0")
    def epoch_load():
        a(f"s_mov_b32 s{sT+1}, {EPO}")
        a(f"s_load_dword s{sEP}, {p(sWS)}, s{sT+1}")
    def consts():
        for c in range(1, NC): a(f"s_add_u32 s{sPB[c]}, s{sWS}, {c*PBC}"); a(f"s_addc_u32 s{sPB[c]+1}, s{sWS+1}, 0")
        a(f"s_mov_b32 s{sL}, 0"); a(f"s_mov_b32 s{sBUD}, 100000"); a(f"s_mov_b32 s{sMODE}, 2")
        a(f"s_lshr_b32 s{sHH}, s{sJ}, 3"); a(f"s_and_b32 s{sC}, s{sJ}, 7")
        a(f"s_cmp_lt_u32 s{sGX}, 6"); a(f"s_cselect_b32 s{sNU}, 7, 6")
        a(f"s_mov_b32 s{sPLO}, 0x05040100"); a(f"s_mov_b32 s{sPHI}, 0x07060302")
        for r, m in ((sMQ, 0x000f000f), (sMH, 0x00ff00ff)): a(f"s_mov_b32 s{r}, {m:#x}"); a(f"s_mov_b32 s{r+1}, s{r}")
        a(f"v_lshlrev_b32 v{vL4}, 2, v{vLANE}")
        a(f"v_mov_b32 v{vFF}, 0xff")
        a(f"v_and_b32 v{vT}, 1, v{vLANE}")
        a(f"v_mul_u32_u24 v{vIA}, 0xaaaa, v{vT}"); a(f"v_add_u32 v{vIA}, 0x4444, v{vIA}")
        a(f"v_mul_u32_u24 v{vIP}, 0x5555, v{vT}"); a(f"v_add_u32 v{vIP}, 0x8888, v{vIP}")
        a(f"v_lshlrev_b32 v{vXA}, 4, v{vT}"); a(f"v_lshl_add_u32 v{vXA}, v{vG}, 5, v{vXA}")
        for r in range(4): a(f"v_mov_b32 v{vONE+r}, 0x3f803f80")
        a(f"v_lshrrev_b32 v{vROWL}, 5, v{vLANE}"); a(f"v_lshlrev_b32 v{vROWL}, 4, v{vROWL}")
        a(f"v_and_b32 v{vT}, 1, v{vG}"); a(f"v_lshl_add_u32 v{vROWL}, v{vT}, 2, v{vROWL}")
        a(f"v_bfe_u32 v{vT}, v{vLANE}, 2, 1"); a(f"v_add_u32 v{vROWL}, v{vROWL}, v{vT}")
        a(f"v_and_b32 v{vT}, 8, v{vLANE}"); a(f"v_add_u32 v{vROWL}, v{vROWL}, v{vT}")
        for r in range(0, 16, 2): a(zero2(vAT+r))
        if instr: a(f"v_mov_b32 v{vSTV}, 0")
    def epoch():
        a("s_waitcnt lgkmcnt(0)")
        a(f"s_getreg_b32 s{sT+1}, hwreg(HW_REG_XCC_ID, 0, 3)")
        a(f"s_add_u32 s{sTAG}, s{sEP}, 1"); a(f"s_and_b32 s{sT8}, s{sTAG}, 0xff")
        a(f"s_and_b32 s{sEP}, s{sTAG}, 0x1fffffff"); a(f"s_lshl_b32 s{sT+1}, s{sT+1}, 29"); a(f"s_or_b32 s{sEP}, s{sEP}, s{sT+1}")

    vG, vKA, vVA, vVB_ = vT+14, vT+15, vT+16, vT+17
    a("s_load_dwordx16 s[4:19], s[0:1], 0")
    a("s_load_dwordx8 s[20:27], s[0:1], 64")
    br("ge", 2, 256, "L_end")
    if instr or lite or opt.get("x_pad"): a("s_memrealtime s[60:61]")
    if lite: a("s_mov_b64 s[64:65], 0"); a("s_mov_b32 s68, 0"); a("s_mov_b32 s70, 0")
    if instr:
        stamp(0)
        for i in range(1, 16): a(f"s_mov_b32 s{sst(i)}, 0")
    a(f"v_lshrrev_b32 v{vT}, 6, v0")
    a(f"v_and_b32 v{vLANE}, 63, v0")
    a(f"v_readfirstlane_b32 s{sWAVE}, v{vT}")
    a(f"s_and_b32 s{sGX}, s2, 7"); a(f"s_lshr_b32 s{sJ}, s2, 3")
    MAPS = [((13, 14, 15), (11, 12, 16)), ((13, 14, 15), (11, 12, 17)), ((18, 14, 15), (12, 13, 17)), ((18, 19, 15), (12, 13, 17)),
            ((18, 11, 15), (12, 13, 17)), ((13, 19, 15), (18, 12, 17))]
    UB, WB = MAPS[opt.get("map", 2)]
    CB = [x for x in range(11, 20) if x not in UB + WB]
    def ubits(u): return sum(((u >> i) & 1) << UB[i] for i in range(3))
    a(f"s_lshr_b32 s{sT+1}, s{sJ}, 3"); a(f"s_and_b32 s{sT+2}, s{sJ}, 16")
    a(f"s_lshl2_add_u32 s{sT}, s{sGX}, s{sT+1}"); a(f"s_xor_b32 s{sT}, s{sT}, s{sT+2}"); a(f"s_lshl_b32 s{sT}, s{sT}, 20")
    for src, bits in ((sJ, CB), (sWAVE, WB)):
        i = 0
        while i < 3:
            n = 1
            while i + n < 3 and bits[i+n] == bits[i] + n: n += 1
            a(f"s_bfe_u32 s{sT+1}, s{src}, {i | (n << 16):#x}"); a(f"s_lshl_b32 s{sT+1}, s{sT+1}, {bits[i]}"); a(f"s_or_b32 s{sT}, s{sT}, s{sT+1}")
            i += n
    a(f"v_lshrrev_b32 v{vG}, 4, v{vLANE}")
    a(f"v_and_b32 v{vKA}, 7, v{vLANE}"); a(f"v_lshlrev_b32 v{vKA}, 8, v{vKA}")
    a(f"v_and_b32 v{vT}, 8, v{vLANE}"); a(f"v_lshl_add_u32 v{vKA}, v{vT}, 3, v{vKA}")
    a(f"v_lshl_add_u32 v{vKA}, v{vG}, 4, v{vKA}")
    def entry2():
        a(f"s_add_u32 s{sVB}, s{sV}, s{sT}"); a(f"s_addc_u32 s{sVB+1}, s{sV+1}, 0")
        a(f"s_mul_i32 s{sROLE}, s{sJ}, 26"); a(f"s_lshr_b32 s{sROLE}, s{sROLE}, 8")
        if opt.get("x_norole"): a(f"s_mov_b32 s{sROLE}, 3")
        a(f"s_and_b32 s{sW}, s{sWAVE}, 3")
        a(f"s_mul_i32 s{sJP}, s{sROLE}, 10"); a(f"s_sub_u32 s{sJP}, s{sJ}, s{sJP}")
        a(f"v_and_b32 v{vT}, 15, v{vLANE}")
        if UB[1] == UB[0] + 1: a(f"v_lshlrev_b32 v{vVA}, {UB[0]}, v{vG}")
        else:
            a(f"v_and_b32 v{vVA}, 1, v{vG}"); a(f"v_lshlrev_b32 v{vVA}, {UB[0]}, v{vVA}")
            a(f"v_lshrrev_b32 v{vVB_}, 5, v{vLANE}"); a(f"v_lshl_add_u32 v{vVA}, v{vVB_}, {UB[1]}, v{vVA}")
        a(f"v_lshl_add_u32 v{vVA}, v{vT}, 4, v{vVA}")
        a(f"v_add_u32 v{vVB_}, {1 << UB[2]}, v{vVA}")
        for r in range(2, 14, 2): a(zero2(vT+r))
    N0, N1, WIN, TAIL = opt.get("n0", 6), opt.get("n1", 5), opt.get("wa", 6), opt.get("tail", 3)
    def kload(i):
        u, hf = i >> 1, i & 1
        a(f"global_load_dwordx4 {v(vK+8*u+4*hf,4)}, v{vKA}, {p(sKB)} offset:{hf*128}{NT}")
        gap(i, f"v_xor_b32 v{vKA}, {ubits(u) ^ ubits(u+1)}, v{vKA}" if (hf and u < 7) else None)
    def gap(i, op=None):
        if op: a(op)
        WN = opt.get("wn", 0)
        if WN and max(WN - 1, N0) <= i < 31 - opt.get("tailn", 0):
            l = lab("g"); a(f"s_cbranch_vccz {l}"); a(f"s_waitcnt vmcnt({WN-1})"); a(f"{l}:"); op = True
        if WIN and WIN - 1 <= i < 31 - TAIL: a(f"s_waitcnt vmcnt({WIN-1})")
        elif not op and i < 31: a("s_nop 0")
    a("s_waitcnt lgkmcnt(0)")
    a(f"s_add_u32 s{sKB}, s{sK}, s{sT}"); a(f"s_addc_u32 s{sKB+1}, s{sK+1}, 0")
    br("ge", sWAVE, 4, "L_late")
    if opt.get("x_first"): a("s_memrealtime s[70:71]")
    for i in range(N0): kload(i)
    if opt.get("x_first"):
        a(f"s_waitcnt vmcnt({N0-1})"); a("s_memrealtime s[68:69]"); a(f"v_lshlrev_b32 v{vL4}, 2, v{vLANE}"); a("s_branch L_exit")
    entry2()
    a(f"s_mov_b32 s{sI}, 16")
    br("eq", sROLE, ROLE_W, "L_lw")
    br("eq", sROLE, ROLE_F, "L_lf")
    br("lg", sROLE, ROLE_Q, "L_kv")
    a(f"s_and_b32 s{sT+1}, s{sW}, 2"); a(f"s_lshl_b32 s{sT+1}, s{sT+1}, 11")
    lin(sT, [(sJP, 64*8192), (sGX, 1024), (sW, 256)])
    a(f"s_xor_b32 s{sT}, s{sT}, s{sT+1}")
    a(f"v_lshlrev_b32 v{vT}, 4, v{vT}")
    a(f"v_and_b32 v{vT+1}, 16, v{vLANE}"); a(f"v_lshlrev_b32 v{vT+1}, 1, v{vT+1}"); a(f"v_xor_b32 v{vT}, v{vT}, v{vT+1}")
    a(f"v_lshl_add_u32 v{vT}, v{vG}, 13, v{vT}"); a(f"v_add_u32 v{vT}, s{sT}, v{vT}")
    lin(sT+4, [(sW, 16384)], L_WA)
    for i in range(16):
        a(f"s_add_u32 m0, s{sT+4}, {i*1024}")
        a(f"v_xor_b32 v{vT+2}, {i*32768 + 64*(i & 3)}, v{vT}")
        a(f"global_load_lds_dwordx4 v{vT+2}, {p(sWQ)}{NT}")
    a("s_branch L_kv")
    a("L_lw:")
    WE, WM = opt.get("we", 16), opt.get("wlate", 1)
    def worun(t0, first):
        rows8_off(t0, 1280)
        a(f"s_and_b32 s{sT+1}, s{sW}, 2"); a(f"s_lshl_b32 s{sT+1}, s{sT+1}, 3")
        a(f"s_lshl2_add_u32 s{sT}, s{sGX}, s{sW}"); a(f"s_xor_b32 s{sT}, s{sT}, s{sT+1}")
        lin(sT, [(sT, 128*1280), (sJP, 128)] + ([(first, 10240)] if first else []))
        a(f"v_add_u32 v{t0}, s{sT}, v{t0}")
        lin(sT, [(sW, 16384)] + ([(first, 1024)] if first else []), L_WA); a(f"s_mov_b32 m0, s{sT}")
        if first: a("s_barrier")
        if first and opt.get("wd"): a(f"s_sleep {opt['wd']}")
        dma_run(t0, p(sWO), 1024, 10240, 64)
    if WE:
        if WE != 16: a(f"s_mov_b32 s{sI}, {WE}")
        worun(vT, None)
    a("s_branch L_kv")
    a("L_lf:")
    FE = opt.get("fe", 0)
    def w13run(first):
        a(f"s_and_b32 s{sT+1}, s{sW}, 1")
        a(f"s_cmp_lt_u32 s{sW}, 2")
        a(f"s_cselect_b64 s[{sT+2}:{sT+3}], {p(sW1)}, {p(sW3)}")
        lin(sT, [(sW, 16*896)] + ([(first, 896)] if first else []), L_WA); a(f"s_mov_b32 m0, s{sT}")
        a(f"v_cmp_lt_u32 vcc, 27, v{vLANE}")
        a(f"v_mov_b32 v{vT+1}, {3456 - 448}")
        a(f"v_cndmask_b32 v{vT}, 0, v{vT+1}, vcc")
        a(f"v_lshl_add_u32 v{vT}, v{vLANE}, 4, v{vT}")
        unit0(sT+5)
        lin(sT, [(sJP, 64*3456), (sT+5, 64), (sT+1, 32*3456)] + ([(first, 2*3456)] if first else []))
        a(f"v_add_u32 v{vT}, s{sT}, v{vT}")
        if first: a("s_barrier")
        if first and opt.get("fw"): a(f"s_sleep {opt['fw']}")
        a(f"s_cmp_lt_u32 s{sGX}, 6")
        a("s_cselect_b32 exec_lo, -1, 0xf0ffffff"); a("s_mov_b32 exec_hi, 0xfffff"); a("s_cselect_b32 exec_hi, 0xffffff, exec_hi")
        dma_run(vT, f"s[{sT+2}:{sT+3}]", 896, 2*3456, 0)
        setexec(-1)
    if FE:
        if FE != 16: a(f"s_mov_b32 s{sI}, {FE}")
        w13run(None)
    a("L_kv:")
    if opt.get("wn", 0): a(f"s_bitcmp1_b32 {opt.get('wm', 8)}, s{sROLE}"); a("s_cselect_b64 vcc, -1, 0")
    for i in range(N0, 16):
        kload(i)
        if i == N0 + N1 - 1:
            br("ge", sWAVE, 4, "L_nob0"); br("lg", sROLE, ROLE_Q, "L_nob0")
            a(f"s_waitcnt vmcnt({N1})"); a("s_barrier"); a("L_nob0:")
    for i, t in enumerate(list(range(8, 16)) + list(range(8))):
        d = vV + 8*(t-8) if t >= 8 else vW + 4*t
        a(f"global_load_dwordx4 {v(d,4)}, v{vVB_ if t >= 8 else vVA}, {p(sVB)} offset:{(t&7)*256}{NT}")
        gap(16 + i)
    stamp(4)
    a(f"s_mov_b32 s{sMS}, 0x03ff03ff"); a(f"s_mov_b32 s{sMS+1}, s{sMS}")
    a(f"s_cmp_lt_u32 s{sJP}, 5"); a(f"s_cselect_b32 s{sYF}, 0, 4"); a(f"s_cselect_b32 s{sBF}, 5, 0")
    lin(sBF, [(sBF, 1), (sJP, 1)], 115)
    br("ge", sWAVE, 4, "L_att")
    a("s_barrier")
    a("s_setprio 2")
    epoch_load(); groupbase(); consts(); epoch()
    a("L_perm:")
    for grp in (1, 0):
        for tp in range(4):
            a(f"s_waitcnt vmcnt({(14 if grp else 6) - 2*tp})")
            for e in range(8):
                if grp: s1, s0 = vV + 8*(2*tp) + (e >> 1), vV + 8*(2*tp+1) + (e >> 1)
                else:   s1, s0 = vW + 4*(2*tp) + (e >> 1), vW + 4*(2*tp+1) + (e >> 1)
                a(f"v_perm_b32 v{vV + 8*e + 4*grp + tp}, v{s0}, v{s1}, s{sPHI if e & 1 else sPLO}")
    br("ge", sWAVE, 4, "L_pv")
    q0 = vT + 4
    def qpos():
        a(f"v_bfe_u32 v{q0+2}, v{vLANE}, 4, 1"); a(f"v_lshlrev_b32 v{q0+2}, 6, v{q0+2}")
        a(f"v_and_b32 v{q0+3}, 44, v{vLANE}"); a(f"v_add_u32 v{q0+2}, v{q0+2}, v{q0+3}")
        a(f"v_and_b32 v{q0+3}, 2, v{vLANE}"); a(f"v_lshl_add_u32 v{q0+2}, v{q0+3}, 3, v{q0+2}")
        a(f"v_and_b32 v{q0+3}, 1, v{vLANE}"); a(f"v_lshl_add_u32 v{q0+2}, v{q0+3}, 1, v{q0+2}")
        a(f"s_lshl_b32 s{sT}, s{sWAVE}, 7"); a(f"v_add_u32 v{q0+2}, s{sT}, v{q0+2}")
    B0 = vS
    W2E = opt.get("w2e", 0)
    def w2run(first, t0):
        lin(sT, [(first, 1024)], L_W2); a(f"s_mov_b32 m0, s{sT}")
        rows8_off(t0, 1280)
        a(f"s_and_b32 s{sT}, s{first}, 1"); a(f"s_lshl_b32 s{sT}, s{sT}, 6"); a(f"v_xor_b32 v{t0}, s{sT}, v{t0}")
        unit0(sT+1)
        lin(sT, [(sT+1, 32*1280), (first, 8*1280), (sJP, 128)])
        a(f"v_add_u32 v{t0}, s{sT}, v{t0}")
    if W2E:
        br("lg", sROLE, ROLE_Q, "L_nw2e")
        a(f"s_mov_b32 s{sI}, {W2E}"); a(f"s_mul_i32 s{sT+2}, s{sWAVE}, {W2E}")
        w2run(sT+2, q0)
        dma_run(q0, p(sW2), 1024, 10240, 64)
        a("L_nw2e:")
    br("eq", sROLE, 3, "L_n0")
    def reduce0():
        a("L_n0:")
        a(f"s_lshl2_add_u32 s{sI}, s{sJP}, s{sW}")
        lin(sT, [(sI, 5120)], GQ0 + 2560); a(f"v_add_u32 v{q0}, s{sT}, v{vL4}")
        lin(sT, [(sI, 768)], RS); a(f"v_add_u32 v{q0+2}, s{sT}, v{vL4}")
        lin(sT, [(sGX, 512)], ARR)
        a(f"v_and_b32 v{q0+4}, 31, v{vLANE}"); a(f"v_lshl_add_u32 v{q0+4}, v{q0+4}, 4, s{sT}")
        def total(b):
            for t in range(2, 10, 2): a(f"v_pk_add_f32 {v(b,2)}, {v(b,2)}, {v(b+t,2)}")
            a(f"v_add_f32 v{b}, v{b}, v{b+1}")
            tagword(b)
        if opt.get("nd0", 0): a(f"s_sleep {opt['nd0']}")
        a(f"global_load_dword v{B0+32}, v{q0+2}, {p(sGB)} sc1")
        a("L_n0l:")
        for t in range(10): a(f"global_load_dword v{B0+t}, v{q0}, {p(sGB)} offset:{t*256-2560} sc1")
        a(f"global_load_dword v{B0+30}, v{q0+4}, {p(sWS)} sc1")
        budget()
        a("s_waitcnt vmcnt(0)")
        untag(range(B0, B0+10)); tagcheck(q0+3, range(B0, B0+10))
        a("s_cbranch_vccnz L_n0l")
        a(f"v_xor_b32 v{B0+30}, s{sEP}, v{B0+30}"); a(f"v_lshlrev_b32 v{B0+31}, 3, v{B0+30}")
        a(f"v_cmp_ne_u32 vcc, 0, v{B0+31}")
        a("s_cbranch_vccnz L_n0l")
        total(B0)
        a(f"v_cmp_ne_u32 vcc, 0, v{B0+30}")
        a(f"s_cmp_{'ge' if opt.get('force_slow') else 'lg'}_u32 vcc_lo, 0")
        a(f"s_cselect_b32 s{sMODE}, 2, 1")
        istore(f"global_store_dword v{q0+2}, v{B0}, {p(sGB)}")
        stamp(1)
        for i in (1, 2): a(f"global_load_dword v{B0+32}, v{q0+2}, {p(sGB)} offset:{256*i} sc1")
        a("L_n1l:")
        for t in range(10): a(f"global_load_dword v{B0+10+t}, v{q0}, {p(sGB)} offset:{t*256} sc1")
        budget()
        a("s_waitcnt vmcnt(0)")
        untag(range(B0+10, B0+20)); tagcheck(q0+3, range(B0+10, B0+20))
        a("s_cbranch_vccnz L_n1l")
        total(B0+10)
        istore(f"global_store_dword v{q0+2}, v{B0+10}, {p(sGB)} offset:256", cmp=True)
        a("s_branch L_n0r")
        a("L_roleN:")
        br("lg", sL, 0, "L_exit")
        a("s_barrier")
        br("lt", sWAVE, 4, "L_next")
        a(f"s_lshl2_add_u32 s{sI}, s{sJP}, s{sW}")
        a(f"s_cmp_ge_u32 s{sI}, s{sNU}"); a("s_cbranch_scc1 L_next")
        lin(sT, [(sI, 2560)], CF); a(f"v_add_u32 v{q0+1}, s{sT}, v{vL4}")
        lin(sT, [(sI, 768)], RS + 512); a(f"v_add_u32 v{q0+2}, s{sT}, v{vL4}")
        a("L_n2l:")
        for t in range(10): a(f"global_load_dword v{B0+t}, v{q0+1}, {p(sGB)} offset:{t*256} sc1")
        budget()
        a("s_waitcnt vmcnt(0)")
        untag(range(B0, B0+10)); tagcheck(q0+3, range(B0, B0+10))
        a("s_cbranch_vccnz L_n2l")
        total(B0)
        istore(f"global_store_dword v{q0+2}, v{B0}, {p(sGB)}", cmp=True)
        a("s_branch L_next")
    cold.append(reduce0)
    if opt.get("fd", 60):
        a(f"s_bitcmp0_b32 {2 if WE > 8 else 3}, s{sROLE}"); a("s_cbranch_scc1 L_n0r"); a(f"s_sleep {opt.get('fd', 60)}")
    a("L_n0r:")
    br("lg", sWAVE, 2, "L_noarr")
    lin(sT, [(sGX, 512)], ARR)
    a(f"v_and_b32 v{vT+4}, 31, v{vLANE}"); a(f"v_lshl_add_u32 v{vT+4}, v{vT+4}, 4, s{sT}")
    a(f"v_lshlrev_b32 v{vT+5}, 4, v{vLANE}"); a(f"v_add_u32 v{vT+5}, {VOT}, v{vT+5}")
    br("lg", sROLE, 3, "L_bar")
    a(f"v_mov_b32 v{vT+5}, v{vT+4}")
    a("L_bar:")
    a(f"global_load_dword v{vT+8}, v{vT+4}, {p(sWS)} sc1")
    a(f"global_load_dword v{vT+10}, v{vT+5}, {p(sWS)} sc1")
    budget()
    a("s_waitcnt vmcnt(0)")
    a(f"v_xor_b32 v{vT+8}, s{sEP}, v{vT+8}")
    a(f"v_bitop3_b32 v{vT+12}, v{vT+10}, s{sEP}, v{vT+8} bitop3:0xbe")
    a(f"v_lshlrev_b32 v{vT+12}, 3, v{vT+12}")
    a(f"v_cmp_ne_u32 vcc, 0, v{vT+12}")
    a("s_cbranch_vccz L_bard")
    a(f"s_sleep 40")
    a("s_branch L_bar")
    a("L_bard:")
    a(f"v_cmp_ne_u32 vcc, 0, v{vT+8}")
    a(f"v_mov_b32 v{vT+9}, 1"); a(f"v_mov_b32 v{vT+3}, 0")
    a(f"s_cmp_{'ge' if opt.get('force_slow') else 'lg'}_u32 vcc_lo, 0")
    a("s_cbranch_scc1 L_spread")
    def spread():
        a("L_spread:")
        a("buffer_wbl2 sc1")
        a("s_waitcnt vmcnt(0)")
        a("buffer_inv sc1")
        a("s_waitcnt vmcnt(0)")
        lin(sT, [(sGX, 512), (sJ, 16)], ARR2)
        a(f"v_mov_b32 v{vT}, s{sT}"); a(f"v_mov_b32 v{vT+1}, s{sEP}")
        setexec(1)
        a(f"global_store_dword v{vT}, v{vT+1}, {p(sWS)} sc1")
        setexec(-1)
        a(f"v_add_u32 v{vT+4}, {ARR2-ARR}, v{vT+4}")
        a("L_bar2:")
        a("s_sleep 10")
        a(f"global_load_dword v{vT+8}, v{vT+4}, {p(sWS)} sc1")
        budget()
        a("s_waitcnt vmcnt(0)")
        a(f"v_xor_b32 v{vT+8}, s{sEP}, v{vT+8}")
        a(f"v_lshlrev_b32 v{vT+8}, 3, v{vT+8}")
        a(f"v_cmp_ne_u32 vcc, 0, v{vT+8}")
        a("s_cbranch_vccnz L_bar2")
        setexec(-1)
        a(f"v_mov_b32 v{vT+9}, 2")
        a("s_branch L_mode")
    cold.append(spread)
    a("L_mode:")
    a(f"v_lshlrev_b32 v{vT+11}, 1, v{vT+10}")
    a(f"v_cmp_gt_i32 vcc, 0, v{vT+10}")
    a(f"v_cmp_gt_i32 s[{sT}:{sT+1}], 0, v{vT+11}")
    a(f"s_and_b32 s{sT+2}, vcc_lo, 15"); a(f"s_mul_i32 s{sT+2}, s{sT+2}, 17")
    a(f"s_bcnt1_i32_b64 s{sT}, s[{sT}:{sT+1}]")
    a(f"s_cmp_{'lt' if opt.get('x_far') else 'ge'}_u32 s{sT}, 32"); a(f"s_cselect_b32 s{sT}, 15, 0xf0")
    a(f"s_xor_b32 s{sT}, s{sT}, s{sT+2}")
    a(f"v_lshl_or_b32 v{vT+9}, s{sT}, 8, v{vT+9}")
    a(f"ds_write_b32 v{vT+3}, v{vT+9} offset:{L_MODE}")
    a(f"s_mul_i32 s{sT}, s{sJ}, {EARLY//32}")
    a(f"v_lshl_add_u32 v{vT+15}, v{vLANE}, 7, s{sT}")
    setexec((1 << (EARLY//32 >> 7)) - 1)
    a(f"global_load_dword v{vT+15}, v{vT+15}, {p(sGB)} sc1")
    setexec(-1)
    a("L_noarr:")
    br("ge", sWAVE, 2, "L_att")
    stamp(2)
    qpos()
    lin(sT, [(sHH, 1536), (sWAVE, 768)], RS)
    a(f"v_add_u32 v{q0}, s{sT}, v{vL4}")
    a("L_g0l:")
    a(f"global_load_dword v{B0}, v{q0}, {p(sGB)} sc1")
    budget()
    a("s_waitcnt vmcnt(0)")
    untag((B0,))
    a(f"v_and_b32 v{q0+3}, 0xff, v{B0}")
    a(f"v_cmp_ne_u32 vcc, 0, v{q0+3}")
    a("s_cbranch_vccz L_g0d")
    a("s_sleep 4")
    a("s_branch L_g0l")
    a("L_g0d:")
    stamp(3)
    a(f"v_mul_f32 v{B0}, {f2u(CSC):#x}, v{B0}")
    a(f"v_cvt_pk_bf16_f32 v{B0}, v{B0}, v{B0}")
    a(f"ds_write_b16 v{q0+2}, v{B0} offset:{L_QL}")
    a(f"s_lshl_b32 s{sT}, s{sWAVE}, 2"); a(f"v_mov_b32 v{q0}, s{sT}")
    a(f"ds_write_b32 v{q0}, v{q0} offset:{L_MODE+4}")
    def late_touch():
        l = lab("nt")
        br("lg", sWAVE, 3, l)
        n = 54 if opt.get("ltf", 1) else 27
        lin(sT, [(sJ, n*128)], EARLY - 10*n*128)
        a(f"v_lshl_add_u32 v{vT+15}, v{vLANE}, 7, s{sT}")
        setexec((1 << n) - 1)
        a(f"global_load_dword v{vT+15}, v{vT+15}, {p(sGB)} sc1")
        setexec(-1)
        a(f"{l}:")

    WS_, WA_, SL_ = vT+12, vT+13, vT+16
    a("L_att:")
    for r in range(0, 8, 2): a(zero2(vDA+r))
    for e in range(8): a(zero2(vS+4*e))
    a(f"v_lshrrev_b32 v{vT+2}, 4, v{vLANE}"); a(f"v_lshlrev_b32 v{vT}, 6, v{vT+2}")
    a(f"v_and_b32 v{vT+1}, 3, v{vLANE}"); a(f"v_lshl_add_u32 v{vT}, v{vT+1}, 4, v{vT}")
    a(f"s_lshr_b32 s{sT+1}, s{sWAVE}, 1")
    a(f"s_and_b32 s{sT+2}, s{sJ}, 3")
    lin(sT, [(sL, 2048), (sT+1, 512), (sT+2, 128)], ST)
    a(f"v_lshl_add_u32 v{WS_}, v{vT+2}, 1, v{vLANE}"); a(f"v_and_b32 v{WS_}, 7, v{WS_}")
    a(f"v_and_or_b32 v{WS_}, v{vLANE}, 8, v{WS_}"); a(f"v_lshl_add_u32 v{WS_}, v{WS_}, 2, s{sT}")
    lin(sT, [(sL, 8192), (sWAVE, 1024)], OA)
    a(f"v_bfe_u32 v{WA_}, v{vLANE}, 2, 2"); a(f"v_lshl_add_u32 v{WA_}, v{WA_}, 8, v{vT}"); a(f"v_add_u32 v{WA_}, s{sT}, v{WA_}")
    a(f"s_lshl_b32 s{sT}, s{sWAVE}, 9"); a(f"v_lshl_add_u32 v{vT+2}, v{vLANE}, 5, s{sT}")
    lin(sT, [(sWAVE, 4), (sL, 96)], L_STAT); a(f"v_mov_b32 v{vT+3}, s{sT}")
    a(f"v_mov_b32 v{vT+1}, 0")
    a(f"s_lshl_b32 s{sT}, s{sL}, 3"); a(f"s_sub_i32 s{sI}, s{sWAVE}, s{sT}")
    a(f"s_and_b32 s{sT}, s{sWAVE}, 6")
    br("lg", sT, 2, "L_nca")
    lin(sT, [(sL, 96)], L_STAT)
    a(f"v_and_b32 v{vT+9}, 28, v{vL4}"); a(f"v_add_u32 v{vT+8}, s{sT}, v{vT+9}")
    a(f"s_lshr_b32 s{sT+1}, s{sC}, 1"); a(f"s_and_b32 s{sT+2}, s{sC}, 1")
    lin(sT, [(sL, 8192), (sHH, 2048), (sT+1, 256), (sT+2, 32)], OA)
    a(f"v_add_u32 v{vT+9}, s{sT}, v{vT+9}")
    a(f"v_bfe_u32 v{vT+10}, v{vLANE}, 3, 2"); a(f"v_lshl_add_u32 v{vT+9}, v{vT+10}, 6, v{vT+9}")
    a(f"v_lshrrev_b32 v{vT+10}, 5, v{vLANE}"); a(f"v_lshl_add_u32 v{vT+9}, v{vT+10}, 10, v{vT+9}")
    lin(sT, [(sL, 2048), (sHH, 512), (sC, 4)], ST)
    a(f"v_lshl_add_u32 v{vT+10}, v{vT+10}, 5, s{sT}")
    a(f"v_and_b32 v{vT+11}, 3, v{vLANE}"); a(f"v_lshl_add_u32 v{vT+10}, v{vT+11}, 7, v{vT+10}")
    a(f"v_lshlrev_b32 v{vT+11}, 3, v{vLANE}")
    a("L_nca:")
    a("s_setprio 2"); br("ge", sWAVE, 4, "L_npr"); a("s_setprio 3"); a("L_npr:")
    br("lt", sI, 4, "L_e0")
    def early0():
        a("L_e0:")
        a(f"ds_read_b96 {v(vT+4,3)}, v{vT+1} offset:{L_MODE}")
        budget()
        a("s_waitcnt lgkmcnt(0)")
        a(f"v_max3_u32 v{vT+4}, v{vT+4}, v{vT+5}, v{vT+6}")
        a(f"v_cmp_eq_u32 vcc, -1, v{vT+4}")
        execs(sMQ)
        a("s_cbranch_vccz L_attc")
        setexec(-1)
        a("s_sleep 2")
        a("s_branch L_e0")
        a("L_e0b:")
        if WE < 16 and WM == 1:
            br("lg", sROLE, ROLE_W, "L_e0a")
            a(f"s_mov_b32 s{sI}, {16-WE}"); a(f"s_mov_b32 s{sT+6}, {WE}")
            worun(q0, sT+6)
            a("s_branch L_e0c")
            a("L_e0a:")
        a("s_barrier")
        if WE == 16:
            br("lg", sROLE, ROLE_W, "L_e0c")
            wfrag()
        a("L_e0c:")
        br("ge", sWAVE, 2, "L_e0r")
        lin(sT, [(sHH, 1536), (sWAVE, 768)], RS + 256)
        a(f"v_add_u32 v{q0+2}, s{sT}, v{vL4}")
        def cschk():
            untag((vCSQ,)); a(f"v_and_b32 v{q0+3}, 0xff, v{vCSQ}"); a(f"v_cmp_ne_u32 vcc, 0, v{q0+3}")
        ppoll([f"global_load_dword v{vCSQ}, v{q0+2}, {p(sGB)} sc1"], cschk)
        a("s_branch L_e0r")
    cold.insert(0, early0)
    align("a")
    br("eq", sL, 0, "L_attb")
    br("ge", sWAVE, 2, "L_nqs")
    qpos()
    lin(sT, [(sHH, 5120), (sWAVE, 2560)], GQ1)
    a(f"v_add_u32 v{q0}, s{sT}, v{vL4}")
    stat_addr(q0+1, [], SX + 1024)
    walk("q")
    a("L_nqs:")
    br("lg", sROLE, ROLE_Q, "L_qgo")
    br("eq", sWAVE, 7, "L_attb")
    lin(sT, [(sWAVE, 2560), (sJP, 256)], GQ1)
    a(f"v_add_u32 v{vT+14}, s{sT}, v{vL4}")
    a(zero2(DP))
    execs(sMQ)
    a("s_waitcnt lgkmcnt(0)")
    a("s_barrier")
    read4(vXA, L_XL)
    proj_mma()
    modecmp()
    pad("q")
    a(f"v_add_f32 v{DP}, v{DP}, v{DP+1}")
    istore(f"global_store_dword v{vT+14}, v{DP}, {p(sGB)}")
    stamp(14)
    a("L_qgo:")
    br("ge", sWAVE, 2, "L_attb")
    stamp(2)
    def qtail():
        a(f"v_cvt_pk_bf16_f32 v{GA}, v{GA}, v{GA}")
        a(f"ds_write_b16 v{q0+2}, v{GA} offset:{L_QL}")
    consume(q0, q0+1, vCSQ, CSC, 3, qtail, "q")
    a("L_attb:")
    execs(sMQ)
    a("s_waitcnt vmcnt(16) lgkmcnt(0)")
    a("s_barrier")
    a("L_attc:")
    read4(vT, L_QL)
    a(f"ds_read_b32 v{vT+4}, v{vT+1} offset:{L_MODE}")
    for T in range(4):
        lgkm(4 - T)
        if T == 0: stamp(5)
        a(f"v_smfmac_f32_16x16x64_bf16 {v(vDA,4)}, {v(vAT+4*T,4)}, {v(vK+16*T,8)}, v{vIA}")
        a(f"v_smfmac_f32_16x16x64_bf16 {v(vDB,4)}, {v(vAT+4*T,4)}, {v(vK+16*T+8,8)}, v{vIA}")
    a("s_waitcnt lgkmcnt(0)")
    a(f"v_readfirstlane_b32 s{sCLS}, v{vT+4}")
    a(f"s_and_b32 s{sMODE}, s{sCLS}, 3"); a(f"s_lshr_b32 s{sCLS}, s{sCLS}, 8")
    own, oth, mx = vT+4, vT+5, vT+6
    a(f"v_add_f32 v{oth}, v{vDA+2}, v{vDA+3}")
    a(f"v_add_f32 v{own}, v{vDB+2}, v{vDB+3}")
    execs(sMH)
    a(f"v_add_f32 v{oth}, v{vDB}, v{vDB+1}")
    a(f"v_add_f32 v{own}, v{vDA}, v{vDA+1}")
    setexec(-1)
    a(f"v_add_f32_dpp v{own}, v{oth}, v{own} row_ror:8 {DPPF}")
    a(f"v_max_f32_dpp v{mx}, v{own}, v{own} row_ror:8 {DPPF}")
    for s in (4, 2, 1): a(f"v_max_f32_dpp v{mx}, v{mx}, v{mx} row_ror:{s} {DPPF}")
    a(f"v_max_f32_dpp v{mx}, v{mx}, v{mx} row_bcast:15 row_mask:0xa bank_mask:0xf")
    a(f"v_max_f32_dpp v{mx}, v{mx}, v{mx} row_bcast:31 row_mask:0xc bank_mask:0xf")
    a(f"v_readlane_b32 s{sM}, v{mx}, 63")
    a(f"v_subrev_f32 v{own}, s{sM}, v{own}")
    a(f"v_exp_f32 v{own}, v{own}")
    a(f"v_mov_b32 v{mx}, s{sM}")
    a(f"ds_write_b32 v{vT+3}, v{mx}")
    a(f"v_mov_b32_dpp v{oth}, v{own} row_shl:2 {DPPF} bound_ctrl:0")
    a(f"v_cvt_pk_bf16_f32 v{vQ}, v{own}, v{oth}")
    a(f"s_cmp_ge_i32 s{sI}, 4")
    for m in range(1, 4):
        a(f"v_mov_b32_dpp v{vQ+m}, v{vQ} row_shl:{4*m} {DPPF} bound_ctrl:0")
    stamp(6)
    a("s_cbranch_scc1 L_perm")
    a("L_pv:")
    stamp(7)
    a(f"v_mfma_f32_16x16x32_bf16 {v(vS+32,4)}, {v(vQ,4)}, {v(vONE,4)}, 0")
    for e in range(8):
        a(f"v_smfmac_f32_16x16x64_bf16 {v(vS+4*e,4)}, {v(vQ,4)}, {v(vV+8*e,8)}, v{vIP}")
        if e in (0, 1): a("s_nop 1")
        if e == 2: a(f"v_add_f32 v{mx+1}, v{vS+32}, v{vS+33}")
        if e == 3: a(f"v_readfirstlane_b32 s{sT}, v{mx+1}"); a(f"v_add_f32 v{vDA}, v{vS}, v{vS+1}")
        if e == 4:
            a(f"v_mov_b32 v{mx+1}, s{sT}")
            a(f"ds_write_b32 v{vT+3}, v{mx+1} offset:32")
        if e == 5: a(f"v_add_f32 v{vDA+1}, v{vS+4}, v{vS+5}"); a(f"v_add_f32 v{vDA+2}, v{vS+8}, v{vS+9}")
        if e == 6: a(f"v_add_f32 v{vDA+3}, v{vS+12}, v{vS+13}")
    setexec(0xffff)
    a(f"ds_write_b128 v{vT+2}, {v(vDA,4)} offset:{L_OP}")
    for e in range(4, 8): a(f"v_add_f32 v{vDA+e}, v{vS+4*e}, v{vS+4*e+1}")
    a(f"ds_write_b128 v{vT+2}, {v(vDB,4)} offset:{L_OP+16}")
    a(f"ds_write_b32 v{vT+3}, v{vONE} offset:64")
    setexec(-1)
    a("s_setprio 0")
    stamp(8)
    br("lt", sI, 4, "L_e0b")
    a("L_e0r:")
    if opt.get("x_stop"): a("s_branch L_exit")
    br("eq", sWAVE, 2, "L_cstat0")
    br("lg", sWAVE, 3, "L_nocomb")
    a("s_setprio 1")
    C = vS
    lsteps = ["quad_perm:[1,0,3,2]", "quad_perm:[2,3,0,1]", "row_half_mirror"]
    wst = [f"global_load_dword v{SL_}, v{WS_}, {p(sGB)} sc1"]
    def cstat():
        a("L_cstat0:")
        a("s_setprio 1")
        a("L_cstat:")
        a(f"ds_read2_b32 {v(C+16,2)}, v{vT+8} offset1:8")
        budget()
        a("s_waitcnt lgkmcnt(0)")
        a(f"v_cmp_eq_u32 vcc, -1, v{C+17}")
        a(f"v_max_f32_dpp v{C+18}, v{C+16}, v{C+16} {lsteps[0]} {DPPF}")
        a("s_cbranch_vccnz L_cstat")
        for s_ in lsteps[1:]: a(f"v_max_f32_dpp v{C+18}, v{C+18}, v{C+18} {s_} {DPPF}")
        a(f"v_sub_f32 v{C+16}, v{C+16}, v{C+18}")
        a(f"v_exp_f32 v{C+16}, v{C+16}")
        modecmp()
        a(f"v_mul_f32 v{C+17}, v{C+16}, v{C+17}")
        for s_ in lsteps[:2]: a(f"v_add_f32_dpp v{C+17}, v{C+17}, v{C+17} {s_} {DPPF}")
        a(f"v_add_f32_dpp v{C+18}, v{C+17}, v{C+17} {lsteps[2]} row_mask:0xc bank_mask:0xf")
        setexec(0x0000000f0000000f)
        istore(f"global_store_dword v{vT+10}, v{C+18}, {p(sGB)}")
        if opt.get('fine'): stamp(6)
        setexec(-1)
        a("s_branch L_nocomb")
    cold.insert(0, cstat)
    a("L_cm:")
    a(f"ds_read_b32 v{C+16}, v{vT+8}")
    a(f"ds_read_b32 v{C+19}, v{vT+8} offset:64")
    for w in range(4): a(f"ds_read_b64 {v(C+2*w,2)}, v{vT+11} offset:{L_OP + 512*w}")
    budget()
    a("s_waitcnt lgkmcnt(0)")
    a(f"v_cmp_eq_u32 s[{sT}:{sT+1}], -1, v{C+19}")
    a(f"v_cmp_eq_u32 vcc, -1, v{C+16}")
    a(f"s_and_b32 s{sT}, s{sT}, 15")
    a(f"s_or_b32 s{sT}, s{sT}, vcc_lo")
    a("s_cbranch_scc1 L_cm")
    for i, s in enumerate(lsteps): a(f"v_max_f32_dpp v{C+18}, v{C+18 if i else C+16}, v{C+18 if i else C+16} {s} {DPPF}")
    a(f"v_sub_f32 v{C+16}, v{C+16}, v{C+18}")
    a(f"v_exp_f32 v{C+16}, v{C+16}")
    for w in range(8): a(f"v_mov_b32_dpp v{C+20+w}, v{C+16} row_newbcast:{w} {DPPF}")
    def scaled(dst, w, acc):
        sel = f"op_sel:[0,{w&1},0] op_sel_hi:[1,{w&1},1]"
        a(f"v_pk_fma_f32 {v(dst,2)}, {v(C+2*w,2)}, {v(C+20+(w&6),2)}, {acc} {sel}")
    scaled(C, 0, "0")
    for w in range(1, 4): scaled(C, w, v(C,2))
    a("L_cs:")
    a(f"ds_read_b32 v{C+19}, v{vT+8} offset:64")
    for w in range(4, 8): a(f"ds_read_b64 {v(C+2*w,2)}, v{vT+11} offset:{L_OP + 512*w}")
    budget()
    modecmp()
    lgkm(4)
    a(f"v_cmp_eq_u32 vcc, -1, v{C+19}")
    a("s_cbranch_vccnz L_cs")
    for w in range(4, 8):
        lgkm(7 - w)
        scaled(C, w, v(C,2))
    a(wst[0])
    a(f"v_cvt_pk_bf16_f32 v{C}, v{C}, v{C+1}")
    a(f"v_min_u32 v{C+4}, -2, v{C}")
    istore(f"global_store_dword v{vT+9}, v{C+4}, {p(sGB)}")
    stamp(9)
    if lite:
        a("s_mov_b32 s70, s68"); a("s_memrealtime s[68:69]")
    if WE < 16: br("eq", sL, 0, "L_nocomb")
    br("eq", sROLE, ROLE_W, "L_w3")
    a("L_nocomb:")
    br("eq", sROLE, ROLE_F, "L_roleF")
    br("eq", sROLE, ROLE_Q, "L_roleQ")
    br("lg", sROLE, ROLE_W, "L_roleN")

    SM = vS + 20
    def wfrag():
        lin(sT, [(sWAVE, 8192)], L_WA)
        a(f"v_lshlrev_b32 v{vT+4}, 7, v{vROWL}")
        a(f"v_bfe_u32 v{vT+5}, v{vROWL}, 2, 2"); a(f"v_lshl_add_u32 v{vT+4}, v{vT+5}, 5, v{vT+4}")
        a(f"v_and_b32 v{vT+5}, 3, v{vLANE}"); a(f"v_lshl_add_u32 v{vT+4}, v{vT+5}, 3, v{vT+4}")
        a(f"v_add_u32 v{vT+4}, s{sT}, v{vT+4}")
        tr4(vT+4, 4096, 256)
        if HINT:
            a(f"v_sub_u32 v{vT+6}, s{sGX}, v{vLANE}"); a(f"v_and_b32 v{vT+6}, 7, v{vT+6}")
            a(f"v_bfe_u32 v{vT+14}, s{sCLS}, v{vT+6}, 1"); a(f"v_lshlrev_b32 v{vT+14}, 13, v{vT+14}")
            a(f"v_and_b32 v{vT+6}, 3, v{vT+6}"); a(f"v_mul_u32_u24 v{vT+6}, 163840, v{vT+6}"); a(f"v_add_u32 v{vT+14}, v{vT+14}, v{vT+6}")
            a(f"v_and_b32 v{vT+6}, 6, v{vLANE}"); a(f"v_lshl_add_u32 v{vT+14}, v{vT+6}, 10, v{vT+14}")
            a(f"v_and_b32 v{vT+6}, 1, v{vLANE}"); a(f"v_lshl_add_u32 v{vT+14}, v{vT+6}, 7, v{vT+14}")
            lin(sT, [(sJP, 16384), (sWAVE, 2)], PB)
            a(f"v_add_u32 v{vT+14}, s{sT}, v{vT+14}"); a(f"v_mov_b32 v{vT+17}, s{sTAG}")
    a(f"s_cmp_ge_i32 s{sI}, {4 if WE == 16 else 0}")
    a("s_cbranch_scc1 L_w0")
    def w_first():
        a("L_w0:")
        if WE < 16:
            if WM == 2:
                assert WE % 4 == 0
                a(f"s_mov_b32 s{sI}, {(16-WE)//2}"); a(f"s_lshr_b32 s{sT+6}, s{sWAVE}, 2"); lin(sT+6, [(sT+6, (16-WE)//2)], WE)
                worun(vT+4, sT+6)
            a(wst[0])
            a("s_waitcnt vmcnt(0)")
            a("s_barrier")
            stamp(12)
            a(f"v_cmp_eq_u32 vcc, -1, v{SL_}")
            a("s_cbranch_vccnz L_w0s")
            a(aload); wfrag(); a("s_branch L_whr")
            a("L_w0s:")
        wfrag(); a("s_branch L_wos")
    cold.insert(0, w_first)
    a("L_wos:")
    align("w")
    ppoll(wst, lambda: a(f"v_cmp_eq_u32 vcc, -1, v{SL_}"), PD=opt.get('pdw', 4))
    if opt.get('fine'): stamp(1)
    aload = f"global_load_dwordx4 {v(vS,4)}, v{WA_}, {p(sGB)} sc1"
    def weights():
        for i, s in enumerate(lsteps): a(f"v_max_f32_dpp v{SM+2}, v{SM+2 if i else SL_}, v{SM+2 if i else SL_} {s} {DPPF}")
        a(f"v_sub_f32 v{SM}, v{SL_}, v{SM+2}")
        a(f"v_exp_f32 v{SM}, v{SM}")
        a(f"v_mul_f32_dpp v{SM+1}, v{SL_}, v{SM} row_ror:8 {DPPF}")
        for s in lsteps: a(f"v_add_f32_dpp v{SM+1}, v{SM+1}, v{SM+1} {s} {DPPF}")
        a(f"v_rcp_f32 v{SM+1}, v{SM+1}")
        a(f"v_mul_f32 v{SM}, v{SM}, v{SM+1}")
        a(f"v_mov_b32_dpp v{SM+2}, v{SM} row_newbcast:0 {DPPF}")
        a(f"v_mov_b32_dpp v{SM+3}, v{SM} row_newbcast:1 {DPPF}")
    def wsetup():
        a(f"v_lshlrev_b32 v{vT+6}, 4, v{vLANE}")
        a(f"s_lshr_b32 s{sT+1}, s{sWAVE}, 2")
        lin(sT, [(sT+1, 1024), (sW, 4)])
        a(f"v_add_u32 v{vT+5}, s{sT}, v{vT+6}")
        a(f"s_sub_u32 s{sT+1}, s{sGX}, s{sWAVE}"); a(f"s_and_b32 s{sT+1}, s{sT+1}, 7")
    def wave3():
        a("L_w3:")
        a("s_waitcnt vmcnt(1)")
        a(f"v_cmp_eq_u32 vcc, -1, v{SL_}")
        a("s_cbranch_vccz L_wgo")
        a("s_branch L_wos")
        a("L_wh:")
        setexec(0xfe)
        a(f"global_store_dword v{vT+14}, v{vT+17}, {p(sWS)} sc1")
        setexec(-1)
        a("s_branch L_whr")
    cold.insert(0, wave3)
    a("L_wgo:")
    a(aload)
    if HINT:
        a(f"s_bitcmp1_b32 0x55, s{sI}"); a("s_cbranch_scc1 L_wh")
        a(wst[0])
    a("L_whr:")
    weights()
    wsetup()
    a("L_woc:")
    for r in range(0, 16, 2): a(zero2(D4+r))
    a(f"s_waitcnt vmcnt({HINT}) lgkmcnt(0)")
    stamp(10)
    mma4(vS)
    sentinel(SM, range(vS, vS+4))
    a("s_cbranch_vccnz L_wor")
    def w_retry():
        a("L_wor:")
        a(aload)
        if HINT: a(wst[0])
        count(3)
        budget()
        a("s_branch L_woc")
    cold.insert(0, w_retry)
    for t in range(4):
        a(f"v_pk_mul_f32 {v(D4+4*t,2)}, {v(D4+4*t,2)}, {v(SM+2,2)} op_sel_hi:[1,0]")
    for t in range(4):
        a(f"v_pk_fma_f32 {v(D4+4*t,2)}, {v(D4+4*t+2,2)}, {v(SM+2,2)}, {v(D4+4*t,2)} op_sel:[0,1,0]")
    for t in (0, 2, 1, 3): a(f"v_add_f32 v{D4+4*t}, v{D4+4*t}, v{D4+4*t+1}")
    a(f"v_permlane32_swap_b32 v{D4}, v{D4+8}")
    a(f"v_add_f32 v{D4}, v{D4}, v{D4+8}")
    a(f"v_permlane32_swap_b32 v{D4+4}, v{D4+12}")
    a(f"v_add_f32 v{D4+4}, v{D4+4}, v{D4+12}")
    a(f"v_lshl_add_u32 v{vT+4}, s{sT+1}, 8, v{vL4}")
    a(f"v_permlane16_swap_b32 v{D4}, v{D4+4}")
    a(f"v_add_f32 v{D4}, v{D4}, v{D4+4}")
    a(f"ds_write_b32 v{vT+5}, v{D4} offset:{L_PW}")
    pbaddr(sT, sWAVE, 0)
    a(f"s_cmp_eq_u32 s{sT+1}, 0")
    a("s_waitcnt lgkmcnt(0)")
    a("s_barrier")
    RW = vS + 24
    a(f"ds_read_b128 {v(RW,4)}, v{vT+6} offset:{L_PW}")
    a(f"ds_read_b128 {v(RW+4,4)}, v{vT+6} offset:{L_PW+1024}")
    a("s_cbranch_scc1 L_wown")
    a(f"v_add_u32 v{vT+7}, s{sT}, v{vT+4}")
    def wsum():
        lgkm(1)
        a(f"v_pk_add_f32 {v(RW,2)}, {v(RW,2)}, {v(RW+2,2)}")
        a("s_waitcnt lgkmcnt(0)")
        a(f"v_pk_add_f32 {v(RW+4,2)}, {v(RW+4,2)}, {v(RW+6,2)}")
        a(f"v_pk_add_f32 {v(RW,2)}, {v(RW,2)}, {v(RW+4,2)}")
        a(f"v_add_f32 v{RW}, v{RW}, v{RW+1}")
        tagword(RW)
    wsum()
    for c in range(NC):
        a(f"global_store_dword v{vT+7}, v{RW}, {p(sPB[c])} sc1")
        if c == 0: stamp(11)
    br("lg", sL, 0, "L_exit")
    if opt.get("warm", 1):
        a(f"s_sleep {opt.get('ws', 8)}")
        a(f"v_mov_b32 v{vT+5}, 0")
        for k in range(1, 4):
            if k == 2: a(f"s_sleep {opt.get('ws2', 24)}")
            if k == 3:
                a(f"s_cmp_lg_u32 s{sWAVE}, s{sYF}"); a("s_cbranch_scc1 L_next")
                pblast(sT); a(f"v_add_u32 v{vT+7}, s{sT}, v{vT+4}")
            else: a(f"v_add_u32 v{vT+7}, {40*16384}, v{vT+7}")
            for c in range(NC): a(f"global_atomic_add v{vT+7}, v{vT+5}, {p(sPB[c])}")
    a("s_branch L_next")
    a("L_wown:")
    lin(sT, [(sL, 2*2560), (sJP, 256)], PO)
    a(f"v_add_u32 v{vT+7}, s{sT}, v{vL4}")
    modecmp()
    wsum()
    istore(f"global_store_dword v{vT+7}, v{RW}, {p(sGB)}")
    stamp(11)
    a("s_branch L_next")

    a("L_roleF:")
    if FE < 16:
        assert FE % 2 == 0
        br("lg", sL, 0, "L_fnd")
        a(f"s_mov_b32 s{sI}, {(16-FE)//2}"); a(f"s_lshr_b32 s{sT+6}, s{sWAVE}, 2"); lin(sT+6, [(sT+6, (16-FE)//2)], FE)
        w13run(sT+6)
        late_touch()
        a("s_waitcnt vmcnt(0)")
        a("s_barrier")
        stamp(10)
        a("L_fnd:")
    br("eq", sWAVE, 7, "L_fred")
    a(f"s_cmp_ge_u32 s{sWAVE}, s{sNU}"); a("s_cbranch_scc1 L_fidle")
    lin(sT+4, [(sWAVE, 2560), (sJP, 256)])
    br("eq", sL, 0, "L_f0")
    def f_first():
        a("L_f0:")
        if FE == 16: late_touch()
        if FE == 16: a(f"s_sleep {opt.get('fs', 4)}")
        trf(sWAVE)
        for t in range(4): a(zero2(D4+4*t))
        a(f"s_add_u32 s{sT}, s{sT+4}, {CF}"); a(f"v_add_u32 v{vT+2}, s{sT}, v{vL4}")
        a("s_waitcnt lgkmcnt(0)")
        mma4(vONE)
        modecmp()
        for t in range(4):
            if t: a(GMASK[t-1])
            a(f"v_add_f32 v{vS+20}, v{D4+4*t}, v{D4+4*t+1}")
        setexec(-1)
        tagword(vS+20)
        istore(f"global_store_dword v{vT+2}, v{vS+20}, {p(sGB)}")
        a("s_branch L_f1")
        a("L_fidle:")
        a("s_barrier")
        a("s_branch L_next")
    cold.insert(0, f_first)
    a("L_f1:")
    align("f")
    lin(sT, [(sL, 17920), (sT+4, 1)], GF)
    a(f"v_add_u32 v{vT+2}, s{sT}, v{vL4}")
    a(zero2(DP))
    execs(sMQ)
    a("s_barrier")
    read4(vXA, L_XL)
    proj_mma()
    modecmp()
    a(f"v_add_f32 v{DP}, v{DP}, v{DP+1}")
    istore(f"global_store_dword v{vT+2}, v{DP}, {p(sGB)}")
    stamp(13)
    a("s_branch L_next")
    a("L_fred:")
    align("r")
    so, _ = red(0, 11)
    for o in so: a(o)
    red_publish_stats()
    istore(f"global_store_dword v{vT+12}, v{R+14}, {p(sGB)}")
    a("s_waitcnt vmcnt(2)")
    a("s_branch L_next")

    a("L_roleQ:")
    br("eq", sL, 0, "L_q0")
    def q_first():
        a("L_q0:")
        if not opt.get("ltf", 1): late_touch()
        lin(sT, [(sWAVE, 768)], RS + 512)
        a(f"v_add_u32 v{vT+17}, s{sT}, v{vL4}")
        a(f"s_mov_b32 s{sI}, 4"); lin(sT+2, [(sWAVE, 4)], 4*W2E)
        w2run(sT+2, vT)
        a("s_barrier")
        a(f"s_cmp_ge_u32 s{sWAVE}, s{sNU}"); a("s_cbranch_scc1 L_q0b")
        a(f"s_add_u32 s{sT}, s{sWAVE}, {W2E}"); a(f"s_cmp_ge_u32 s{sT}, s{sNU}"); a("s_cbranch_scc1 L_rq1")
        dma_run(vT, p(sW2), 1024, 10240, 64)
        a("s_branch L_rq1")
        a("L_q0b:")
        br("eq", sWAVE, 7, "L_rq1")
        a("s_barrier")
        a("s_branch L_rq1")
        a("L_w2f:")
        a(f"global_load_dword v{vCSF}, v{vT+17}, {p(sGB)} sc1")
        execs(sMS)
        a(f"global_load_dword v{G(14)}, v{vT+1}, {p(sGB)} sc1")
        setexec(-1)
        a("s_waitcnt vmcnt(0)")
        a("s_barrier")
        stamp(14)
        br("ge", sWAVE, 4, "L_w2c")
        w2frag()
        a("L_w2c:")
        untag((vCSF,)); a(f"v_and_b32 v{vT+16}, 0xff, v{vCSF}"); a(f"v_cmp_ne_u32 vcc, 0, v{vT+16}")
        a("s_cbranch_vccnz L_w2d")
        a(f"v_cmp_eq_u32 vcc, -1, v{G(14)}")
        a("s_cbranch_vccz L_hgo")
        a("s_branch L_w2r")
        a("L_w2d:")
        a(f"global_load_dword v{vCSF}, v{vT+17}, {p(sGB)} sc1")
        budget()
        a("s_waitcnt vmcnt(0)")
        a("s_branch L_w2c")
    cold.insert(0, q_first)
    a("L_rq1:")
    H = vS
    br("eq", sWAVE, 7, "L_q7")
    br("ge", sWAVE, 4, "L_now2")
    a(f"v_lshlrev_b32 v{vT+10}, 7, v{vROWL}")
    a(f"v_bfe_u32 v{vT+1}, v{vROWL}, 2, 2"); a(f"v_xor_b32 v{vT+1}, s{sW}, v{vT+1}"); a(f"v_lshl_add_u32 v{vT+10}, v{vT+1}, 5, v{vT+10}")
    a(f"v_and_b32 v{vT+1}, 3, v{vLANE}"); a(f"v_lshl_add_u32 v{vT+10}, v{vT+1}, 3, v{vT+10}")
    a(f"v_add_u32 v{vT+10}, {L_W2}, v{vT+10}")
    def w2frag():
        for st in range(4):
            for hf in range(2):
                for eh in range(2):
                    a(f"ds_read_b64_tr_b16 {v(vW + 8*st + 4*hf + 2*eh,2)}, v{vT+10} offset:{st*8192 + hf*4096 + eh*256}")
    br("eq", sL, 0, "L_nw2f")
    w2frag()
    a("L_nw2f:")
    a(zero2(DP))
    a(f"v_and_b32 v{vT+3}, 60, v{vL4}")
    lin(sT, [(sJP, 16384), (sW, 64)], PB + 40*16384)
    a(f"v_add_u32 v{vT+5}, s{sT}, v{vT+3}")
    a(f"v_lshrrev_b32 v{vT+4}, 4, v{vLANE}")
    for i, top in enumerate((7, 3)):
        a(f"v_sub_u32 v{vT+8}, {top}, v{vT+4}")
        a(f"v_sub_u32 v{vT+9}, s{sGX}, v{vT+8}"); a(f"v_and_b32 v{vT+9}, 7, v{vT+9}")
        a(f"v_lshl_add_u32 v{vT+8}, v{vT+8}, 8, v{vT+5}")
        a(f"v_bfe_u32 v{vT+11}, s{sCLS}, v{vT+9}, 1"); a(f"v_lshl_add_u32 v{vT+8}, v{vT+11}, 13, v{vT+8}")
        a(f"v_and_b32 v{vT+9}, 3, v{vT+9}"); a(f"v_mul_u32_u24 v{vT+9}, 163840, v{vT+9}")
        a(f"v_add_u32 v{vT+6+i}, v{vT+8}, v{vT+9}")
    pblast(sT)
    a(f"s_sub_u32 s{sT+1}, s{sGX}, s{sYF}"); a(f"s_and_b32 s{sT+1}, s{sT+1}, 7")
    lin(sT, [(sT, 1), (sT+1, 256), (sW, 64)])
    a(f"v_add_u32 v{vT+5}, s{sT}, v{vT+3}")
    lin(sT, [(sL, 2*2560), (sJP, 256), (sW, 64)], PO + 2560)
    a(f"v_add_u32 v{vT+3}, s{sT}, v{vT+3}")
    a("L_now2:")
    align("h")
    a(f"s_cmp_ge_u32 s{sWAVE}, s{sNU}"); a("s_cbranch_scc1 L_hb")
    lin(sT, [(sL, 17920), (sWAVE, 2560)], GF)
    a(f"v_add_u32 v{vT}, s{sT}, v{vL4}")
    stat_addr(vT+1, [(sL, 2048)], SX)
    a(f"v_lshrrev_b32 v{vT+2}, 5, v{vLANE}"); a(f"v_mul_u32_u24 v{vT+2}, 448, v{vT+2}")
    a(f"v_lshl_add_u32 v{vT+2}, v{vLANE}, 1, v{vT+2}")
    a(f"s_lshl_b32 s{sT}, s{sWAVE}, 6"); a(f"v_add_u32 v{vT+2}, s{sT}, v{vT+2}")
    def htail():
        a(f"v_mov_b32 v{GA+1}, v{GA}")
        a(f"v_mul_f32 v{GA+2}, {f2u(-LOG2E):#x}, v{GA}")
        a(f"v_exp_f32 v{GA+2}, v{GA+2}")
        a(f"v_permlane32_swap_b32 v{GA}, v{GA+1}")
        a(f"v_add_f32 v{GA+2}, 1.0, v{GA+2}")
        a(f"v_rcp_f32 v{GA+2}, v{GA+2}")
        a(f"v_mul_f32 v{GA}, v{GA}, v{GA+1}")
        a(f"v_mul_f32 v{GA}, v{GA}, v{GA+2}")
        a(f"v_cvt_pk_bf16_f32 v{GA}, v{GA}, v{GA}")
        a(f"ds_write_b16 v{vT+2}, v{GA} offset:{L_HL}")
    br("eq", sL, 0, "L_w2f"); a("L_w2r:")
    consume(vT, vT+1, vCSF, None, 10, htail, mid="L_hgo")
    a("L_hb:")
    a(f"s_cmp_ge_u32 s{sWAVE}, 4")
    a("s_waitcnt lgkmcnt(0)")
    a("s_barrier")
    a("s_cbranch_scc1 L_nopush")
    for st in range(4): a(f"ds_read_b128 {v(H+4*st,4)}, v{vXA} offset:{L_HL + 128*st}")
    for st in range(4):
        lgkm(3 - st)
        a(f"v_smfmac_f32_16x16x64_bf16 {v(DP,4)}, {v(H+4*st,4)}, {v(vW+8*st,8)}, v{vIA}")
    br("lg", sL, 0, "L_push1")
    modecmp()
    a(f"v_add_f32 v{DP}, v{DP}, v{DP+1}")
    a(f"v_bfi_b32 v{DP+2}, v{vFF}, s{sTAG}, v{DP}")
    for c in range(NC):
        a(f"global_store_dword v{vT+6}, v{DP+2}, {p(sPB[c])} sc1")
        a("s_mov_b32 exec_hi, 0xffff")
        a(f"global_store_dword v{vT+7}, v{DP+2}, {p(sPB[c])} sc1")
        if c == 0:
            setexec(0xffff)
            istore(f"global_store_dword v{vT+3}, v{DP+2}, {p(sGB)}")
            stamp(11)
        setexec(-1)
    a("L_nopush:")
    br("lg", sL, 0, "L_exit")
    trq(sWAVE)
    a("L_next:")
    br("lg", sL, 0, "L_exit")
    bank()
    a(f"s_mov_b32 s{sL}, 1")
    a("s_branch L_att")
    a("L_q7:")
    br("lg", sL, 0, "L_last")
    trq(sWAVE)
    lin(sT, [(sJP, 256)], GQ1 + 7*2560)
    a(f"v_add_u32 v{vT+2}, s{sT}, v{vL4}")
    a(zero2(DP))
    a("L_qred:")
    align("q")
    so, lmore = red(1, 12)
    read4(vXA, L_XL)
    for o in so: a(o)
    red_publish_stats()
    proj_mma()
    a(f"v_add_f32 v{DP}, v{DP}, v{DP+1}")
    istore(f"global_store_dword v{vT+2}, v{DP}, {p(sGB)}")
    stamp(13)
    istore(f"global_store_dword v{vT+12}, v{R+14}, {p(sGB)}")
    a("s_waitcnt vmcnt(3)")
    a("s_branch L_next")
    a("L_push1:")
    setexec(0xffff)
    a(f"s_cmp_eq_u32 s{sGX}, s{sYF}"); a("s_cbranch_scc1 L_push0")
    a(f"v_add_f32 v{DP}, v{DP}, v{DP+1}")
    tagword(DP)
    for c in range(NC):
        a(f"global_store_dword v{vT+5}, v{DP}, {p(sPB[c])} sc1")
        if c == 0: stamp(11)
    a("s_branch L_exit")
    a("L_push0:")
    modecmp()
    a(f"v_add_f32 v{DP}, v{DP}, v{DP+1}")
    tagword(DP)
    istore(f"global_store_dword v{vT+3}, v{DP}, {p(sGB)}")
    stamp(11)
    a("s_branch L_exit")
    a("L_last:")
    a(f"s_cmp_lg_u32 s{sGX}, s{sYF}"); a("s_cbranch_scc1 L_exit")
    a(f"s_lshl_b32 s{sT}, s{sJP}, 7"); a(f"v_lshl_add_u32 v{vT+2}, v{vLANE}, 1, s{sT}")
    br("lg", sJP, 0, "L_qred")
    a(f"v_mov_b32 v{vT}, {EPO}"); a(f"v_mov_b32 v{vT+1}, s{sTAG}")
    setexec(1)
    a(f"global_store_dword v{vT}, v{vT+1}, {p(sWS)}")
    setexec(-1)
    a("s_branch L_qred")
    a("L_final:")
    tagcheck(R+15, range(R, R+8))
    a(f"s_cbranch_vccnz {lmore}")
    a(f"global_store_short v{vT+2}, v{R+11}, {p(sOUT)}{['', ' sc1', ' nt', ' sc0 sc1'][opt.get('ofl', 0)]}")
    stamp(12)
    if opt.get("x_pad"):
        br("lg", sJP, 0, "L_exit")
        a("s_memrealtime s[62:63]"); a("s_waitcnt lgkmcnt(0)")
        a("s_sub_u32 s62, s62, s60"); a(f"s_mul_i32 s62, s62, {4 if opt.get('x_at') else 0}"); a(f"s_add_u32 s62, s62, {opt['x_pad']*100}")
        a("L_xp:")
        a("s_memrealtime s[64:65]"); a("s_waitcnt lgkmcnt(0)")
        a("s_sub_u32 s64, s64, s60"); a("s_cmp_lt_u32 s64, s62"); a("s_cbranch_scc1 L_xp")
    a("s_branch L_exit")

    a("L_late:")
    if opt.get("x_first"): a("s_branch L_exit")
    a("s_setprio 3")
    entry2()
    FX = vS + 8
    a(f"v_lshlrev_b32 v{vL4}, 2, v{vLANE}")
    epoch_load()
    br("lg", sROLE, ROLE_Q, "L_nox")
    a(f"v_lshlrev_b32 v{vT}, 4, v{vLANE}")
    a(f"global_load_dwordx4 {v(FX,4)}, v{vT}, {p(sX_)}")
    a(f"global_load_dword v{FX+4}, v{vL4}, {p(sX_)} offset:1024")
    a(f"s_lshl_b32 s{sT}, s{sJP}, 7"); a(f"v_and_b32 v{vT}, 16, v{vT}"); a(f"v_lshl_add_u32 v{vT}, v{vG}, 5, v{vT}"); a(f"v_add_u32 v{vT}, s{sT}, v{vT}")
    a(f"global_load_dwordx4 {v(vS+4,4)}, v{vT}, {p(sX_)}")
    a("L_nox:")
    groupbase()
    a(f"v_mov_b32 v{vDA}, -1"); a(f"v_mov_b32 v{vT+1}, 0")
    a(f"ds_write_b32 v{vL4}, v{vDA}")
    a(f"ds_write_b32 v{vL4}, v{vT+1} offset:{L_HL+256}")
    br("lg", sWAVE, 7, "L_noclr")
    for r in range(1, 4): a(f"v_mov_b32 v{vDA+r}, -1")
    a(f"s_mul_i32 s{sT}, s{sJ}, {GCLR//32}")
    a(f"v_lshl_add_u32 v{vT}, v{vLANE}, 4, s{sT}")
    for off in (0, 1024, 2048): a(f"global_store_dwordx4 v{vT}, {v(vDA,4)}, {p(sGB)} offset:{off}")
    epoch()
    lin(sT, [(sGX, 512), (sJ, 16)], ARR)
    a(f"v_mov_b32 v{vT+2}, s{sT}"); a(f"v_mov_b32 v{vT+8}, s{sEP}")
    setexec(1)
    a("s_waitcnt vmcnt(0)")
    a(f"global_store_dword v{vT+2}, v{vT+8}, {p(sWS)} sc1")
    setexec(-1)
    a("L_noclr:")
    consts()
    br("eq", sWAVE, 7, "L_hep")
    epoch()
    a("s_waitcnt vmcnt(0)")
    a("L_hep:")
    stamp(1)
    a(f"s_lshl3_add_u32 s{sT}, s{sW}, s{sJ}")
    br("lt", sT, 8, "L_vote")
    def vote():
        a("L_vote:")
        a(f"s_mov_b32 s{sT+1}, s2")
        lin(sT+2, [(sT+1, 128)], PROBE); a(f"s_add_u32 s{sT+3}, s{sT+2}, 8192")
        a(f"s_load_dword s{sT+4}, {p(sWS)}, s{sT+2} glc"); a(f"s_load_dword s{sT+5}, {p(sWS)}, s{sT+3} glc")
        a(f"s_mov_b32 s{sI}, 0")
        a("s_waitcnt lgkmcnt(0)")
        NV = opt.get("nv", 1)
        for n in range(NV):
            for h in range(2):
                a(f"s_memtime s[{sT+6}:{sT+7}]"); a("s_waitcnt lgkmcnt(0)")
                a(f"s_load_dword s{sT+4}, {p(sWS)}, s{sT+2+h} glc"); a("s_waitcnt lgkmcnt(0)")
                a(f"s_memtime s[{sT+8}:{sT+9}]"); a("s_waitcnt lgkmcnt(0)")
                a(f"s_sub_u32 s{sT+(5 if h == 0 else 4)}, s{sT+8}, s{sT+6}")
            a(f"s_cmp_lt_u32 s{sT+4}, s{sT+5}"); a(f"s_addc_u32 s{sI}, s{sI}, 0")
        a(f"s_cmp_gt_u32 s{sI}, {NV//2}"); a(f"s_cselect_b32 s{sT+4}, 1, 0")
        a(f"s_lshr_b32 s{sT+5}, s{sEP}, 31"); a(f"s_xor_b32 s{sT+4}, s{sT+4}, s{sT+5}")
        a(f"s_and_b32 s{sT+5}, s{sEP}, 0x9fffffff"); a(f"s_lshl_b32 s{sT+4}, s{sT+4}, 30"); a(f"s_or_b32 s{sT+4}, s{sT+4}, s{sT+5}")
        lin(sT, [(sT+1, 16)], VOT)
        a(f"v_mov_b32 v{vT+2}, s{sT}"); a(f"v_mov_b32 v{vT+8}, s{sT+4}")
        setexec(1)
        a(f"global_store_dword v{vT+2}, v{vT+8}, {p(sWS)} sc1")
        setexec(-1)
        stamp(2)
        a("s_setprio 0")
        a("s_branch L_hand2")
    cold.append(vote)
    if opt.get("walk", 0) == 2:
        a("s_mov_b64 exec, 0")
        for c in range(3): br("eq", sW, c, f"L_wk{c}")
        a("s_branch L_wk3")
        a("L_wret:")
        setexec(-1)
        stamp(3)
    br("lg", sROLE, ROLE_Q, "L_hand")
    lin(sT, [(sW, 2048)], L_W2 + 24*1024)
    a(f"v_lshl_add_u32 v{vT}, v{vLANE}, 4, s{sT}")
    a(f"ds_write_b128 v{vT}, {v(vAT,4)}"); a(f"ds_write_b128 v{vT}, {v(vAT,4)} offset:1024")
    sq, sm = FX+5, FX+6
    a(f"v_dot2_f32_bf16 v{sq}, v{FX}, v{FX}, 0")
    a(f"v_dot2_f32_bf16 v{sm}, v{FX}, v{vONE}, 0")
    for t in range(1, 5):
        a(f"v_dot2_f32_bf16 v{sq}, v{FX+t}, v{FX+t}, v{sq}")
        a(f"v_dot2_f32_bf16 v{sm}, v{FX+t}, v{vONE}, v{sm}")
    a(f"v_permlane32_swap_b32 v{sq}, v{sm}")
    a(f"v_add_f32 v{sq}, v{sq}, v{sm}")
    for s_ in (8, 4, 2, 1): a(f"v_add_f32_dpp v{sq}, v{sq}, v{sq} row_ror:{s_} {DPPF}")
    a(f"v_add_f32_dpp v{sq}, v{sq}, v{sq} row_bcast:15 row_mask:0xa bank_mask:0xf")
    a(f"v_mul_f32 v{sq}, {f2u(1/640):#x}, v{sq}")
    a(f"v_readlane_b32 s{sT+2}, v{sq}, 48")
    a(f"v_readlane_b32 s{sT+3}, v{sq}, 16")
    a(f"v_mov_b32 v{sm}, s{sT+2}")
    a(f"v_fma_f32 v{sm}, -v{sm}, v{sm}, s{sT+3}")
    a(f"v_max_f32 v{sm}, 0, v{sm}")
    a(f"v_add_f32 v{sm}, {f2u(1e-5):#x}, v{sm}")
    a(f"v_rsq_f32 v{sm}, v{sm}")
    for r in range(4):
        a(f"v_lshlrev_b32 v{FX}, 16, v{vS+4+r}"); a(f"v_and_b32 v{FX+1}, 0xffff0000, v{vS+4+r}")
        a(f"v_subrev_f32 v{FX}, s{sT+2}, v{FX}"); a(f"v_subrev_f32 v{FX+1}, s{sT+2}, v{FX+1}")
        a(f"v_mul_f32 v{FX}, v{FX}, v{sm}"); a(f"v_mul_f32 v{FX+1}, v{FX+1}, v{sm}")
        a(f"v_cvt_pk_bf16_f32 v{vS+r}, v{FX}, v{FX+1}")
    setexec(0xcccccccccccccccc)
    for r in range(4): a(f"v_mov_b32 v{vS+r}, v{vONE}")
    setexec(-1)
    a(f"s_lshl_b32 s{sI}, s{sW}, 1")
    a("s_barrier")
    a("L_q1l:")
    trq(sI)
    for r in range(0, 16, 2): a(zero2(D4+r))
    lin(sT, [(sI, 5120), (sJP, 256)], GQ0)
    a(f"v_add_u32 v{vT+2}, s{sT}, v{vL4}")
    a("s_waitcnt lgkmcnt(0)")
    mma4(vS)
    for t in range(4):
        if t: a(GMASK[t-1])
        a(f"v_add_f32 v{vS+20}, v{D4+4*t}, v{D4+4*t+1}"); a(f"v_add_f32 v{vS+21}, v{D4+4*t+2}, v{D4+4*t+3}")
    setexec(-1)
    tagword(vS+20); tagword(vS+21)
    a(f"global_store_dword v{vT+2}, v{vS+20}, {p(sGB)}")
    a(f"global_store_dword v{vT+2}, v{vS+21}, {p(sGB)} offset:2560")
    a(f"s_add_u32 s{sI}, s{sI}, 1")
    a(f"s_bitcmp1_b32 s{sI}, 0"); a("s_cbranch_scc1 L_q1l")
    stamp(2)
    a("L_hand:")
    a("s_setprio 0")
    a("s_waitcnt vmcnt(0)")
    a("L_hand2:")
    a("s_barrier")
    for i in range(N0): kload(i)
    a("s_branch L_kv")

    a("L_cold:")
    for c in cold:
        if c is spread: a("L_colde:")
        c()
    for l1, l2, text in slow:
        a(f"{l1}:")
        a(text + " sc1")
        a(f"s_branch {l2}")
    a("L_exit:")
    if lite:
        setexec(-1)
        a("s_memrealtime s[62:63]")
        lin(sT, [(2, 64), (sWAVE, 8)], STAMPS)
        a("s_waitcnt lgkmcnt(0)")
        a(f"v_mov_b32 v{vT}, s{sT}"); a(f"v_mov_b32 v{vT+2}, s60"); a(f"v_mov_b32 v{vT+3}, s62")
        a(f"global_store_dwordx2 v{vT}, {v(vT+2,2)}, {p(sWS)}")
        a(f"v_add_u32 v{vT}, 16384, v{vT}"); a(f"v_mov_b32 v{vT+4}, s{64 if lite == 2 else 70}"); a(f"v_mov_b32 v{vT+5}, s{65 if lite == 2 else 68}")
        a(f"global_store_dwordx2 v{vT}, {v(vT+4,2)}, {p(sWS)}")
    if instr:
        setexec(-1)
        stamp(15)
        a("s_memrealtime s[62:63]")
        a("s_waitcnt lgkmcnt(0)")
        a(f"v_writelane_b32 v{vSTV}, s62, 35")
        for i in range(16): a(f"v_writelane_b32 v{vSTV}, s{sst(i)}, {16+i}")
        a(f"v_writelane_b32 v{vSTV}, s60, 32")
        a(f"v_writelane_b32 v{vSTV}, s{sBUD}, 33")
        a(f"v_writelane_b32 v{vSTV}, s{sMODE}, 34")
        lin(sT, [(2, 2048), (sWAVE, 256)], STAMPS)
        a(f"v_add_u32 v{vT}, s{sT}, v{vL4}")
        a(f"global_store_dword v{vT}, v{vSTV}, {p(sWS)}")
    a("L_end:")
    a("s_endpgm")
    body = a.finish()
    if opt.get("walk", 0) == 2:
        body = body.replace("L_wk3\n", "L_wk3\nL_wk0:\nL_wk1:\nL_wk2:\nL_wk3:\n", 1)
        body, n = add_pads(body, [("L_att", "L_late"), ("L_cold", "L_colde")], 4, "L_wret", opt.get("step", 64))
        body = body.replace("L_wk0:\nL_wk1:\nL_wk2:\nL_wk3:\n", "", 1)
    ref = open("interleave_layers__mha_block_cached__glu_gated_swiglu__decode.s.ref").read().split("\n")
    head = [l for l in ref if l.startswith(";") and "@launch" not in l]
    return "\n".join(head) + f"""
; @launch grid=(256,1,1) block=(512,1,1) lds={opt.get('lds', LDS_BYTES)}
.amdgcn_target "amdgcn-amd-amdhsa--gfx950"
.text
.globl {NAME}
.p2align 8
.type {NAME},@function
{NAME}:
{body}
.section .rodata,"a"
.p2align 6
.amdhsa_kernel {NAME}
  .amdhsa_next_free_vgpr 256
  .amdhsa_next_free_sgpr 102
  .amdhsa_accum_offset 256
  .amdhsa_group_segment_fixed_size 0
  .amdhsa_kernarg_size 96
  .amdhsa_user_sgpr_count 2
  .amdhsa_user_sgpr_kernarg_segment_ptr 1
  .amdhsa_system_sgpr_workgroup_id_x 1
  .amdhsa_float_denorm_mode_32 3
.end_amdhsa_kernel
"""

if __name__ == "__main__":
    out = sys.argv[1]
    instr = "instr" in sys.argv[2:]
    opt = {}
    for x in sys.argv[2:]:
        if "=" in x:
            k, val = x.split("="); opt[k] = int(val, 0)
    open(out, "w").write(gen(instr, opt))
```

```python
import sys, struct
from asmlib import Asm, add_pads

NAME = "interleave_layers__mha_block_cached__glu_gated_swiglu__decode_kernel"
def f2u(x): return struct.unpack('<I', struct.pack('<f', x))[0]

GS, GCLR = 163840, 98304
ST = 0
SX = 4096
PO = 7168
OA = 17408
EARLY = 28672
GF = 33792
GQ1 = 69632
XR = 90112
GQ0 = GCLR
CF = GQ0 + 40960
RS = CF + 17920
assert XR + 7680 <= GCLR and RS + 6144 <= GS and OA + 8192 <= EARLY and EARLY + 10*54*128 >= XR + 7680
ARR = 8*GS
ARR2 = ARR + 4096
VOT = ARR + 8192
EPO = ARR + 12288
PB = 2 << 20
PBC = 2048
PROBE = PB + 125*16384
STAMPS = 4 << 20
L_MODE, L_STAT, L_L4 = 0, 64, 1792
L_XL, L_QL, L_HL, L_PW, L_OP = 256, 512, 768, 2048, 4096
L_WA, L_W2 = 8192, 73728
LDS_BYTES = 106496
sW = 3
sX_, sK, sV, sWQ, sWO, sGB, sW1, sW3, sW2, sOUT, sWS = 4, 6, 8, 10, 12, 14, 16, 18, 20, 22, 26
sT8, sNU = 24, 25
sWAVE, sGX, sJ, sJP, sL, sBUD, sMODE, sHH, sC, sROLE = 28, 29, 30, 31, 32, 33, 34, 35, 36, 37
sKB, sVB, sEP, sTAG = 38, 40, 42, 43
sPLO, sPHI, sM, sI = 44, 45, 46, 47
sT = 48
sSTAMP = 64
sRAW = 11
sCLS, sYF, sBF = 40, 41, 10
sMQ, sMH, sMS = 6, 8, 38
vLANE, vIA, vIP, vCSQ, vONE = 0, 1, 2, 3, 4
vROWL, vXA, vCSF, vL4 = 8, 9, 10, 11
vT = 12
vFF, vSTV = 30, 31
vAT, vQ, vDA, vDB = 32, 48, 52, 56
vS, vW, vK, vV = 60, 96, 128, 192
ROLE_W, ROLE_F, ROLE_Q = 0, 1, 2
DPPF = "row_mask:0xf bank_mask:0xf"
LOG2E = 1.4426950408889634

def sst(i): return sSTAMP + 2*i if i < 13 else 96 + 2*(i - 13)
def p(r): return f"s[{r}:{r+1}]"
def v(r, n=1): return f"v{r}" if n == 1 else f"v[{r}:{r+n-1}]"

def gen(instr=False, opt=None):
    opt = dict(opt or {})
    lite = opt.get("lite", 0)
    NT = "" if opt.get("nont") else " nt"
    a = Asm()
    uid = [0]
    slow, cold = [], []
    def lab(s):
        uid[0] += 1
        return f"L_{s}_{uid[0]}"
    def br(cmp, x, y, target):
        a(f"s_cmp_{cmp}_u32 s{x}, {y}"); a(f"s_cbranch_scc1 {target}")
    def stamp(i):
        if instr: a(f"s_memtime s[{sst(i)}:{sst(i)+1}]")
    def count(site):
        if lite == 2:
            a(f"s_lshl_b32 s66, s{sL}, 5"); a(f"s_add_u32 s66, s66, {8*site}"); a("s_lshl_b64 s[66:67], 1, s66")
            a("s_add_u32 s64, s64, s66"); a("s_addc_u32 s65, s65, s67")
    npad = {}
    def pad(chain, last=False):
        if chain is None or opt.get("walk", 0) != 1: return
        n = npad.get(chain, 0); npad[chain] = n + 1
        a(f"L_pad{chain}{n}:")
        a(f"s_cbranch_execz L_pad{chain}{'r' if last else n+1}")
    def walk(chain):
        if opt.get("walk", 0) != 1: return
        a("s_mov_b64 exec, 0")
        a(f"s_branch L_pad{chain}0")
        a(f"L_pad{chain}r:")
        setexec(-1)
    def align(name):
        al = opt.get("al", 0)
        if al: a(f".p2align {al}")
        for _ in range(opt.get("sh" + name, opt.get("sh", 0))): a("s_nop 0")
    def bank():
        if instr:
            a("s_waitcnt lgkmcnt(0)")
            for i in range(16): a(f"v_writelane_b32 v{vSTV}, s{sst(i)}, {i}")
            for i in (2, 3, 9, 10, 11, 12, 13, 14): a(f"s_mov_b32 s{sst(i)}, 0")
    def lgkm(n): a(f"s_waitcnt lgkmcnt({0 if instr else n})")
    def setexec(m):
        if m == -1: a("s_mov_b64 exec, -1"); return
        lo, hi = m & 0xffffffff, m >> 32
        if hi == 0 and lo < 0x80000000: a(f"s_mov_b64 exec, {lo:#x}")
        else: a(f"s_mov_b32 exec_lo, {lo:#x}"); a(f"s_mov_b32 exec_hi, {hi:#x}")
    def execs(r): a(f"s_mov_b64 exec, {p(r)}")
    def budget():
        a(f"s_sub_u32 s{sBUD}, s{sBUD}, 1")
        a("s_cbranch_scc1 L_exit")
    def lin(dst, terms, const=0):
        first = True
        for reg, coef in terms:
            t = dst if first else sT + 11
            if coef == 1:
                if first: a(f"s_add_u32 s{dst}, s{reg}, {const}"); const = 0
                else: a(f"s_add_u32 s{dst}, s{dst}, s{reg}")
                first = False; continue
            if coef & (coef - 1) == 0: a(f"s_lshl_b32 s{t}, s{reg}, {coef.bit_length()-1}")
            else: a(f"s_mul_i32 s{t}, s{reg}, {coef}")
            if not first: a(f"s_add_u32 s{dst}, s{dst}, s{t}")
            first = False
        if const: a(f"s_add_u32 s{dst}, s{dst}, {const}")
    def sentinel(dst, regs):
        regs = list(regs)
        if len(regs) == 2: a(f"v_max_u32 v{dst}, v{regs[0]}, v{regs[1]}")
        else:
            a(f"v_max3_u32 v{dst}, v{regs[0]}, v{regs[1]}, v{regs[2]}"); regs = regs[3:]
            while len(regs) >= 2:
                a(f"v_max3_u32 v{dst}, v{dst}, v{regs[0]}, v{regs[1]}"); regs = regs[2:]
            if regs: a(f"v_max_u32 v{dst}, v{dst}, v{regs[0]}")
        a(f"v_cmp_eq_u32 vcc, -1, v{dst}")
    def zero2(r): return f"v_mov_b64 {v(r,2)}, 0"
    NC = opt.get("nc", 4)
    sPB = [sWS, 90, 92, 94]
    def ppoll(loads, check, PD=1):
        for _ in range(PD - 1):
            for t in loads: a(t)
            a({2: "s_sleep 2", 3: "s_nop 12"}.get(PD, "s_nop 9"))
        l = lab("pp")
        a(f"{l}:")
        for t in loads: a(t)
        budget()
        a(f"s_waitcnt vmcnt({len(loads)*(PD-1)})")
        check()
        a(f"s_cbranch_vccnz {l}")
    def modecmp(): a(f"s_cmp_lg_u32 s{sMODE}, 1")
    def istore(text, cmp=False):
        l1, l2 = lab("slow"), lab("st")
        if cmp: modecmp()
        a(f"s_cbranch_scc1 {l1}")
        a(text)
        a(f"{l2}:")
        slow.append((l1, l2, text))
    def tr4(t0, off_hf, off_eh, base=0):
        for t in range(4):
            if t: a(f"v_xor_b32 v{t0+1}, {32*t}, v{t0}")
            for hf in range(2):
                for eh in range(2):
                    a(f"ds_read_b64_tr_b16 {v(vW + 8*t + 4*hf + 2*eh, 2)}, v{t0 + (1 if t else 0)} offset:{base + hf*off_hf + eh*off_eh}")
    def trq(unit):
        a(f"v_lshrrev_b32 v{vT+1}, 1, v{vROWL}"); a(f"v_and_b32 v{vT+1}, 6, v{vT+1}")
        a(f"v_and_or_b32 v{vT+1}, v{vROWL}, 1, v{vT+1}"); a(f"v_lshlrev_b32 v{vT+1}, 5, v{vT+1}")
        a(f"s_and_b32 s{sT}, s{unit}, 1"); a(f"s_lshr_b32 s{sT+1}, s{unit}, 1")
        lin(sT, [(sT, 128), (sT+1, 16384)])
        a(f"v_xor_b32 v{vT+1}, s{sT}, v{vT+1}")
        a(f"v_lshl_add_u32 v{vT}, v{vROWL}, 8, v{vT+1}")
        a(f"v_and_b32 v{vT+1}, 3, v{vLANE}"); a(f"v_lshl_add_u32 v{vT}, v{vT+1}, 3, v{vT}")
        tr4(vT, 8192, 512, L_WA)
    def trf(unit):
        a(f"v_mul_u32_u24 v{vT}, 448, v{vROWL}")
        a(f"v_and_b32 v{vT+1}, 3, v{vLANE}"); a(f"v_lshl_add_u32 v{vT}, v{vT+1}, 3, v{vT}")
        lin(sT, [(unit, 64)], L_WA)
        a(f"v_add_u32 v{vT}, s{sT}, v{vT}")
        for t in range(4):
            for hf in range(2):
                for eh in range(2):
                    a(f"ds_read_b64_tr_b16 {v(vW + 8*t + 4*hf + 2*eh, 2)}, v{vT} offset:{(t>>1)*64*448 + (t&1)*32 + (32*hf + 2*eh)*448}")
    D4 = vS + 4
    def mma4(areg):
        for t in range(4):
            a(f"v_smfmac_f32_16x16x64_bf16 {v(D4+4*t,4)}, {v(areg,4)}, {v(vW+8*t,8)}, v{vIA}")
    GMASK = ["s_mov_b32 exec_lo, 0xffff0000", "s_mov_b32 exec_lo, 0", "s_mov_b32 exec_hi, 0xffff0000"]
    def read4(addr, off):
        for t in range(4):
            a(f"ds_read_b128 {v(vAT+4*t,4)}, v{addr} offset:{off}")
            if t < 3: a("s_lshl_b64 exec, exec, 4")
        setexec(-1)
    DP = vS + 32
    def proj_mma():
        for t in range(4):
            lgkm(3 - t)
            a(f"v_smfmac_f32_16x16x64_bf16 {v(DP,4)}, {v(vAT+4*t,4)}, {v(vW+8*t,8)}, v{vIA}")
    def stats_ops(x, t):
        o = [f"v_mul_f32 v{t+1}, v{x}, v{x}", f"v_mov_b32 v{t}, v{x}",
             f"v_permlane32_swap_b32 v{t}, v{t+1}", f"v_add_f32 v{t}, v{t}, v{t+1}"]
        o += [f"v_add_f32_dpp v{t}, v{t}, v{t} row_ror:{s} {DPPF}" for s in (8, 4, 2, 1)]
        o += [f"v_add_f32_dpp v{t}, v{t}, v{t} row_bcast:15 row_mask:0xa bank_mask:0xf"]
        return o
    def tagword(r): a(f"v_bfi_b32 v{r}, v{vFF}, s{sTAG}, v{r}")
    def untag(regs, src=None):
        for r, q in zip(regs, src or regs): a(f"v_xor_b32 v{r}, s{sT8}, v{q}")
    def tagcheck(acc, regs):
        regs = list(regs)
        a(f"v_or3_b32 v{acc}, v{regs[0]}, v{regs[1]}, v{regs[2]}"); regs = regs[3:]
        while len(regs) > 2:
            a(f"v_or3_b32 v{acc}, v{acc}, v{regs[0]}, v{regs[1]}"); regs = regs[2:]
        if len(regs) == 2:
            a(f"v_or_b32 v{acc}, v{acc}, v{regs[0]}"); regs = regs[1:]
        a(f"v_bitop3_b32 v{acc}, v{acc}, v{regs[0]}, v{vFF} bitop3:0xa8")
        a(f"v_cmp_ne_u32 vcc, 0, v{acc}")

    def G(i): return vS + 4*(i >> 1) + 2 + (i & 1)
    GA = vQ
    def gloads(areg):
        for t in range(10): a(f"global_load_dword v{G(t)}, v{areg}, {p(sGB)} offset:{t*256} sc1")
    def stat_addr(dst, terms, const):
        lin(sT, terms + [(sC, 128)], const)
        a(f"v_and_b32 v{dst}, 124, v{vL4}"); a(f"v_add_u32 v{dst}, s{sT}, v{dst}")
        a(f"v_mov_b32 v{G(14)}, 0")
    def consume(areg, sreg, cs, scale, st, tail, chain=None, mid=None):
        lr, lc, lgo = lab("gr"), lab("gc"), lab("go")
        execs(sMS)
        ppoll([f"global_load_dword v{G(14)}, v{sreg}, {p(sGB)} sc1"], lambda: a(f"v_cmp_eq_u32 vcc, -1, v{G(14)}"), PD=opt.get('pdq' if scale else 'pdh', 2))
        setexec(-1)
        d = opt.get("dq" if scale else "dh", 0)
        if d: a(f"s_nop {d-1}")
        if mid: a(f"{mid}:")
        if not scale and opt.get('fine'): stamp(1)
        gloads(areg)
        for s in (8, 4, 2, 1):
            src = G(14) if s == 8 else G(12)
            if s == 1: a(f"v_add_f32_dpp v{G(13)}, v{src}, v{src} row_ror:{s} {DPPF}")
            a(f"v_add_f32_dpp v{G(12)}, v{src}, v{src} row_ror:{s} {DPPF}")
            if s in (8, 1): pad(chain)
        a(f"v_permlane16_swap_b32 v{G(12)}, v{G(13)}")
        a(f"v_mul_f32 v{G(12)}, {f2u(-1/640):#x}, v{G(12)}")
        a(f"v_mul_f32 v{G(13)}, {f2u(1/640):#x}, v{G(13)}")
        a(f"v_fma_f32 v{G(13)}, -v{G(12)}, v{G(12)}, v{G(13)}")
        a(f"v_max_f32 v{G(13)}, 0, v{G(13)}")
        a(f"v_add_f32 v{G(13)}, {f2u(1e-5):#x}, v{G(13)}")
        a(f"v_rsq_f32 v{G(13)}, v{G(13)}")
        a(f"v_mul_f32 v{G(10)}, v{G(12)}, v{cs}")
        a(f"v_mov_b32 v{G(11)}, 0")
        if scale: a(f"v_mul_f32 v{G(13)}, {f2u(scale):#x}, v{G(13)}")
        pad(chain)
        a(f"{lc}:")
        for t in range(5):
            a(f"s_waitcnt vmcnt({8 - 2*t})")
            a(f"v_pk_add_f32 {v(GA,2)}, {v(G(2*t),2)}, {v(GA if t else G(10),2)}")
        stamp(st)
        a(f"v_add_f32 v{GA}, v{GA}, v{GA+1}")
        a(f"v_mul_f32 v{GA}, v{GA}, v{G(13)}")
        tail()
        pad(chain, last=True)
        sentinel(G(12), [G(i) for i in range(10)])
        a(f"s_cbranch_vccnz {lr}")
        def retry():
            a(f"{lr}:"); gloads(areg); count(0 if scale else 1); budget(); a(f"s_branch {lc}")
        cold.insert(0, retry)
    CSC = LOG2E * (128 ** -0.5)

    R = vS
    Y = vQ
    def red(kodd, st):
        pbaddr(sT, sGX, kodd)
        if kodd:
            pblast(sT+1); a(f"s_cmp_lg_u32 s{sL}, 0"); a(f"s_cselect_b32 s{sT}, s{sT+1}, s{sT}")
        a(f"v_add_u32 v{vT+8}, s{sT}, v{vL4}")
        lin(sT, [(sL, 2*2560), (sJP, 256)], XR + kodd*2560)
        a(f"v_add_u32 v{vT+12}, s{sT}, v{vL4}")
        a(f"v_add_u32 v{vT+9}, {PO - XR}, v{vT+12}")
        lin(sT, [(sL, 2048), (sJP, 4)], SX + kodd*1024)
        a(f"v_lshrrev_b32 v{vT+13}, 5, v{vLANE}"); a(f"v_lshl_add_u32 v{vT+13}, v{vT+13}, 6, s{sT}")
        a(f"v_and_b32 v{vT+10}, 7, v{vLANE}"); a(f"v_lshl_add_u32 v{vT+13}, v{vT+10}, 7, v{vT+13}")
        a(f"v_lshlrev_b32 v{vT+10}, 1, v{vLANE}")
        a(f"v_mov_b32 v{R+9}, 0")
        a(f"s_sub_u32 s{sT+8}, 0, s{sT8}"); a(f"s_subb_u32 s{sT+9}, 0, s{sT8}")
        a(f"s_mov_b32 s{sI}, 0")
        lres, lfb = lab("res"), lab("fb")
        if not kodd:
            l0 = lab("r0")
            br("lg", sL, 0, l0)
            a(f"s_lshl_b32 s{sT}, s{sJP}, 7"); a(f"v_add_u32 v{R}, s{sT}, v{vT+10}")
            a(f"v_mov_b32 v{R+8}, 0")
            a(f"global_load_short_d16_hi v{R+8}, v{R}, {p(sX_)}")
            if opt.get("c0", 3) == 3:
                a(f"s_mov_b32 s{sI}, 8"); a(f"s_branch {lfb}")
            a(f"s_branch {lres}")
            a(f"{l0}:")
        if kodd:
            l0 = lab("r1")
            br("lg", sL, 0, l0); a("s_barrier"); a(f"{l0}:")
        ppoll([f"global_load_dword v{R+8}, v{vT+12}, {p(sGB)} offset:-2560 sc1"], lambda: a(f"v_cmp_eq_u32 vcc, -1, v{R+8}"))
        a(f"{lres}:")
        if kodd:
            a("s_barrier")
            a(f"s_sleep {opt.get('rd1', 12)}")
        else:
            def chk():
                a(f"v_bitop3_b32 v{R+16}, v{Y}, s{sT8}, v{vFF} bitop3:0x28")
                a(f"v_cmp_ne_u32 vcc, 0, v{R+16}")
            ppoll([f"global_load_dword v{Y}, v{vT+9}, {p(sGB)} sc1"], chk, PD=opt.get("pdr", 4))
            if opt.get("rd0", 1): a(f"s_sleep {opt.get('rd0', 1)}")
        def rows(c):
            a(f"global_load_dword v{Y}, v{vT+9}, {p(sGB)} sc1")
            for t in range(1, 8): a(f"global_load_dword v{Y+t}, v{vT+8}, {p(sPB[c])} offset:{t*256} sc1")
        ltry, lm, lfin = lab("try"), lab("rm"), lab("fin")
        n0 = min(NC, 3)
        if opt.get("c0", 3) in (1, 2) and not kodd:
            a(f"s_cmp_eq_u32 s{sL}, 0"); a(f"s_cselect_b32 s{sI}, 8, 0"); a(f"s_cbranch_scc1 {lfb}")
        for c in range(n0):
            rows(c)
            if c < n0 - 1: a(f"s_sleep {opt.get('cd', 3)}")
        if kodd: a(f"s_cmp_lg_u32 s{sL}, 0")
        a(f"s_waitcnt vmcnt({8*(n0-1)})")
        a(f"{ltry}:")
        def un2(*ts):
            for t in ts:
                if opt.get("u64", 1): a(f"v_lshl_add_u64 {v(R+t,2)}, {v(Y+t,2)}, 0, s[{sT+8}:{sT+9}]")
                else: untag(range(R+t, R+t+2), range(Y+t, Y+t+2))
        un2(0); a(f"v_pk_add_f32 {v(R+10,2)}, {v(R,2)}, {v(R+8,2)}")
        un2(2, 4); a(f"v_pk_add_f32 {v(R+12,2)}, {v(R+2,2)}, {v(R+4,2)}")
        un2(6); a(f"v_pk_add_f32 {v(R+10,2)}, {v(R+10,2)}, {v(R+6,2)}")
        a(f"v_pk_add_f32 {v(R+10,2)}, {v(R+10,2)}, {v(R+12,2)}")
        a(f"v_add_f32 v{R+10}, v{R+10}, v{R+11}")
        a(f"v_cvt_pk_bf16_f32 v{R+11}, v{R+10}, v{R+10}")
        if kodd: a("s_cbranch_scc1 L_final")
        a(f"ds_write_b16 v{vT+10}, v{R+11} offset:{L_XL}")
        a(f"v_and_b32 v{R+14}, 0xffff0000, v{R+11}")
        so = stats_ops(R+14, R+16)
        a(so[0]); a(so[1])
        tagcheck(R+15, range(R, R+8))
        a(so[2]); a(so[3])
        a(f"s_cbranch_vccnz {lm}")
        stamp(st)
        def more():
            a(f"{lm}:")
            count(2)
            a(f"s_add_u32 s{sI}, s{sI}, 1")
            for c in range(1, NC):
                l = lab("rn")
                br("lg", sI, c, l)
                if c == 1 and NC > 3: rows(3)
                if kodd: a(f"s_cmp_lg_u32 s{sL}, 0")
                a(f"s_waitcnt vmcnt({8*(NC-1-c)})")
                a(f"s_branch {ltry}")
                a(f"{l}:")
            a(f"{lfb}:")
            PF = opt.get(f"pf{kodd}", 1 if kodd else 2)
            for _ in range(PF - 1): rows(NC-1); a("s_nop 8")
            l = lab("rf")
            a(f"{l}:")
            rows(NC-1)
            budget()
            a(f"s_waitcnt vmcnt({8*(PF-1)})")
            a(f"v_xor_b32 v{R+15}, s{sT8}, v{Y}")
            for t in range(1, 8): a(f"v_bitop3_b32 v{R+15}, v{Y+t}, s{sT8}, v{R+15} bitop3:0xbe")
            a(f"v_and_b32 v{R+15}, 0xff, v{R+15}")
            a(f"v_cmp_ne_u32 vcc, 0, v{R+15}")
            if kodd: a(f"s_cmp_lg_u32 s{sL}, 0")
            a(f"s_cbranch_vccz {ltry}")
            a(f"s_branch {l}")
        cold.insert(0, more)
        if kodd: execs(sMQ)
        a("s_waitcnt lgkmcnt(0)")
        a("s_barrier")
        return so[4:], lm
    def red_publish_stats():
        modecmp()
        setexec((0xff << 16) | (0xff << 48))
        istore(f"global_store_dword v{vT+13}, v{R+16}, {p(sGB)}")
        if opt.get('fine'): stamp(4)
        setexec(-1)
    def dma_run(areg, src, lstep, gstep, flip):
        l = lab("dma")
        a(f"s_mov_b32 s{sT+10}, {gstep}")
        a(f"{l}:")
        which = {p(sWO): 0, p(sW2): 2}.get(src, 1)
        a(f"global_load_lds_dwordx4 v{areg}, {src}{'' if opt.get('pl', 2) >> which & 1 else NT}")
        a(f"s_add_u32 m0, m0, {lstep}")
        a(f"v_xad_u32 v{areg}, v{areg}, {flip}, s{sT+10}")
        a(f"s_sub_u32 s{sI}, s{sI}, 1")
        br("lg", sI, 0, l)
    def rows8_off(dst, stride):
        a(f"v_lshrrev_b32 v{dst}, 3, v{vLANE}"); a(f"v_mul_u32_u24 v{dst}, {stride}, v{dst}")
        a(f"v_and_b32 v{dst+1}, 7, v{vLANE}"); a(f"v_lshlrev_b32 v{dst+1}, 4, v{dst+1}")
        a(f"v_and_b32 v{dst+2}, 32, v{vLANE}"); a(f"v_xor_b32 v{dst+1}, v{dst+1}, v{dst+2}")
        a(f"v_add_u32 v{dst}, v{dst}, v{dst+1}")
    def unit0(dst):
        a(f"s_mul_i32 s{dst}, s{sGX}, 7"); a(f"s_min_u32 s{dst}, s{dst}, 48")
    def pbaddr(dst, Y, kodd):
        a(f"s_lshr_b32 s{sT+10}, s{sCLS}, s{Y}"); a(f"s_and_b32 s{sT+10}, s{sT+10}, 1"); a(f"s_and_b32 s{dst}, s{Y}, 3")
        lin(dst, [(dst, 163840), (sT+10, 8192), (sL, 80*16384), (sJP, 16384)], PB + kodd*40*16384)
    def pblast(dst):
        a(f"s_lshr_b32 s{sT+10}, s{sCLS}, s{sYF}"); a(f"s_and_b32 s{sT+10}, s{sT+10}, 1")
        lin(dst, [(sBF, 16384), (sT+10, 8192)], PB)
    def groupbase():
        a(f"s_mul_i32 s{sT+1}, s{sGX}, {GS}")
        a(f"s_add_u32 s{sGB}, s{sWS}, s{sT+1}"); a(f"s_addc_u32 s{sGB+1}, s{sWS+1}, 0")
    def epoch_load():
        a(f"s_mov_b32 s{sT+1}, {EPO}")
        a(f"s_load_dword s{sEP}, {p(sWS)}, s{sT+1}")
    def consts():
        a(f"s_mov_b32 s{sL}, 0"); a(f"s_mov_b32 s{sBUD}, 0x200000"); a(f"s_mov_b32 s{sMODE}, 2")
        a(f"s_lshr_b32 s{sHH}, s{sJ}, 3"); a(f"s_and_b32 s{sC}, s{sJ}, 7")
        a(f"s_cmp_lt_u32 s{sGX}, 6"); a(f"s_cselect_b32 s{sNU}, 7, 6")
        a(f"s_mov_b32 s{sPLO}, 0x05040100"); a(f"s_mov_b32 s{sPHI}, 0x07060302")
        for r, m in ((sMQ, 0x000f000f), (sMH, 0x00ff00ff)): a(f"s_mov_b32 s{r}, {m:#x}"); a(f"s_mov_b32 s{r+1}, s{r}")
        a(f"v_lshlrev_b32 v{vL4}, 2, v{vLANE}")
        a(f"v_mov_b32 v{vFF}, 0xff")
        a(f"v_and_b32 v{vT}, 1, v{vLANE}")
        a(f"v_mul_u32_u24 v{vIA}, 0xaaaa, v{vT}"); a(f"v_add_u32 v{vIA}, 0x4444, v{vIA}")
        a(f"v_mul_u32_u24 v{vIP}, 0x5555, v{vT}"); a(f"v_add_u32 v{vIP}, 0x8888, v{vIP}")
        a(f"v_lshlrev_b32 v{vXA}, 4, v{vT}"); a(f"v_lshl_add_u32 v{vXA}, v{vG}, 5, v{vXA}")
        for r in range(4): a(f"v_mov_b32 v{vONE+r}, 0x3f803f80")
        a(f"v_lshrrev_b32 v{vROWL}, 5, v{vLANE}"); a(f"v_lshlrev_b32 v{vROWL}, 4, v{vROWL}")
        a(f"v_and_b32 v{vT}, 1, v{vG}"); a(f"v_lshl_add_u32 v{vROWL}, v{vT}, 2, v{vROWL}")
        a(f"v_bfe_u32 v{vT}, v{vLANE}, 2, 1"); a(f"v_add_u32 v{vROWL}, v{vROWL}, v{vT}")
        a(f"v_and_b32 v{vT}, 8, v{vLANE}"); a(f"v_add_u32 v{vROWL}, v{vROWL}, v{vT}")
        for r in range(0, 16, 2): a(zero2(vAT+r))
        if instr: a(f"v_mov_b32 v{vSTV}, 0")
    def epoch():
        a("s_waitcnt lgkmcnt(0)")
        a(f"s_getreg_b32 s{sT+1}, hwreg(HW_REG_XCC_ID, 0, 3)")
        a(f"s_and_b32 s{sT8}, s{sEP}, 0xff"); a(f"s_cmp_eq_u32 s{sT8}, 0xfe")
        a(f"s_addc_u32 s{sTAG}, s{sEP}, 1"); a(f"s_and_b32 s{sT8}, s{sTAG}, 0xff")
        a(f"s_and_b32 s{sEP}, s{sTAG}, 0x1fffffff"); a(f"s_lshl_b32 s{sT+1}, s{sT+1}, 29"); a(f"s_or_b32 s{sEP}, s{sEP}, s{sT+1}")

    vG, vKA, vVA, vVB_ = vT+14, vT+15, vT+16, vT+17
    K1 = opt.get("k1", 0)
    if K1 == 2: a("s_load_dwordx4 s[4:7], s[0:1], 0")
    else: a("s_load_dwordx16 s[4:19], s[0:1], 0")
    if not K1: a("s_load_dwordx8 s[20:27], s[0:1], 64")
    br("ge", 2, 256, "L_end")
    if instr or lite or opt.get("x_pad"): a("s_memrealtime s[60:61]")
    if lite: a("s_mov_b64 s[64:65], 0"); a("s_mov_b32 s68, 0"); a("s_mov_b32 s70, 0")
    if instr:
        stamp(0)
        for i in range(1, 16): a(f"s_mov_b32 s{sst(i)}, 0")
    a(f"v_lshrrev_b32 v{vT}, 6, v0")
    a(f"v_and_b32 v{vLANE}, 63, v0")
    a(f"v_readfirstlane_b32 s{sWAVE}, v{vT}")
    a(f"s_and_b32 s{sGX}, s2, 7"); a(f"s_lshr_b32 s{sJ}, s2, 3")
    MAPS = [((13, 14, 15), (11, 12, 16)), ((13, 14, 15), (11, 12, 17)), ((18, 14, 15), (12, 13, 17)), ((18, 19, 15), (12, 13, 17)),
            ((18, 11, 15), (12, 13, 17)), ((13, 19, 15), (18, 12, 17))]
    UB, WB = MAPS[opt.get("map", 2)]
    CB = [x for x in range(11, 20) if x not in UB + WB]
    CB = [CB[i] for i in [(0, 1, 2), (0, 2, 1), (1, 2, 0)][opt.get("co", 0)]]
    def ubits(u): return sum(((u >> i) & 1) << UB[i] for i in range(3))
    a(f"s_lshr_b32 s{sT+1}, s{sJ}, 3"); a(f"s_and_b32 s{sT+2}, s{sJ}, 16")
    a(f"s_lshl2_add_u32 s{sT}, s{sGX}, s{sT+1}"); a(f"s_xor_b32 s{sT}, s{sT}, s{sT+2}"); a(f"s_lshl_b32 s{sT}, s{sT}, 20")
    for src, bits in ((sJ, CB), (sWAVE, WB)):
        i = 0
        while i < 3:
            n = 1
            while i + n < 3 and bits[i+n] == bits[i] + n: n += 1
            a(f"s_bfe_u32 s{sT+1}, s{src}, {i | (n << 16):#x}"); a(f"s_lshl_b32 s{sT+1}, s{sT+1}, {bits[i]}"); a(f"s_or_b32 s{sT}, s{sT}, s{sT+1}")
            i += n
    a(f"v_lshrrev_b32 v{vG}, 4, v{vLANE}")
    a(f"v_and_b32 v{vKA}, 7, v{vLANE}"); a(f"v_lshlrev_b32 v{vKA}, 8, v{vKA}")
    a(f"v_and_b32 v{vT}, 8, v{vLANE}"); a(f"v_lshl_add_u32 v{vKA}, v{vT}, 3, v{vKA}")
    a(f"v_lshl_add_u32 v{vKA}, v{vG}, 4, v{vKA}")
    def entry2():
        if K1: a("s_waitcnt lgkmcnt(0)")
        a(f"s_add_u32 s{sVB}, s{sV}, s{sT}"); a(f"s_addc_u32 s{sVB+1}, s{sV+1}, 0")
        if opt.get("ro", 0):
            a(f"s_add_u32 s{sJP}, s{sJ}, 10"); a(f"s_add_u32 s{sROLE}, s{sJ}, 20"); a(f"s_cmp_lt_u32 s{sJ}, 10"); a(f"s_cselect_b32 s{sJP}, s{sJP}, s{sROLE}")
            a(f"s_sub_u32 s{sROLE}, s{sJ}, 12"); a(f"s_cselect_b32 s{sJP}, s{sJP}, s{sROLE}")
            a(f"s_sub_u32 s{sROLE}, s{sJ}, 2"); a(f"s_cmp_lt_u32 s{sJ}, 22"); a(f"s_cselect_b32 s{sJP}, s{sJP}, s{sROLE}")
        else: a(f"s_mov_b32 s{sJP}, s{sJ}")
        a(f"s_mul_i32 s{sROLE}, s{sJP}, 26"); a(f"s_lshr_b32 s{sROLE}, s{sROLE}, 8")
        if opt.get("x_norole"): a(f"s_mov_b32 s{sROLE}, 3")
        a(f"s_and_b32 s{sW}, s{sWAVE}, 3")
        a(f"s_mul_i32 s{sT+1}, s{sROLE}, 10"); a(f"s_sub_u32 s{sJP}, s{sJP}, s{sT+1}")
        a(f"v_and_b32 v{vT}, 15, v{vLANE}")
        if UB[1] == UB[0] + 1: a(f"v_lshlrev_b32 v{vVA}, {UB[0]}, v{vG}")
        else:
            a(f"v_and_b32 v{vVA}, 1, v{vG}"); a(f"v_lshlrev_b32 v{vVA}, {UB[0]}, v{vVA}")
            a(f"v_lshrrev_b32 v{vVB_}, 5, v{vLANE}"); a(f"v_lshl_add_u32 v{vVA}, v{vVB_}, {UB[1]}, v{vVA}")
        a(f"v_lshl_add_u32 v{vVA}, v{vT}, 4, v{vVA}")
        a(f"v_add_u32 v{vVB_}, {1 << UB[2]}, v{vVA}")
        for c in range(1, NC): a(f"s_add_u32 s{sPB[c]}, s{sWS}, {c*PBC}"); a(f"s_addc_u32 s{sPB[c]+1}, s{sWS+1}, 0")
        groupbase()
        for r in range(2, 14, 2): a(zero2(vT+r))
    N0, N1, WIN, TAIL = opt.get("n0", 6), opt.get("n1", 5), opt.get("wa", 6), opt.get("tail", 3)
    def vload(i, pos):
        t = (i + 8) & 15
        d = vV + 8*(t-8) if t >= 8 else vW + 4*t
        a(f"global_load_dwordx4 {v(d,4)}, v{vVB_ if t >= 8 else vVA}, {p(sVB)} offset:{(t&7)*256}{NT}")
        gap(pos)
    def kload(i, pos=None):
        u, hf = i >> 1, i & 1
        a(f"global_load_dwordx4 {v(vK+8*u+4*hf,4)}, v{vKA}, {p(sKB)} offset:{hf*128}{NT}")
        gap(i if pos is None else pos, f"v_xor_b32 v{vKA}, {ubits(u) ^ ubits(u+1)}, v{vKA}" if (hf and u < 7) else None)
    def gap(i, op=None):
        if op: a(op)
        WN = opt.get("wn", 0)
        if WN and max(WN - 1, N0) <= i < 31 - opt.get("tailn", 0):
            l = lab("g"); a(f"s_cbranch_vccz {l}"); a(f"s_waitcnt vmcnt({WN-1})"); a(f"{l}:"); op = True
        if WIN and WIN - 1 <= i < 31 - TAIL: a(f"s_waitcnt vmcnt({WIN-1})")
        elif not op and i < 31: a("s_nop 0")
    a("s_waitcnt lgkmcnt(0)")
    if K1: a("s_load_dwordx8 s[20:27], s[0:1], 64")
    if K1 == 2: a("s_load_dwordx4 s[8:11], s[0:1], 16"); a("s_load_dwordx8 s[12:19], s[0:1], 32")
    a(f"s_add_u32 s{sKB}, s{sK}, s{sT}"); a(f"s_addc_u32 s{sKB+1}, s{sK+1}, 0")
    br("ge", sWAVE, 4, "L_late")
    if opt.get("x_first"): a("s_memrealtime s[70:71]")
    for i in range(N0): kload(i)
    if opt.get("x_first"):
        a(f"s_waitcnt vmcnt({N0-1})"); a("s_memrealtime s[68:69]"); a(f"v_lshlrev_b32 v{vL4}, 2, v{vLANE}"); a("s_branch L_exit")
    entry2()
    a(f"s_mov_b32 s{sI}, 16")
    br("eq", sROLE, ROLE_W, "L_lw")
    SW = opt.get("sw", 0)
    if SW: br("lg", sROLE, ROLE_Q, "L_vke")
    br("eq", sROLE, ROLE_F, "L_lf")
    br("lg", sROLE, ROLE_Q, "L_kv")
    a(f"s_and_b32 s{sT+1}, s{sW}, 2"); a(f"s_lshl_b32 s{sT+1}, s{sT+1}, 11")
    lin(sT, [(sJP, 64*8192), (sGX, 1024), (sW, 256)])
    a(f"s_xor_b32 s{sT}, s{sT}, s{sT+1}")
    a(f"v_lshlrev_b32 v{vT}, 4, v{vT}")
    a(f"v_and_b32 v{vT+1}, 16, v{vLANE}"); a(f"v_lshlrev_b32 v{vT+1}, 1, v{vT+1}"); a(f"v_xor_b32 v{vT}, v{vT}, v{vT+1}")
    a(f"v_lshl_add_u32 v{vT}, v{vG}, 13, v{vT}"); a(f"v_add_u32 v{vT}, s{sT}, v{vT}")
    lin(sT+4, [(sW, 16384)], L_WA)
    for i in range(16):
        a(f"s_add_u32 m0, s{sT+4}, {i*1024}")
        a(f"v_xor_b32 v{vT+2}, {i*32768 + 64*(i & 3)}, v{vT}")
        a(f"global_load_lds_dwordx4 v{vT+2}, {p(sWQ)}{'' if opt.get('pl', 0) & 8 else NT}")
    a("s_branch L_kv")
    a("L_lw:")
    WE, WM = opt.get("we", 16), opt.get("wlate", 1)
    def worun(t0, first):
        rows8_off(t0, 1280)
        a(f"s_and_b32 s{sT+1}, s{sW}, 2"); a(f"s_lshl_b32 s{sT+1}, s{sT+1}, 3")
        a(f"s_lshl2_add_u32 s{sT}, s{sGX}, s{sW}"); a(f"s_xor_b32 s{sT}, s{sT}, s{sT+1}")
        lin(sT, [(sT, 128*1280), (sJP, 128)] + ([(first, 10240)] if first else []))
        a(f"v_add_u32 v{t0}, s{sT}, v{t0}")
        lin(sT, [(sW, 16384)] + ([(first, 1024)] if first else []), L_WA); a(f"s_mov_b32 m0, s{sT}")
        if first: a("s_barrier")
        if first and opt.get("wd"): a(f"s_sleep {opt['wd']}")
        dma_run(t0, p(sWO), 1024, 10240, 64)
    if WE:
        if WE != 16: a(f"s_mov_b32 s{sI}, {WE}")
        worun(vT, None)
    a("s_branch L_kv")
    a("L_lf:")
    FE = opt.get("fe", 0)
    def w13run(first):
        a(f"s_and_b32 s{sT+1}, s{sW}, 1")
        a(f"s_cmp_lt_u32 s{sW}, 2")
        a(f"s_cselect_b64 s[{sT+2}:{sT+3}], {p(sW1)}, {p(sW3)}")
        lin(sT, [(sW, 16*896)] + ([(first, 896)] if first else []), L_WA); a(f"s_mov_b32 m0, s{sT}")
        a(f"v_cmp_lt_u32 vcc, 27, v{vLANE}")
        a(f"v_mov_b32 v{vT+1}, {3456 - 448}")
        a(f"v_cndmask_b32 v{vT}, 0, v{vT+1}, vcc")
        a(f"v_lshl_add_u32 v{vT}, v{vLANE}, 4, v{vT}")
        unit0(sT+5)
        lin(sT, [(sJP, 64*3456), (sT+5, 64), (sT+1, 32*3456)] + ([(first, 2*3456)] if first else []))
        a(f"v_add_u32 v{vT}, s{sT}, v{vT}")
        if first: a("s_barrier")
        if first and opt.get("fw"): a(f"s_sleep {opt['fw']}")
        a(f"s_cmp_lt_u32 s{sGX}, 6")
        a("s_cselect_b32 exec_lo, -1, 0xf0ffffff"); a("s_mov_b32 exec_hi, 0xfffff"); a("s_cselect_b32 exec_hi, 0xffffff, exec_hi")
        dma_run(vT, f"s[{sT+2}:{sT+3}]", 896, 2*3456, 0)
        setexec(-1)
    if FE:
        if FE != 16: a(f"s_mov_b32 s{sI}, {FE}")
        w13run(None)
    a("L_kv:")
    if opt.get("wn", 0): a(f"s_bitcmp1_b32 {opt.get('wm', 8)}, s{sROLE}"); a("s_cselect_b64 vcc, -1, 0")
    for i in range(N0, 16):
        kload(i)
        if i == N0 + N1 - 1:
            br("ge", sWAVE, 4, "L_nob0"); br("lg", sROLE, ROLE_Q, "L_nob0")
            a(f"s_waitcnt vmcnt({N1})"); a("s_barrier"); a("L_nob0:")
    for i in range(16): vload(i, 16 + i)
    a("L_kvd:")
    stamp(4)
    a(f"s_mov_b32 s{sMS}, 0x03ff03ff"); a(f"s_mov_b32 s{sMS+1}, s{sMS}")
    a(f"s_cmp_lt_u32 s{sJP}, 5"); a(f"s_cselect_b32 s{sYF}, 0, 4"); a(f"s_cselect_b32 s{sBF}, 5, 0")
    lin(sBF, [(sBF, 1), (sJP, 1)], 115)
    a(f"s_lshr_b32 s{sRAW}, s{sWAVE}, 2")
    if SW: a(f"s_andn2_b32 s{sRAW}, s{sRAW}, s{sROLE}")
    a("s_cbranch_scc1 L_att")
    br("ge", sWAVE, 4, "L_perm")
    a("s_barrier")
    a("s_setprio 2")
    epoch_load(); consts(); epoch()
    a("L_perm:")
    for grp in (1, 0):
        for tp in range(4):
            a(f"s_waitcnt vmcnt({(14 if grp else 6) - 2*tp})")
            for e in range(8):
                if grp: s1, s0 = vV + 8*(2*tp) + (e >> 1), vV + 8*(2*tp+1) + (e >> 1)
                else:   s1, s0 = vW + 4*(2*tp) + (e >> 1), vW + 4*(2*tp+1) + (e >> 1)
                a(f"v_perm_b32 v{vV + 8*e + 4*grp + tp}, v{s0}, v{s1}, s{sPHI if e & 1 else sPLO}")
    br("lg", sRAW, 0, "L_pv")
    br("ge", sWAVE, 4, "L_att")
    q0 = vT + 4
    def qpos():
        a(f"v_bfe_u32 v{q0+2}, v{vLANE}, 4, 1"); a(f"v_lshlrev_b32 v{q0+2}, 6, v{q0+2}")
        a(f"v_and_b32 v{q0+3}, 44, v{vLANE}"); a(f"v_add_u32 v{q0+2}, v{q0+2}, v{q0+3}")
        a(f"v_and_b32 v{q0+3}, 2, v{vLANE}"); a(f"v_lshl_add_u32 v{q0+2}, v{q0+3}, 3, v{q0+2}")
        a(f"v_and_b32 v{q0+3}, 1, v{vLANE}"); a(f"v_lshl_add_u32 v{q0+2}, v{q0+3}, 1, v{q0+2}")
        a(f"s_lshl_b32 s{sT}, s{sWAVE}, 7"); a(f"v_add_u32 v{q0+2}, s{sT}, v{q0+2}")
    B0 = vS
    W2E = opt.get("w2e", 0)
    def w2run(first, t0):
        lin(sT, [(first, 1024)], L_W2); a(f"s_mov_b32 m0, s{sT}")
        rows8_off(t0, 1280)
        a(f"s_and_b32 s{sT}, s{first}, 1"); a(f"s_lshl_b32 s{sT}, s{sT}, 6"); a(f"v_xor_b32 v{t0}, s{sT}, v{t0}")
        unit0(sT+1)
        lin(sT, [(sT+1, 32*1280), (first, 8*1280), (sJP, 128)])
        a(f"v_add_u32 v{t0}, s{sT}, v{t0}")
    if W2E:
        br("lg", sROLE, ROLE_Q, "L_nw2e")
        a(f"s_mov_b32 s{sI}, {W2E}"); a(f"s_mul_i32 s{sT+2}, s{sWAVE}, {W2E}")
        w2run(sT+2, q0)
        dma_run(q0, p(sW2), 1024, 10240, 64)
        a("L_nw2e:")
    br("eq", sROLE, 3, "L_n0")
    NN = " nt" if opt.get("nn", 0) else ""
    def reduce0():
        a("L_n0:")
        a(f"s_lshl2_add_u32 s{sI}, s{sJP}, s{sW}")
        lin(sT, [(sI, 5120)], GQ0 + 2560); a(f"v_add_u32 v{q0}, s{sT}, v{vL4}")
        lin(sT, [(sI, 768)], RS); a(f"v_add_u32 v{q0+2}, s{sT}, v{vL4}")
        lin(sT, [(sGX, 512)], ARR)
        a(f"v_and_b32 v{q0+4}, 31, v{vLANE}"); a(f"v_lshl_add_u32 v{q0+4}, v{q0+4}, 4, s{sT}")
        def total(b):
            for t in range(2, 10, 2): a(f"v_pk_add_f32 {v(b,2)}, {v(b,2)}, {v(b+t,2)}")
            a(f"v_add_f32 v{b}, v{b}, v{b+1}")
            tagword(b)
        if opt.get("nd0", 0): a(f"s_sleep {opt['nd0']}")
        a(f"global_load_dword v{B0+32}, v{q0+2}, {p(sGB)} sc1{NN}")
        a("L_n0l:")
        for t in range(10): a(f"global_load_dword v{B0+t}, v{q0}, {p(sGB)} offset:{t*256-2560} sc1{NN}")
        a(f"global_load_dword v{B0+30}, v{q0+4}, {p(sWS)} sc1")
        budget()
        a("s_waitcnt vmcnt(0)")
        untag(range(B0, B0+10)); tagcheck(q0+3, range(B0, B0+10))
        a("s_cbranch_vccnz L_n0l")
        a(f"v_xor_b32 v{B0+30}, s{sEP}, v{B0+30}"); a(f"v_lshlrev_b32 v{B0+31}, 3, v{B0+30}")
        a(f"v_cmp_ne_u32 vcc, 0, v{B0+31}")
        a("s_cbranch_vccnz L_n0l")
        total(B0)
        a(f"v_cmp_ne_u32 vcc, 0, v{B0+30}")
        a(f"s_cmp_{'ge' if opt.get('force_slow') else 'lg'}_u32 vcc_lo, 0")
        a(f"s_cselect_b32 s{sMODE}, 2, 1")
        istore(f"global_store_dword v{q0+2}, v{B0}, {p(sGB)}")
        stamp(1)
        for i in (1, 2): a(f"global_load_dword v{B0+32}, v{q0+2}, {p(sGB)} offset:{256*i} sc1{NN}")
        a("L_n1l:")
        for t in range(10): a(f"global_load_dword v{B0+10+t}, v{q0}, {p(sGB)} offset:{t*256} sc1{NN}")
        budget()
        a("s_waitcnt vmcnt(0)")
        untag(range(B0+10, B0+20)); tagcheck(q0+3, range(B0+10, B0+20))
        a("s_cbranch_vccnz L_n1l")
        total(B0+10)
        istore(f"global_store_dword v{q0+2}, v{B0+10}, {p(sGB)} offset:256", cmp=True)
        a("s_branch L_n0r")
        a("L_roleN:")
        br("lg", sL, 0, "L_exit")
        a("s_barrier")
        br("lt", sWAVE, 4, "L_next")
        a(f"s_lshl2_add_u32 s{sI}, s{sJP}, s{sW}")
        a(f"s_cmp_ge_u32 s{sI}, s{sNU}"); a("s_cbranch_scc1 L_next")
        lin(sT, [(sI, 2560)], CF); a(f"v_add_u32 v{q0+1}, s{sT}, v{vL4}")
        lin(sT, [(sI, 768)], RS + 512); a(f"v_add_u32 v{q0+2}, s{sT}, v{vL4}")
        a("L_n2l:")
        for t in range(10): a(f"global_load_dword v{B0+t}, v{q0+1}, {p(sGB)} offset:{t*256} sc1{NN}")
        budget()
        a("s_waitcnt vmcnt(0)")
        untag(range(B0, B0+10)); tagcheck(q0+3, range(B0, B0+10))
        a("s_cbranch_vccnz L_n2l")
        total(B0)
        istore(f"global_store_dword v{q0+2}, v{B0}, {p(sGB)}", cmp=True)
        a("s_branch L_next")
    cold.append(reduce0)
    if opt.get("fd", 70):
        a(f"s_bitcmp0_b32 {2 if WE > 8 else 3}, s{sROLE}"); a("s_cbranch_scc1 L_n0r"); a(f"s_sleep {opt.get('fd', 70)}")
    a("L_n0r:")
    br("lg", sWAVE, 2, "L_noarr")
    lin(sT, [(sGX, 512)], ARR)
    a(f"v_and_b32 v{vT+4}, 31, v{vLANE}"); a(f"v_lshl_add_u32 v{vT+4}, v{vT+4}, 4, s{sT}")
    a(f"v_lshlrev_b32 v{vT+5}, 4, v{vLANE}"); a(f"v_add_u32 v{vT+5}, {VOT}, v{vT+5}")
    br("lg", sROLE, 3, "L_bar")
    a(f"v_mov_b32 v{vT+5}, v{vT+4}")
    a("L_bar:")
    a(f"global_load_dword v{vT+8}, v{vT+4}, {p(sWS)} sc1")
    a(f"global_load_dword v{vT+10}, v{vT+5}, {p(sWS)} sc1")
    budget()
    a("s_waitcnt vmcnt(0)")
    a(f"v_xor_b32 v{vT+8}, s{sEP}, v{vT+8}")
    a(f"v_bitop3_b32 v{vT+12}, v{vT+10}, s{sEP}, v{vT+8} bitop3:0xbe")
    a(f"v_lshlrev_b32 v{vT+12}, 3, v{vT+12}")
    a(f"v_cmp_ne_u32 vcc, 0, v{vT+12}")
    a("s_cbranch_vccz L_bard")
    a(f"s_sleep 40")
    a("s_branch L_bar")
    a("L_bard:")
    a(f"v_cmp_ne_u32 vcc, 0, v{vT+8}")
    a(f"v_mov_b32 v{vT+9}, 1"); a(f"v_mov_b32 v{vT+3}, 0")
    a(f"s_cmp_{'ge' if opt.get('force_slow') else 'lg'}_u32 vcc_lo, 0")
    a("s_cbranch_scc1 L_spread")
    def spread():
        a("L_spread:")
        a("buffer_wbl2 sc1")
        a("s_waitcnt vmcnt(0)")
        a("buffer_inv sc1")
        a("s_waitcnt vmcnt(0)")
        lin(sT, [(sGX, 512), (sJ, 16)], ARR2)
        a(f"v_mov_b32 v{vT}, s{sT}"); a(f"v_mov_b32 v{vT+1}, s{sEP}")
        setexec(1)
        a(f"global_store_dword v{vT}, v{vT+1}, {p(sWS)} sc1")
        setexec(-1)
        a(f"v_add_u32 v{vT+4}, {ARR2-ARR}, v{vT+4}")
        a("L_bar2:")
        a("s_sleep 10")
        a(f"global_load_dword v{vT+8}, v{vT+4}, {p(sWS)} sc1")
        budget()
        a("s_waitcnt vmcnt(0)")
        a(f"v_xor_b32 v{vT+8}, s{sEP}, v{vT+8}")
        a(f"v_lshlrev_b32 v{vT+8}, 3, v{vT+8}")
        a(f"v_cmp_ne_u32 vcc, 0, v{vT+8}")
        a("s_cbranch_vccnz L_bar2")
        setexec(-1)
        a(f"v_mov_b32 v{vT+9}, 2")
        a("s_branch L_mode")
    cold.append(spread)
    a("L_mode:")
    a(f"v_lshlrev_b32 v{vT+11}, 1, v{vT+10}")
    a(f"v_cmp_gt_i32 vcc, 0, v{vT+10}")
    a(f"v_cmp_gt_i32 s[{sT}:{sT+1}], 0, v{vT+11}")
    a(f"s_and_b32 s{sT+2}, vcc_lo, 15"); a(f"s_mul_i32 s{sT+2}, s{sT+2}, 17")
    a(f"s_bcnt1_i32_b64 s{sT}, s[{sT}:{sT+1}]")
    a(f"s_cmp_{'lt' if opt.get('x_far') else 'ge'}_u32 s{sT}, 32"); a(f"s_cselect_b32 s{sT}, 15, 0xf0")
    a(f"s_xor_b32 s{sT}, s{sT}, s{sT+2}")
    a(f"v_lshl_or_b32 v{vT+9}, s{sT}, 8, v{vT+9}")
    a(f"ds_write_b32 v{vT+3}, v{vT+9} offset:{L_MODE}")
    a(f"s_mul_i32 s{sT}, s{sJ}, {EARLY//32}")
    a(f"v_lshl_add_u32 v{vT+15}, v{vLANE}, 7, s{sT}")
    setexec((1 << (EARLY//32 >> 7)) - 1)
    a(f"global_load_dword v{vT+16}, v{vT+15}, {p(sGB)} sc1 nt")
    setexec(-1)
    a("L_noarr:")
    br("ge", sWAVE, 2, "L_att")
    stamp(2)
    qpos()
    lin(sT, [(sHH, 1536), (sWAVE, 768)], RS)
    a(f"v_add_u32 v{q0}, s{sT}, v{vL4}")
    a("L_g0l:")
    a(f"global_load_dword v{B0}, v{q0}, {p(sGB)} sc1")
    budget()
    a("s_waitcnt vmcnt(0)")
    untag((B0,))
    a(f"v_and_b32 v{q0+3}, 0xff, v{B0}")
    a(f"v_cmp_ne_u32 vcc, 0, v{q0+3}")
    a("s_cbranch_vccz L_g0d")
    a("s_sleep 4")
    a("s_branch L_g0l")
    a("L_g0d:")
    stamp(3)
    a(f"v_mul_f32 v{B0}, {f2u(CSC):#x}, v{B0}")
    a(f"v_cvt_pk_bf16_f32 v{B0}, v{B0}, v{B0}")
    a(f"ds_write_b16 v{q0+2}, v{B0} offset:{L_QL}")
    a(f"s_lshl_b32 s{sT}, s{sWAVE}, 2"); a(f"v_mov_b32 v{q0}, s{sT}")
    a(f"ds_write_b32 v{q0}, v{q0} offset:{L_MODE+4}")
    def late_touch(wave=3):
        l = lab("nt")
        if wave is not None: br("lg", sWAVE, wave, l)
        lin(sT, [(sJP, 54*128)], EARLY)
        a(f"v_lshl_add_u32 v{vT+15}, v{vLANE}, 7, s{sT}")
        setexec((1 << 54) - 1)
        a(f"global_load_dword v{vT+17}, v{vT+15}, {p(sGB)} sc1 nt")
        setexec(-1)
        a(f"{l}:")

    WS_, WA_, SL_ = vT+12, vT+13, vT+16
    a("L_att:")
    for r in range(0, 8, 2): a(zero2(vDA+r))
    for e in range(8): a(zero2(vS+4*e))
    a(f"v_lshrrev_b32 v{vT+2}, 4, v{vLANE}"); a(f"v_lshlrev_b32 v{vT}, 6, v{vT+2}")
    a(f"v_and_b32 v{vT+1}, 3, v{vLANE}"); a(f"v_lshl_add_u32 v{vT}, v{vT+1}, 4, v{vT}")
    a(f"s_lshr_b32 s{sT+1}, s{sWAVE}, 1")
    a(f"s_and_b32 s{sT+2}, s{sJ}, 3")
    lin(sT, [(sL, 2048), (sT+1, 512), (sT+2, 128)], ST)
    a(f"v_lshl_add_u32 v{WS_}, v{vT+2}, 1, v{vLANE}"); a(f"v_and_b32 v{WS_}, 7, v{WS_}")
    a(f"v_and_or_b32 v{WS_}, v{vLANE}, 8, v{WS_}"); a(f"v_lshl_add_u32 v{WS_}, v{WS_}, 2, s{sT}")
    lin(sT, [(sL, 8192), (sWAVE, 1024)], OA)
    a(f"v_bfe_u32 v{WA_}, v{vLANE}, 2, 2"); a(f"v_lshl_add_u32 v{WA_}, v{WA_}, 8, v{vT}"); a(f"v_add_u32 v{WA_}, s{sT}, v{WA_}")
    if not opt.get("lm", 0):
        lin(sT, [(sWAVE, 4), (sL, 128)]); a(f"v_lshl_add_u32 v{vT+15}, v{vT+2}, 5, s{sT}")
    a(f"s_lshl_b32 s{sT}, s{sWAVE}, 9"); a(f"v_lshl_add_u32 v{vT+2}, v{vLANE}, 5, s{sT}")
    lin(sT, [(sWAVE, 4), (sL, 96)], L_STAT); a(f"v_mov_b32 v{vT+3}, s{sT}")
    a(f"v_mov_b32 v{vT+1}, 0")
    a(f"s_lshl_b32 s{sT}, s{sL}, 3"); a(f"s_sub_i32 s{sI}, s{sWAVE}, s{sT}")
    a(f"s_and_b32 s{sT}, s{sWAVE}, 6")
    br("lg", sT, 2, "L_nca")
    lin(sT, [(sL, 96)], L_STAT)
    a(f"v_and_b32 v{vT+9}, 28, v{vL4}"); a(f"v_add_u32 v{vT+8}, s{sT}, v{vT+9}")
    a(f"s_lshr_b32 s{sT+1}, s{sC}, 1"); a(f"s_and_b32 s{sT+2}, s{sC}, 1")
    lin(sT, [(sL, 8192), (sHH, 2048), (sT+1, 256), (sT+2, 32)], OA)
    a(f"v_add_u32 v{vT+9}, s{sT}, v{vT+9}")
    a(f"v_bfe_u32 v{vT+10}, v{vLANE}, 3, 2"); a(f"v_lshl_add_u32 v{vT+9}, v{vT+10}, 6, v{vT+9}")
    a(f"v_lshrrev_b32 v{vT+10}, 5, v{vLANE}"); a(f"v_lshl_add_u32 v{vT+9}, v{vT+10}, 10, v{vT+9}")
    lin(sT, [(sL, 2048), (sHH, 512), (sC, 4)], ST)
    a(f"v_lshl_add_u32 v{vT+10}, v{vT+10}, 5, s{sT}")
    a(f"v_and_b32 v{vT+11}, 3, v{vLANE}"); a(f"v_lshl_add_u32 v{vT+10}, v{vT+11}, 7, v{vT+10}")
    a(f"v_lshlrev_b32 v{vT+11}, 3, v{vLANE}")
    a("L_nca:")
    a("s_setprio 2"); br("ge", sWAVE, 4, "L_npr"); a("s_setprio 3"); a("L_npr:")
    br("lt", sI, 4, "L_e0")
    def early0():
        a("L_e0:")
        a(f"ds_read_b96 {v(vT+4,3)}, v{vT+1} offset:{L_MODE}")
        budget()
        a("s_waitcnt lgkmcnt(0)")
        a(f"v_max3_u32 v{vT+4}, v{vT+4}, v{vT+5}, v{vT+6}")
        a(f"v_cmp_eq_u32 vcc, -1, v{vT+4}")
        execs(sMQ)
        a("s_cbranch_vccz L_attc")
        setexec(-1)
        a("s_sleep 2")
        a("s_branch L_e0")
        a("L_e0b:")
        if WE < 16 and WM == 1:
            br("lg", sROLE, ROLE_W, "L_e0a")
            a(f"s_mov_b32 s{sI}, {16-WE}"); a(f"s_mov_b32 s{sT+6}, {WE}")
            worun(q0, sT+6)
            a("s_branch L_e0c")
            a("L_e0a:")
        a("s_barrier")
        if WE == 16:
            br("lg", sROLE, ROLE_W, "L_e0c")
            wfrag()
        a("L_e0c:")
        br("ge", sWAVE, 2, "L_e0r")
        lin(sT, [(sHH, 1536), (sWAVE, 768)], RS + 256)
        a(f"v_add_u32 v{q0+2}, s{sT}, v{vL4}")
        def cschk():
            untag((vCSQ,)); a(f"v_and_b32 v{q0+3}, 0xff, v{vCSQ}"); a(f"v_cmp_ne_u32 vcc, 0, v{q0+3}")
        ppoll([f"global_load_dword v{vCSQ}, v{q0+2}, {p(sGB)} sc1"], cschk)
        a("s_branch L_e0r")
    cold.insert(0, early0)
    align("a")
    br("eq", sL, 0, "L_attb")
    br("ge", sWAVE, 2, "L_nqs")
    qpos()
    lin(sT, [(sHH, 5120), (sWAVE, 2560)], GQ1)
    a(f"v_add_u32 v{q0}, s{sT}, v{vL4}")
    stat_addr(q0+1, [], SX + 1024)
    walk("q")
    a("L_nqs:")
    br("lg", sROLE, ROLE_Q, "L_qgo")
    br("eq", sWAVE, 7, "L_attb")
    lin(sT, [(sWAVE, 2560), (sJP, 256)], GQ1)
    a(f"v_add_u32 v{vT+14}, s{sT}, v{vL4}")
    a(zero2(DP))
    execs(sMQ)
    a("s_waitcnt lgkmcnt(0)")
    a("s_barrier")
    read4(vXA, L_XL)
    proj_mma()
    modecmp()
    pad("q")
    a(f"v_add_f32 v{DP}, v{DP}, v{DP+1}")
    istore(f"global_store_dword v{vT+14}, v{DP}, {p(sGB)}")
    stamp(14)
    a("L_qgo:")
    br("ge", sWAVE, 2, "L_attb")
    stamp(2)
    def qtail():
        a(f"v_cvt_pk_bf16_f32 v{GA}, v{GA}, v{GA}")
        a(f"ds_write_b16 v{q0+2}, v{GA} offset:{L_QL}")
    consume(q0, q0+1, vCSQ, CSC, 3, qtail, "q")
    a("L_attb:")
    execs(sMQ)
    a("s_waitcnt vmcnt(16) lgkmcnt(0)")
    a("s_barrier")
    a("L_attc:")
    read4(vT, L_QL)
    a(f"ds_read_b32 v{vT+4}, v{vT+1} offset:{L_MODE}")
    for T in range(4):
        lgkm(4 - T)
        if T == 0: stamp(5)
        a(f"v_smfmac_f32_16x16x64_bf16 {v(vDA,4)}, {v(vAT+4*T,4)}, {v(vK+16*T,8)}, v{vIA}")
        a(f"v_smfmac_f32_16x16x64_bf16 {v(vDB,4)}, {v(vAT+4*T,4)}, {v(vK+16*T+8,8)}, v{vIA}")
    a("s_waitcnt lgkmcnt(0)")
    a(f"v_readfirstlane_b32 s{sCLS}, v{vT+4}")
    a(f"s_and_b32 s{sMODE}, s{sCLS}, 3"); a(f"s_lshr_b32 s{sCLS}, s{sCLS}, 8")
    own, oth, mx = vT+4, vT+5, vT+6
    a(f"v_add_f32 v{oth}, v{vDA+2}, v{vDA+3}")
    a(f"v_add_f32 v{own}, v{vDB+2}, v{vDB+3}")
    execs(sMH)
    a(f"v_add_f32 v{oth}, v{vDB}, v{vDB+1}")
    a(f"v_add_f32 v{own}, v{vDA}, v{vDA+1}")
    setexec(-1)
    a(f"v_add_f32_dpp v{own}, v{oth}, v{own} row_ror:8 {DPPF}")
    a(f"v_max_f32_dpp v{mx}, v{own}, v{own} row_ror:8 {DPPF}")
    for s in (4, 2, 1): a(f"v_max_f32_dpp v{mx}, v{mx}, v{mx} row_ror:{s} {DPPF}")
    a(f"v_max_f32_dpp v{mx}, v{mx}, v{mx} row_bcast:15 row_mask:0xa bank_mask:0xf")
    a(f"v_max_f32_dpp v{mx}, v{mx}, v{mx} row_bcast:31 row_mask:0xc bank_mask:0xf")
    a(f"v_readlane_b32 s{sM}, v{mx}, 63")
    a(f"v_subrev_f32 v{own}, s{sM}, v{own}")
    a(f"v_exp_f32 v{own}, v{own}")
    a(f"v_mov_b32 v{mx}, s{sM}")
    a(f"ds_write_b32 v{vT+3}, v{mx}")
    a(f"v_mov_b32_dpp v{oth}, v{own} row_shl:2 {DPPF} bound_ctrl:0")
    a(f"v_cvt_pk_bf16_f32 v{vQ}, v{own}, v{oth}")
    a(f"s_cmp_lg_u32 s{sRAW}, 0")
    for m in range(1, 4):
        a(f"v_mov_b32_dpp v{vQ+m}, v{vQ} row_shl:{4*m} {DPPF} bound_ctrl:0")
    stamp(6)
    a("s_cbranch_scc1 L_perm")
    a("L_pv:")
    stamp(7)
    LM = opt.get("lm", 0)
    if LM:
        a(f"v_mfma_f32_16x16x32_bf16 {v(vS+32,4)}, {v(vQ,4)}, {v(vONE,4)}, 0")
        for e in range(8):
            a(f"v_smfmac_f32_16x16x64_bf16 {v(vS+4*e,4)}, {v(vQ,4)}, {v(vV+8*e,8)}, v{vIP}")
            if e in (0, 1): a("s_nop 1")
            if e == 2: a(f"v_add_f32 v{mx+1}, v{vS+32}, v{vS+33}")
            if e == 3: a(f"v_readfirstlane_b32 s{sT}, v{mx+1}"); a(f"v_add_f32 v{vDA}, v{vS}, v{vS+1}")
            if e == 4:
                a(f"v_mov_b32 v{mx+1}, s{sT}")
                a(f"ds_write_b32 v{vT+3}, v{mx+1} offset:32")
            if e == 5: a(f"v_add_f32 v{vDA+1}, v{vS+4}, v{vS+5}"); a(f"v_add_f32 v{vDA+2}, v{vS+8}, v{vS+9}")
            if e == 6: a(f"v_add_f32 v{vDA+3}, v{vS+12}, v{vS+13}")
    else:
        for e in range(8):
            a(f"v_smfmac_f32_16x16x64_bf16 {v(vS+4*e,4)}, {v(vQ,4)}, {v(vV+8*e,8)}, v{vIP}")
            if e < 4:
                src = own if e == 0 else mx+1
                a(f"v_add_f32_dpp v{mx+1}, v{src}, v{src} row_ror:{8 >> e} {DPPF}")
                if e < 3: a("s_nop 0")
            if e == 3: a(f"ds_write_b32 v{vT+15}, v{mx+1} offset:{L_L4}")
            if e == 4: a(f"v_add_f32 v{vDA}, v{vS}, v{vS+1}"); a(f"v_add_f32 v{vDA+1}, v{vS+4}, v{vS+5}")
            if e == 5: a(f"v_add_f32 v{vDA+2}, v{vS+8}, v{vS+9}")
            if e == 6: a(f"v_add_f32 v{vDA+3}, v{vS+12}, v{vS+13}")
    setexec(0xffff)
    a(f"ds_write_b128 v{vT+2}, {v(vDA,4)} offset:{L_OP}")
    for e in range(4, 8): a(f"v_add_f32 v{vDA+e}, v{vS+4*e}, v{vS+4*e+1}")
    a(f"ds_write_b128 v{vT+2}, {v(vDB,4)} offset:{L_OP+16}")
    a(f"ds_write_b32 v{vT+3}, v{vONE} offset:64")
    setexec(-1)
    a("s_setprio 0")
    stamp(8)
    br("lt", sI, 4, "L_e0b")
    a("L_e0r:")
    if opt.get("x_stop"): a("s_branch L_exit")
    br("eq", sWAVE, 2, "L_cstat0")
    br("lg", sWAVE, 3, "L_nocomb")
    a("s_setprio 1")
    C = vS
    lsteps = ["quad_perm:[1,0,3,2]", "quad_perm:[2,3,0,1]", "row_half_mirror"]
    wst = [f"global_load_dword v{SL_}, v{WS_}, {p(sGB)} sc1"]
    def cstat():
        a("L_cstat0:")
        a("s_setprio 1")
        if not LM:
            a(f"s_lshl_b32 s{sT}, s{sL}, 7"); a(f"v_and_b32 v{vT+11}, 124, v{vL4}"); a(f"v_add_u32 v{vT+11}, s{sT}, v{vT+11}")
        a("L_cstat:")
        if LM:
            a(f"ds_read2_b32 {v(C+16,2)}, v{vT+8} offset1:8")
            budget()
            a("s_waitcnt lgkmcnt(0)")
            a(f"v_cmp_eq_u32 vcc, -1, v{C+17}")
            a(f"v_max_f32_dpp v{C+18}, v{C+16}, v{C+16} {lsteps[0]} {DPPF}")
            a("s_cbranch_vccnz L_cstat")
            for s_ in lsteps[1:]: a(f"v_max_f32_dpp v{C+18}, v{C+18}, v{C+18} {s_} {DPPF}")
            a(f"v_sub_f32 v{C+16}, v{C+16}, v{C+18}")
            a(f"v_exp_f32 v{C+16}, v{C+16}")
            modecmp()
            a(f"v_mul_f32 v{C+17}, v{C+16}, v{C+17}")
            for s_ in lsteps[:2]: a(f"v_add_f32_dpp v{C+17}, v{C+17}, v{C+17} {s_} {DPPF}")
            a(f"v_add_f32_dpp v{C+18}, v{C+17}, v{C+17} {lsteps[2]} row_mask:0xc bank_mask:0xf")
        else:
            a(f"ds_read_b32 v{C+17}, v{vT+11} offset:{L_L4}")
            a(f"ds_read_b32 v{C+16}, v{vT+8}")
            budget()
            a("s_waitcnt lgkmcnt(0)")
            a(f"v_cmp_eq_u32 vcc, -1, v{C+17}")
            a(f"v_max_f32_dpp v{C+18}, v{C+16}, v{C+16} {lsteps[0]} {DPPF}")
            a(f"v_add_f32_dpp v{C+17}, v{C+17}, v{C+17} row_ror:8 {DPPF}")
            a("s_cbranch_vccnz L_cstat")
            a(f"v_max_f32_dpp v{C+18}, v{C+18}, v{C+18} {lsteps[1]} {DPPF}")
            a(f"v_mov_b32 v{C+19}, v{C+17}")
            modecmp()
            a(f"v_max_f32_dpp v{C+18}, v{C+18}, v{C+18} {lsteps[2]} {DPPF}")
            a(f"v_permlane16_swap_b32 v{C+17}, v{C+19}")
            a(f"v_sub_f32 v{C+16}, v{C+16}, v{C+18}")
            a(f"v_exp_f32 v{C+16}, v{C+16}")
            a(f"v_add_f32 v{C+17}, v{C+17}, v{C+19}")
            a(f"v_mul_f32 v{C+17}, v{C+16}, v{C+17}")
            for s_ in lsteps[:2]: a(f"v_add_f32_dpp v{C+17}, v{C+17}, v{C+17} {s_} {DPPF}")
            a(f"v_add_f32_dpp v{C+18}, v{C+17}, v{C+17} {lsteps[2]} row_mask:0xc bank_mask:0xf")
        setexec(0x0000000f0000000f)
        istore(f"global_store_dword v{vT+10}, v{C+18}, {p(sGB)}")
        if opt.get('fine'): stamp(6)
        setexec(-1)
        a("s_branch L_nocomb")
    cold.insert(0, cstat)
    a("L_cm:")
    a(f"ds_read_b32 v{C+16}, v{vT+8}")
    a(f"ds_read_b32 v{C+19}, v{vT+8} offset:64")
    for w in range(4): a(f"ds_read_b64 {v(C+2*w,2)}, v{vT+11} offset:{L_OP + 512*w}")
    budget()
    a("s_waitcnt lgkmcnt(0)")
    a(f"v_cmp_eq_u32 s[{sT}:{sT+1}], -1, v{C+19}")
    a(f"v_cmp_eq_u32 vcc, -1, v{C+16}")
    a(f"s_and_b32 s{sT}, s{sT}, 15")
    a(f"s_or_b32 s{sT}, s{sT}, vcc_lo")
    a("s_cbranch_scc1 L_cm")
    for i, s in enumerate(lsteps): a(f"v_max_f32_dpp v{C+18}, v{C+18 if i else C+16}, v{C+18 if i else C+16} {s} {DPPF}")
    a(f"v_sub_f32 v{C+16}, v{C+16}, v{C+18}")
    a(f"v_exp_f32 v{C+16}, v{C+16}")
    for w in range(8): a(f"v_mov_b32_dpp v{C+20+w}, v{C+16} row_newbcast:{w} {DPPF}")
    def scaled(dst, w, acc):
        sel = f"op_sel:[0,{w&1},0] op_sel_hi:[1,{w&1},1]"
        a(f"v_pk_fma_f32 {v(dst,2)}, {v(C+2*w,2)}, {v(C+20+(w&6),2)}, {acc} {sel}")
    scaled(C, 0, "0")
    for w in range(1, 4): scaled(C, w, v(C,2))
    a("L_cs:")
    a(f"ds_read_b32 v{C+19}, v{vT+8} offset:64")
    for w in range(4, 8): a(f"ds_read_b64 {v(C+2*w,2)}, v{vT+11} offset:{L_OP + 512*w}")
    budget()
    modecmp()
    lgkm(4)
    a(f"v_cmp_eq_u32 vcc, -1, v{C+19}")
    a("s_cbranch_vccnz L_cs")
    for w in range(4, 8):
        lgkm(7 - w)
        scaled(C, w, v(C,2))
    a(wst[0])
    a(f"v_cvt_pk_bf16_f32 v{C}, v{C}, v{C+1}")
    a(f"v_min_u32 v{C+4}, -2, v{C}")
    istore(f"global_store_dword v{vT+9}, v{C+4}, {p(sGB)}")
    stamp(9)
    if lite:
        a("s_mov_b32 s70, s68"); a("s_memrealtime s[68:69]")
    if WE < 16: br("eq", sL, 0, "L_nocomb")
    br("eq", sROLE, ROLE_W, "L_w3")
    a("L_nocomb:")
    br("eq", sROLE, ROLE_F, "L_roleF")
    br("eq", sROLE, ROLE_Q, "L_roleQ")
    br("lg", sROLE, ROLE_W, "L_roleN")

    SM = vS + 20
    def wfrag():
        lin(sT, [(sWAVE, 8192)], L_WA)
        a(f"v_lshlrev_b32 v{vT+4}, 7, v{vROWL}")
        a(f"v_bfe_u32 v{vT+5}, v{vROWL}, 2, 2"); a(f"v_lshl_add_u32 v{vT+4}, v{vT+5}, 5, v{vT+4}")
        a(f"v_and_b32 v{vT+5}, 3, v{vLANE}"); a(f"v_lshl_add_u32 v{vT+4}, v{vT+5}, 3, v{vT+4}")
        a(f"v_add_u32 v{vT+4}, s{sT}, v{vT+4}")
        tr4(vT+4, 4096, 256)
    a(f"s_cmp_ge_i32 s{sI}, {4 if WE == 16 else 0}")
    a("s_cbranch_scc1 L_w0")
    def w_first():
        a("L_w0:")
        if WE < 16:
            if WM == 2:
                assert WE % 4 == 0
                a(f"s_mov_b32 s{sI}, {(16-WE)//2}"); a(f"s_lshr_b32 s{sT+6}, s{sWAVE}, 2"); lin(sT+6, [(sT+6, (16-WE)//2)], WE)
                worun(vT+4, sT+6)
            a(wst[0])
            a("s_waitcnt vmcnt(0)")
            a("s_barrier")
            stamp(12)
            a(f"v_cmp_eq_u32 vcc, -1, v{SL_}")
            a("s_cbranch_vccnz L_w0s")
            a(aload); wfrag(); a("s_branch L_whr")
            a("L_w0s:")
        wfrag(); a("s_branch L_wos")
    cold.insert(0, w_first)
    a("L_wos:")
    align("w")
    ppoll(wst, lambda: a(f"v_cmp_eq_u32 vcc, -1, v{SL_}"), PD=opt.get('pdw', 1))
    if opt.get('fine'): stamp(1)
    aload = f"global_load_dwordx4 {v(vS,4)}, v{WA_}, {p(sGB)} sc1"
    def weights():
        for i, s in enumerate(lsteps): a(f"v_max_f32_dpp v{SM+2}, v{SM+2 if i else SL_}, v{SM+2 if i else SL_} {s} {DPPF}")
        a(f"v_sub_f32 v{SM}, v{SL_}, v{SM+2}")
        a(f"v_exp_f32 v{SM}, v{SM}")
        a(f"v_mul_f32_dpp v{SM+1}, v{SL_}, v{SM} row_ror:8 {DPPF}")
        for s in lsteps: a(f"v_add_f32_dpp v{SM+1}, v{SM+1}, v{SM+1} {s} {DPPF}")
        a(f"v_rcp_f32 v{SM+1}, v{SM+1}")
        a(f"v_mul_f32 v{SM}, v{SM}, v{SM+1}")
        a(f"v_mov_b32_dpp v{SM+2}, v{SM} row_newbcast:0 {DPPF}")
        a(f"v_mov_b32_dpp v{SM+3}, v{SM} row_newbcast:1 {DPPF}")
    def wsetup():
        a(f"v_lshlrev_b32 v{vT+6}, 4, v{vLANE}")
        a(f"s_lshr_b32 s{sT+1}, s{sWAVE}, 2")
        lin(sT, [(sT+1, 1024), (sW, 4)])
        a(f"v_add_u32 v{vT+5}, s{sT}, v{vT+6}")
        a(f"s_sub_u32 s{sT+1}, s{sGX}, s{sWAVE}"); a(f"s_and_b32 s{sT+1}, s{sT+1}, 7")
    def wave3():
        a("L_w3:")
        a("s_waitcnt vmcnt(1)")
        a(f"v_cmp_eq_u32 vcc, -1, v{SL_}")
        a("s_cbranch_vccz L_wgo")
        a("s_branch L_wos")
    cold.insert(0, wave3)
    if opt.get("wdly", 0): a(f"s_nop {opt['wdly']-1}")
    a("L_wgo:")
    a(aload)
    a("L_whr:")
    weights()
    wsetup()
    a("L_woc:")
    for r in range(0, 16, 2): a(zero2(D4+r))
    a(f"s_waitcnt vmcnt(0) lgkmcnt(0)")
    stamp(10)
    mma4(vS)
    sentinel(SM, range(vS, vS+4))
    a("s_cbranch_vccnz L_wor")
    def w_retry():
        a("L_wor:")
        a(aload)
        count(3)
        budget()
        a("s_branch L_woc")
    cold.insert(0, w_retry)
    for t in range(4):
        a(f"v_pk_mul_f32 {v(D4+4*t,2)}, {v(D4+4*t,2)}, {v(SM+2,2)} op_sel_hi:[1,0]")
    for t in range(4):
        a(f"v_pk_fma_f32 {v(D4+4*t,2)}, {v(D4+4*t+2,2)}, {v(SM+2,2)}, {v(D4+4*t,2)} op_sel:[0,1,0]")
    for t in (0, 2, 1, 3): a(f"v_add_f32 v{D4+4*t}, v{D4+4*t}, v{D4+4*t+1}")
    a(f"v_permlane32_swap_b32 v{D4}, v{D4+8}")
    a(f"v_add_f32 v{D4}, v{D4}, v{D4+8}")
    a(f"v_permlane32_swap_b32 v{D4+4}, v{D4+12}")
    a(f"v_add_f32 v{D4+4}, v{D4+4}, v{D4+12}")
    a(f"v_lshl_add_u32 v{vT+4}, s{sT+1}, 8, v{vL4}")
    a(f"v_permlane16_swap_b32 v{D4}, v{D4+4}")
    a(f"v_add_f32 v{D4}, v{D4}, v{D4+4}")
    a(f"ds_write_b32 v{vT+5}, v{D4} offset:{L_PW}")
    pbaddr(sT, sWAVE, 0)
    a(f"s_cmp_eq_u32 s{sT+1}, 0")
    a("s_waitcnt lgkmcnt(0)")
    a("s_barrier")
    RW = vS + 24
    a(f"ds_read_b128 {v(RW,4)}, v{vT+6} offset:{L_PW}")
    a(f"ds_read_b128 {v(RW+4,4)}, v{vT+6} offset:{L_PW+1024}")
    a("s_cbranch_scc1 L_wown")
    a(f"v_add_u32 v{vT+7}, s{sT}, v{vT+4}")
    def wsum():
        lgkm(1)
        a(f"v_pk_add_f32 {v(RW,2)}, {v(RW,2)}, {v(RW+2,2)}")
        a("s_waitcnt lgkmcnt(0)")
        a(f"v_pk_add_f32 {v(RW+4,2)}, {v(RW+4,2)}, {v(RW+6,2)}")
        a(f"v_pk_add_f32 {v(RW,2)}, {v(RW,2)}, {v(RW+4,2)}")
        a(f"v_add_f32 v{RW}, v{RW}, v{RW+1}")
        tagword(RW)
    if opt.get("c0", 3) >= 2: a(f"s_cmp_eq_u32 s{sL}, 0")
    wsum()
    if opt.get("c0", 3) >= 2: a("s_cbranch_scc1 L_wc0")
    for c in range(NC):
        if c == NC - 1: a("L_wc0:")
        a(f"global_store_dword v{vT+7}, v{RW}, {p(sPB[c])} sc1")
        if c == 0: stamp(11)
    br("lg", sL, 0, "L_exit")
    if opt.get("warm", 1):
        a(f"s_sleep {opt.get('ws', 20)}")
        a(f"v_mov_b32 v{vT+5}, 0")
        for k in range(1, 4):
            if k == 2: a(f"s_sleep {opt.get('ws2', 16)}")
            if k == 3:
                a(f"s_cmp_lg_u32 s{sWAVE}, s{sYF}"); a("s_cbranch_scc1 L_next")
                pblast(sT); a(f"v_add_u32 v{vT+7}, s{sT}, v{vT+4}")
            else: a(f"v_add_u32 v{vT+7}, {40*16384}, v{vT+7}")
            if opt.get("wl", 1): setexec({1: 0x0001000100010001, 2: 0x0000000100000001}[opt.get("wl", 1)])
            for c in range(opt.get("wc", NC) if opt.get("wk", 14) >> k & 1 else 0): a(f"global_atomic_add v{vT+7}, v{vT+5}, {p(sPB[c])}")
            if opt.get("wl", 1): setexec(-1)
    a("s_branch L_next")
    a("L_wown:")
    lin(sT, [(sL, 2*2560), (sJP, 256)], PO)
    a(f"v_add_u32 v{vT+7}, s{sT}, v{vL4}")
    modecmp()
    wsum()
    istore(f"global_store_dword v{vT+7}, v{RW}, {p(sGB)}")
    stamp(11)
    if opt.get("lt", 1):
        br("lg", sL, 0, "L_exit")
        a("s_sleep 1")
        late_touch(None)
        a("s_waitcnt vmcnt(0)")
    a("s_branch L_next")

    a("L_roleF:")
    if FE < 16:
        assert FE % 2 == 0
        br("lg", sL, 0, "L_fnd")
        a(f"s_mov_b32 s{sI}, {(16-FE)//2}"); a(f"s_lshr_b32 s{sT+6}, s{sWAVE}, 2"); lin(sT+6, [(sT+6, (16-FE)//2)], FE)
        w13run(sT+6)
        a("s_waitcnt vmcnt(0)")
        a("s_barrier")
        stamp(10)
        a("L_fnd:")
    br("eq", sWAVE, 7, "L_fred")
    a(f"s_cmp_ge_u32 s{sWAVE}, s{sNU}"); a("s_cbranch_scc1 L_fidle")
    lin(sT+4, [(sWAVE, 2560), (sJP, 256)])
    br("eq", sL, 0, "L_f0")
    def f_first():
        a("L_f0:")
        if FE == 16: a(f"s_sleep {opt.get('fs', 4)}")
        trf(sWAVE)
        for t in range(4): a(zero2(D4+4*t))
        a(f"s_add_u32 s{sT}, s{sT+4}, {CF}"); a(f"v_add_u32 v{vT+2}, s{sT}, v{vL4}")
        a("s_waitcnt lgkmcnt(0)")
        mma4(vONE)
        modecmp()
        for t in range(4):
            if t: a(GMASK[t-1])
            a(f"v_add_f32 v{vS+20}, v{D4+4*t}, v{D4+4*t+1}")
        setexec(-1)
        tagword(vS+20)
        istore(f"global_store_dword v{vT+2}, v{vS+20}, {p(sGB)}")
        a("s_branch L_f1")
        a("L_fidle:")
        a("s_barrier")
        a("s_branch L_next")
    cold.insert(0, f_first)
    a("L_f1:")
    align("f")
    lin(sT, [(sL, 17920), (sT+4, 1)], GF)
    a(f"v_add_u32 v{vT+2}, s{sT}, v{vL4}")
    a(zero2(DP))
    execs(sMQ)
    a("s_barrier")
    read4(vXA, L_XL)
    proj_mma()
    modecmp()
    a(f"v_add_f32 v{DP}, v{DP}, v{DP+1}")
    istore(f"global_store_dword v{vT+2}, v{DP}, {p(sGB)}")
    stamp(13)
    a("s_branch L_next")
    a("L_fred:")
    align("r")
    so, _ = red(0, 11)
    for o in so: a(o)
    red_publish_stats()
    istore(f"global_store_dword v{vT+12}, v{R+14}, {p(sGB)}")
    a("s_waitcnt vmcnt(2)")
    a("s_branch L_next")

    a("L_roleQ:")
    br("eq", sL, 0, "L_q0")
    def q_first():
        a("L_q0:")
        lin(sT, [(sWAVE, 768)], RS + 512)
        a(f"v_add_u32 v{vT+17}, s{sT}, v{vL4}")
        a(f"s_mov_b32 s{sI}, 4"); lin(sT+2, [(sWAVE, 4)], 4*W2E)
        w2run(sT+2, vT)
        a("s_barrier")
        a(f"s_cmp_ge_u32 s{sWAVE}, s{sNU}"); a("s_cbranch_scc1 L_q0b")
        a(f"s_add_u32 s{sT}, s{sWAVE}, {W2E}"); a(f"s_cmp_ge_u32 s{sT}, s{sNU}"); a("s_cbranch_scc1 L_rq1")
        dma_run(vT, p(sW2), 1024, 10240, 64)
        a("s_branch L_rq1")
        a("L_q0b:")
        br("eq", sWAVE, 7, "L_rq1")
        a("s_barrier")
        a("s_branch L_rq1")
        a("L_w2f:")
        a(f"global_load_dword v{vCSF}, v{vT+17}, {p(sGB)} sc1")
        execs(sMS)
        a(f"global_load_dword v{G(14)}, v{vT+1}, {p(sGB)} sc1")
        setexec(-1)
        a("s_waitcnt vmcnt(0)")
        a("s_barrier")
        stamp(14)
        br("ge", sWAVE, 4, "L_w2c")
        w2frag()
        a("L_w2c:")
        untag((vCSF,)); a(f"v_and_b32 v{vT+16}, 0xff, v{vCSF}"); a(f"v_cmp_ne_u32 vcc, 0, v{vT+16}")
        a("s_cbranch_vccnz L_w2d")
        a(f"v_cmp_eq_u32 vcc, -1, v{G(14)}")
        a("s_cbranch_vccz L_hgo")
        a("s_branch L_w2r")
        a("L_w2d:")
        a(f"global_load_dword v{vCSF}, v{vT+17}, {p(sGB)} sc1")
        budget()
        a("s_waitcnt vmcnt(0)")
        a("s_branch L_w2c")
    cold.insert(0, q_first)
    a("L_rq1:")
    H = vS
    br("eq", sWAVE, 7, "L_q7")
    br("ge", sWAVE, 4, "L_now2")
    a(f"v_lshlrev_b32 v{vT+10}, 7, v{vROWL}")
    a(f"v_bfe_u32 v{vT+1}, v{vROWL}, 2, 2"); a(f"v_xor_b32 v{vT+1}, s{sW}, v{vT+1}"); a(f"v_lshl_add_u32 v{vT+10}, v{vT+1}, 5, v{vT+10}")
    a(f"v_and_b32 v{vT+1}, 3, v{vLANE}"); a(f"v_lshl_add_u32 v{vT+10}, v{vT+1}, 3, v{vT+10}")
    a(f"v_add_u32 v{vT+10}, {L_W2}, v{vT+10}")
    def w2frag():
        for st in range(4):
            for hf in range(2):
                for eh in range(2):
                    a(f"ds_read_b64_tr_b16 {v(vW + 8*st + 4*hf + 2*eh,2)}, v{vT+10} offset:{st*8192 + hf*4096 + eh*256}")
    br("eq", sL, 0, "L_nw2f")
    w2frag()
    a("L_nw2f:")
    a(zero2(DP))
    a(f"v_and_b32 v{vT+3}, 60, v{vL4}")
    lin(sT, [(sJP, 16384), (sW, 64)], PB + 40*16384)
    a(f"v_add_u32 v{vT+5}, s{sT}, v{vT+3}")
    a(f"v_lshrrev_b32 v{vT+4}, 4, v{vLANE}")
    for i, top in enumerate((7, 3)):
        a(f"v_sub_u32 v{vT+8}, {top}, v{vT+4}")
        a(f"v_sub_u32 v{vT+9}, s{sGX}, v{vT+8}"); a(f"v_and_b32 v{vT+9}, 7, v{vT+9}")
        a(f"v_lshl_add_u32 v{vT+8}, v{vT+8}, 8, v{vT+5}")
        a(f"v_bfe_u32 v{vT+11}, s{sCLS}, v{vT+9}, 1"); a(f"v_lshl_add_u32 v{vT+8}, v{vT+11}, 13, v{vT+8}")
        a(f"v_and_b32 v{vT+9}, 3, v{vT+9}"); a(f"v_mul_u32_u24 v{vT+9}, 163840, v{vT+9}")
        a(f"v_add_u32 v{vT+6+i}, v{vT+8}, v{vT+9}")
    pblast(sT)
    a(f"s_sub_u32 s{sT+1}, s{sGX}, s{sYF}"); a(f"s_and_b32 s{sT+1}, s{sT+1}, 7")
    lin(sT, [(sT, 1), (sT+1, 256), (sW, 64)])
    a(f"v_add_u32 v{vT+5}, s{sT}, v{vT+3}")
    lin(sT, [(sL, 2*2560), (sJP, 256), (sW, 64)], PO + 2560)
    a(f"v_add_u32 v{vT+3}, s{sT}, v{vT+3}")
    a("L_now2:")
    if opt.get("qp"): a(f"s_setprio {opt['qp']}")
    align("h")
    a(f"s_cmp_ge_u32 s{sWAVE}, s{sNU}"); a("s_cbranch_scc1 L_hb")
    lin(sT, [(sL, 17920), (sWAVE, 2560)], GF)
    a(f"v_add_u32 v{vT}, s{sT}, v{vL4}")
    stat_addr(vT+1, [(sL, 2048)], SX)
    a(f"v_lshrrev_b32 v{vT+2}, 5, v{vLANE}"); a(f"v_mul_u32_u24 v{vT+2}, 448, v{vT+2}")
    a(f"v_lshl_add_u32 v{vT+2}, v{vLANE}, 1, v{vT+2}")
    a(f"s_lshl_b32 s{sT}, s{sWAVE}, 6"); a(f"v_add_u32 v{vT+2}, s{sT}, v{vT+2}")
    def htail():
        a(f"v_mov_b32 v{GA+1}, v{GA}")
        a(f"v_mul_f32 v{GA+2}, {f2u(-LOG2E):#x}, v{GA}")
        a(f"v_exp_f32 v{GA+2}, v{GA+2}")
        a(f"v_permlane32_swap_b32 v{GA}, v{GA+1}")
        a(f"v_add_f32 v{GA+2}, 1.0, v{GA+2}")
        a(f"v_rcp_f32 v{GA+2}, v{GA+2}")
        a(f"v_mul_f32 v{GA}, v{GA}, v{GA+1}")
        a(f"v_mul_f32 v{GA}, v{GA}, v{GA+2}")
        a(f"v_cvt_pk_bf16_f32 v{GA}, v{GA}, v{GA}")
        a(f"ds_write_b16 v{vT+2}, v{GA} offset:{L_HL}")
    br("eq", sL, 0, "L_w2f"); a("L_w2r:")
    consume(vT, vT+1, vCSF, None, 10, htail, mid="L_hgo")
    a("L_hb:")
    a(f"s_cmp_ge_u32 s{sWAVE}, 4")
    a("s_waitcnt lgkmcnt(0)")
    a("s_barrier")
    a("s_cbranch_scc1 L_nopush")
    for st in range(4): a(f"ds_read_b128 {v(H+4*st,4)}, v{vXA} offset:{L_HL + 128*st}")
    for st in range(4):
        lgkm(3 - st)
        a(f"v_smfmac_f32_16x16x64_bf16 {v(DP,4)}, {v(H+4*st,4)}, {v(vW+8*st,8)}, v{vIA}")
    br("lg", sL, 0, "L_push1")
    modecmp()
    a(f"v_add_f32 v{DP}, v{DP}, v{DP+1}")
    a(f"v_bfi_b32 v{DP+2}, v{vFF}, s{sTAG}, v{DP}")
    for c in range(NC):
        a(f"global_store_dword v{vT+6}, v{DP+2}, {p(sPB[c])} sc1")
        a("s_mov_b32 exec_hi, 0xffff")
        a(f"global_store_dword v{vT+7}, v{DP+2}, {p(sPB[c])} sc1")
        if c == 0:
            setexec(0xffff)
            istore(f"global_store_dword v{vT+3}, v{DP+2}, {p(sGB)}")
            stamp(11)
        setexec(-1)
    a("L_nopush:")
    br("lg", sL, 0, "L_exit")
    trq(sWAVE)
    a("L_next:")
    br("lg", sL, 0, "L_exit")
    bank()
    a(f"s_mov_b32 s{sL}, 1"); a(f"s_mov_b32 s{sRAW}, 0")
    a("s_branch L_att")
    a("L_q7:")
    br("lg", sL, 0, "L_last")
    trq(sWAVE)
    lin(sT, [(sJP, 256)], GQ1 + 7*2560)
    a(f"v_add_u32 v{vT+2}, s{sT}, v{vL4}")
    a(zero2(DP))
    a("L_qred:")
    align("q")
    so, lmore = red(1, 12)
    read4(vXA, L_XL)
    for o in so: a(o)
    red_publish_stats()
    proj_mma()
    a(f"v_add_f32 v{DP}, v{DP}, v{DP+1}")
    istore(f"global_store_dword v{vT+2}, v{DP}, {p(sGB)}")
    stamp(13)
    istore(f"global_store_dword v{vT+12}, v{R+14}, {p(sGB)}")
    a("s_waitcnt vmcnt(3)")
    a("s_branch L_next")
    a("L_push1:")
    setexec(0xffff)
    a(f"s_cmp_eq_u32 s{sGX}, s{sYF}"); a("s_cbranch_scc1 L_push0")
    a(f"v_add_f32 v{DP}, v{DP}, v{DP+1}")
    tagword(DP)
    for c in range(NC):
        a(f"global_store_dword v{vT+5}, v{DP}, {p(sPB[c])} sc1")
        if c == 0: stamp(11)
    a("s_branch L_exit")
    a("L_push0:")
    modecmp()
    a(f"v_add_f32 v{DP}, v{DP}, v{DP+1}")
    tagword(DP)
    istore(f"global_store_dword v{vT+3}, v{DP}, {p(sGB)}")
    stamp(11)
    a("s_branch L_exit")
    a("L_last:")
    a(f"s_cmp_lg_u32 s{sGX}, s{sYF}"); a("s_cbranch_scc1 L_exit")
    a(f"s_lshl_b32 s{sT}, s{sJP}, 7"); a(f"v_lshl_add_u32 v{vT+2}, v{vLANE}, 1, s{sT}")
    br("lg", sJP, 0, "L_qred")
    a(f"v_mov_b32 v{vT}, {EPO}"); a(f"v_mov_b32 v{vT+1}, s{sTAG}")
    setexec(1)
    a(f"global_store_dword v{vT}, v{vT+1}, {p(sWS)}")
    setexec(-1)
    a("s_branch L_qred")
    a("L_final:")
    tagcheck(R+15, range(R, R+8))
    a(f"s_cbranch_vccnz {lmore}")
    a(f"global_store_short v{vT+2}, v{R+11}, {p(sOUT)}{['', ' sc1', ' nt', ' sc0 sc1'][opt.get('ofl', 0)]}")
    stamp(12)
    if opt.get("x_pad"):
        br("lg", sJP, 0, "L_exit")
        a("s_memrealtime s[62:63]"); a("s_waitcnt lgkmcnt(0)")
        a("s_sub_u32 s62, s62, s60"); a(f"s_mul_i32 s62, s62, {4 if opt.get('x_at') else 0}"); a(f"s_add_u32 s62, s62, {opt['x_pad']*100}")
        a("L_xp:")
        a("s_memrealtime s[64:65]"); a("s_waitcnt lgkmcnt(0)")
        a("s_sub_u32 s64, s64, s60"); a("s_cmp_lt_u32 s64, s62"); a("s_cbranch_scc1 L_xp")
    a("s_branch L_exit")

    a("L_late:")
    if opt.get("x_first"): a("s_branch L_exit")
    a("s_setprio 3")
    entry2()
    FX = vS + 8
    a(f"v_lshlrev_b32 v{vL4}, 2, v{vLANE}")
    epoch_load()
    br("lg", sROLE, ROLE_Q, "L_nox")
    a(f"v_lshlrev_b32 v{vT}, 4, v{vLANE}")
    a(f"global_load_dwordx4 {v(FX,4)}, v{vT}, {p(sX_)}")
    a(f"global_load_dword v{FX+4}, v{vL4}, {p(sX_)} offset:1024")
    a(f"s_lshl_b32 s{sT}, s{sJP}, 7"); a(f"v_and_b32 v{vT}, 16, v{vT}"); a(f"v_lshl_add_u32 v{vT}, v{vG}, 5, v{vT}"); a(f"v_add_u32 v{vT}, s{sT}, v{vT}")
    a(f"global_load_dwordx4 {v(vS+4,4)}, v{vT}, {p(sX_)}")
    a("L_nox:")
    a(f"v_mov_b32 v{vDA}, -1"); a(f"v_mov_b32 v{vT+1}, 0")
    a(f"ds_write_b32 v{vL4}, v{vDA}")
    a(f"ds_write_b32 v{vL4}, v{vDA} offset:{L_L4}")
    a(f"ds_write_b32 v{vL4}, v{vT+1} offset:{L_HL+256}")
    br("lg", sWAVE, 7, "L_noclr")
    for r in range(1, 4): a(f"v_mov_b32 v{vDA+r}, -1")
    a(f"s_mul_i32 s{sT}, s{sJ}, {GCLR//32}")
    a(f"v_lshl_add_u32 v{vT}, v{vLANE}, 4, s{sT}")
    for off in (0, 1024, 2048): a(f"global_store_dwordx4 v{vT}, {v(vDA,4)}, {p(sGB)} offset:{off}")
    epoch()
    lin(sT, [(sGX, 512), (sJ, 16)], ARR)
    a(f"v_mov_b32 v{vT+2}, s{sT}"); a(f"v_mov_b32 v{vT+8}, s{sEP}")
    setexec(1)
    a("s_waitcnt vmcnt(0)")
    a(f"global_store_dword v{vT+2}, v{vT+8}, {p(sWS)} sc1")
    setexec(-1)
    a("L_noclr:")
    consts()
    br("eq", sWAVE, 7, "L_hep")
    epoch()
    a("s_waitcnt vmcnt(0)")
    a("L_hep:")
    stamp(1)
    a(f"s_add_u32 s{sT}, s{sW}, s{sROLE}"); a(f"s_lshl3_add_u32 s{sT}, s{sT}, s{sJP}")
    br("lt", sT, 8, "L_vote")
    def vote():
        a("L_vote:")
        a(f"s_lshl3_add_u32 s{sT+1}, s{sJP}, s{sGX}")
        lin(sT+2, [(sT+1, 128)], PROBE); a(f"s_add_u32 s{sT+3}, s{sT+2}, 8192")
        a(f"s_load_dword s{sT+4}, {p(sWS)}, s{sT+2} glc"); a(f"s_load_dword s{sT+5}, {p(sWS)}, s{sT+3} glc")
        a(f"s_mov_b32 s{sI}, 0")
        a("s_waitcnt lgkmcnt(0)")
        NV = opt.get("nv", 1)
        for n in range(NV):
            for h in range(2):
                a(f"s_memtime s[{sT+6}:{sT+7}]"); a("s_waitcnt lgkmcnt(0)")
                a(f"s_load_dword s{sT+4}, {p(sWS)}, s{sT+2+h} glc"); a("s_waitcnt lgkmcnt(0)")
                a(f"s_memtime s[{sT+8}:{sT+9}]"); a("s_waitcnt lgkmcnt(0)")
                a(f"s_sub_u32 s{sT+(5 if h == 0 else 4)}, s{sT+8}, s{sT+6}")
            a(f"s_cmp_lt_u32 s{sT+4}, s{sT+5}"); a(f"s_addc_u32 s{sI}, s{sI}, 0")
        a(f"s_cmp_gt_u32 s{sI}, {NV//2}"); a(f"s_cselect_b32 s{sT+4}, 1, 0")
        a(f"s_lshr_b32 s{sT+5}, s{sEP}, 31"); a(f"s_xor_b32 s{sT+4}, s{sT+4}, s{sT+5}")
        a(f"s_and_b32 s{sT+5}, s{sEP}, 0x9fffffff"); a(f"s_lshl_b32 s{sT+4}, s{sT+4}, 30"); a(f"s_or_b32 s{sT+4}, s{sT+4}, s{sT+5}")
        lin(sT, [(sT+1, 16)], VOT)
        a(f"v_mov_b32 v{vT+2}, s{sT}"); a(f"v_mov_b32 v{vT+8}, s{sT+4}")
        setexec(1)
        a(f"global_store_dword v{vT+2}, v{vT+8}, {p(sWS)} sc1")
        setexec(-1)
        stamp(2)
        a("s_setprio 0")
        a("s_branch L_hand2")
    cold.append(vote)
    if opt.get("walk", 0) == 2:
        a("s_mov_b64 exec, 0")
        for c in range(3): br("eq", sW, c, f"L_wk{c}")
        a("s_branch L_wk3")
        a("L_wret:")
        setexec(-1)
        stamp(3)
    br("lg", sROLE, ROLE_Q, "L_hand")
    lin(sT, [(sW, 2048)], L_W2 + 24*1024)
    a(f"v_lshl_add_u32 v{vT}, v{vLANE}, 4, s{sT}")
    a(f"ds_write_b128 v{vT}, {v(vAT,4)}"); a(f"ds_write_b128 v{vT}, {v(vAT,4)} offset:1024")
    sq, sm = FX+5, FX+6
    a(f"v_dot2_f32_bf16 v{sq}, v{FX}, v{FX}, 0")
    a(f"v_dot2_f32_bf16 v{sm}, v{FX}, v{vONE}, 0")
    for t in range(1, 5):
        a(f"v_dot2_f32_bf16 v{sq}, v{FX+t}, v{FX+t}, v{sq}")
        a(f"v_dot2_f32_bf16 v{sm}, v{FX+t}, v{vONE}, v{sm}")
    a(f"v_permlane32_swap_b32 v{sq}, v{sm}")
    a(f"v_add_f32 v{sq}, v{sq}, v{sm}")
    for s_ in (8, 4, 2, 1): a(f"v_add_f32_dpp v{sq}, v{sq}, v{sq} row_ror:{s_} {DPPF}")
    a(f"v_add_f32_dpp v{sq}, v{sq}, v{sq} row_bcast:15 row_mask:0xa bank_mask:0xf")
    a(f"v_mul_f32 v{sq}, {f2u(1/640):#x}, v{sq}")
    a(f"v_readlane_b32 s{sT+2}, v{sq}, 48")
    a(f"v_readlane_b32 s{sT+3}, v{sq}, 16")
    a(f"v_mov_b32 v{sm}, s{sT+2}")
    a(f"v_fma_f32 v{sm}, -v{sm}, v{sm}, s{sT+3}")
    a(f"v_max_f32 v{sm}, 0, v{sm}")
    a(f"v_add_f32 v{sm}, {f2u(1e-5):#x}, v{sm}")
    a(f"v_rsq_f32 v{sm}, v{sm}")
    for r in range(4):
        a(f"v_lshlrev_b32 v{FX}, 16, v{vS+4+r}"); a(f"v_and_b32 v{FX+1}, 0xffff0000, v{vS+4+r}")
        a(f"v_subrev_f32 v{FX}, s{sT+2}, v{FX}"); a(f"v_subrev_f32 v{FX+1}, s{sT+2}, v{FX+1}")
        a(f"v_mul_f32 v{FX}, v{FX}, v{sm}"); a(f"v_mul_f32 v{FX+1}, v{FX+1}, v{sm}")
        a(f"v_cvt_pk_bf16_f32 v{vS+r}, v{FX}, v{FX+1}")
    setexec(0xcccccccccccccccc)
    for r in range(4): a(f"v_mov_b32 v{vS+r}, v{vONE}")
    setexec(-1)
    a(f"s_lshl_b32 s{sI}, s{sW}, 1")
    a("s_barrier")
    a("L_q1l:")
    trq(sI)
    for r in range(0, 16, 2): a(zero2(D4+r))
    lin(sT, [(sI, 5120), (sJP, 256)], GQ0)
    a(f"v_add_u32 v{vT+2}, s{sT}, v{vL4}")
    a("s_waitcnt lgkmcnt(0)")
    mma4(vS)
    for t in range(4):
        if t: a(GMASK[t-1])
        a(f"v_add_f32 v{vS+20}, v{D4+4*t}, v{D4+4*t+1}"); a(f"v_add_f32 v{vS+21}, v{D4+4*t+2}, v{D4+4*t+3}")
    setexec(-1)
    tagword(vS+20); tagword(vS+21)
    a(f"global_store_dword v{vT+2}, v{vS+20}, {p(sGB)}")
    a(f"global_store_dword v{vT+2}, v{vS+21}, {p(sGB)} offset:2560")
    a(f"s_add_u32 s{sI}, s{sI}, 1")
    a(f"s_bitcmp1_b32 s{sI}, 0"); a("s_cbranch_scc1 L_q1l")
    stamp(2)
    a("L_hand:")
    a("s_setprio 0")
    a("s_waitcnt vmcnt(0)")
    a("L_hand2:")
    a("s_barrier")
    if SW: a(f"s_bitcmp1_b32 s{sROLE}, 0"); a("s_cbranch_scc1 L_vkl")
    for i in range(N0): kload(i)
    a("s_branch L_kv")
    if SW:
        a("L_vke:")
        for i in range(16): vload(i, N0 + i)
        a("s_branch L_vkk")
        a("L_vkl:")
        for i in range(16): vload(i, i)
        for i in range(N0): kload(i, 16 + i)
        a("L_vkk:")
        for i in range(N0, 16): kload(i, 16 + i)
        a("s_branch L_kvd")

    a("L_cold:")
    for c in cold:
        if c is spread: a("L_colde:")
        c()
    for l1, l2, text in slow:
        a(f"{l1}:")
        a(text + " sc1")
        a(f"s_branch {l2}")
    a("L_exit:")
    if lite:
        setexec(-1)
        a("s_memrealtime s[62:63]")
        lin(sT, [(2, 64), (sWAVE, 8)], STAMPS)
        a("s_waitcnt lgkmcnt(0)")
        a(f"v_mov_b32 v{vT}, s{sT}"); a(f"v_mov_b32 v{vT+2}, s60"); a(f"v_mov_b32 v{vT+3}, s62")
        a(f"global_store_dwordx2 v{vT}, {v(vT+2,2)}, {p(sWS)}")
        a(f"v_add_u32 v{vT}, 16384, v{vT}"); a(f"v_mov_b32 v{vT+4}, s{64 if lite == 2 else 70}"); a(f"v_mov_b32 v{vT+5}, s{65 if lite == 2 else 68}")
        a(f"global_store_dwordx2 v{vT}, {v(vT+4,2)}, {p(sWS)}")
    if instr:
        setexec(-1)
        stamp(15)
        a("s_memrealtime s[62:63]")
        a("s_waitcnt lgkmcnt(0)")
        a(f"v_writelane_b32 v{vSTV}, s62, 35")
        for i in range(16): a(f"v_writelane_b32 v{vSTV}, s{sst(i)}, {16+i}")
        a(f"v_writelane_b32 v{vSTV}, s60, 32")
        a(f"v_writelane_b32 v{vSTV}, s{sBUD}, 33")
        a(f"v_writelane_b32 v{vSTV}, s{sMODE}, 34")
        lin(sT, [(2, 2048), (sWAVE, 256)], STAMPS)
        a(f"v_add_u32 v{vT}, s{sT}, v{vL4}")
        a(f"global_store_dword v{vT}, v{vSTV}, {p(sWS)}")
    a("L_end:")
    a("s_endpgm")
    body = a.finish()
    if opt.get("walk", 0) == 2:
        body = body.replace("L_wk3\n", "L_wk3\nL_wk0:\nL_wk1:\nL_wk2:\nL_wk3:\n", 1)
        body, n = add_pads(body, [("L_att", "L_late"), ("L_cold", "L_colde")], 4, "L_wret", opt.get("step", 64))
        body = body.replace("L_wk0:\nL_wk1:\nL_wk2:\nL_wk3:\n", "", 1)
    ref = open("interleave_layers__mha_block_cached__glu_gated_swiglu__decode.s.ref").read().split("\n")
    head = [l for l in ref if l.startswith(";") and "@launch" not in l]
    return "\n".join(head) + f"""
; @launch grid=(256,1,1) block=(512,1,1) lds={opt.get('lds', LDS_BYTES)}
.amdgcn_target "amdgcn-amd-amdhsa--gfx950"
.text
.globl {NAME}
.p2align 8
.type {NAME},@function
{NAME}:
{body}
.section .rodata,"a"
.p2align 6
.amdhsa_kernel {NAME}
  .amdhsa_next_free_vgpr 256
  .amdhsa_next_free_sgpr 102
  .amdhsa_accum_offset 256
  .amdhsa_group_segment_fixed_size 0
  .amdhsa_kernarg_size 96
  .amdhsa_user_sgpr_count 2
  .amdhsa_user_sgpr_kernarg_segment_ptr 1
  .amdhsa_system_sgpr_workgroup_id_x 1
  .amdhsa_float_denorm_mode_32 3
.end_amdhsa_kernel
"""

if __name__ == "__main__":
    out = sys.argv[1]
    instr = "instr" in sys.argv[2:]
    opt = {}
    for x in sys.argv[2:]:
        if "=" in x:
            k, val = x.split("="); opt[k] = int(val, 0)
    open(out, "w").write(gen(instr, opt))
```
